```python
import torch

def _softmax(x, axis=-1):
    return torch.softmax(x, dim=axis)
def _gelu(x):
    return torch.nn.functional.gelu(x, approximate="tanh")
def _silu(x):
    return torch.nn.functional.silu(x)
def _sigmoid(x):
    return torch.sigmoid(x)
def _layernorm(x, axis=-1, eps=1e-5):
    m = x.mean(dim=axis, keepdim=True)
    v = x.var(dim=axis, keepdim=True, unbiased=False)
    return (x - m) / torch.sqrt(v + eps)
def _scatter_add(tgt, idx, src, axis=0):
    return tgt.clone().index_add_(axis, idx, src)
def _segment_sum(src, seg, n):
    out = torch.zeros((n,) + src.shape[1:], dtype=src.dtype)
    return out.index_add_(0, seg, src)
def _pad(x, pw):
    flat = tuple(v for pair in reversed(pw) for v in pair)
    return torch.nn.functional.pad(x, flat)

kernel_name = 'interleave_layers__linear_kernel_hedgehog__mha_block__prompt'

def setup_inputs():

    _w = (lambda a: (lambda t: t.to(torch.bfloat16) if t.is_floating_point() else t)(torch.as_tensor(a)))
    def _A_setup():
        B, S, D, H = 1, 2048, 1024, 32
        Dh = D // H
        return {
            "x": _w((lambda *s: torch.randn(*s, dtype=torch.bfloat16) * 0.05)(B, S, D)),
            "wqkv": _w((lambda *s: torch.randn(*s, dtype=torch.bfloat16) * 0.2)(D, 3 * D)),
            "w_phi": _w((lambda *s: torch.randn(*s, dtype=torch.bfloat16) * 0.2)(H, Dh, Dh) * (Dh ** -0.5)),
            "wo": _w((lambda *s: torch.randn(*s, dtype=torch.bfloat16) * 0.05)(D, D)),
        }
    _A_in = _A_setup()

    def _B_setup():
        B, S, D, H = 1, 2048, 1024, 32
        return {
            "x": _w((lambda *s: torch.randn(*s, dtype=torch.bfloat16) * 0.05)(B, S, D)),
            "wqkv": _w((lambda *s: torch.randn(*s, dtype=torch.bfloat16) * 0.1)(D, 3 * D)),
            "wo": _w((lambda *s: torch.randn(*s, dtype=torch.bfloat16) * 0.05)(D, D)),
        }
    _B_in = _B_setup()

    return {
        "A_x": _A_in["x"],
        "A_wqkv": _A_in["wqkv"],
        "A_w_phi": _A_in["w_phi"],
        "A_wo": _A_in["wo"],
        "B_x": _B_in["x"],
        "B_wqkv": _B_in["wqkv"],
        "B_wo": _B_in["wo"],
    }

def reference(A_x, A_wqkv, A_w_phi, A_wo, B_x, B_wqkv, B_wo):
    def _A_ref(x, wqkv, w_phi, wo):
        B, S, D = x.shape
        H = 32; Dh = D // H
        qkv = (lambda x, *d: x.permute(*d))((x @ wqkv).reshape(B, S, 3, H, Dh), 2, 0, 3, 1, 4)
        q, k, v = qkv[0], qkv[1], qkv[2]
        pq = torch.einsum("bhsd,hdf->bhsf", q, w_phi)
        pk = torch.einsum("bhsd,hdf->bhsf", k, w_phi)
        phi_q = torch.concatenate([_softmax(pq, axis=-1), _softmax(-pq, axis=-1)], axis=-1)
        phi_k = torch.concatenate([_softmax(pk, axis=-1), _softmax(-pk, axis=-1)], axis=-1)
        kv = torch.einsum("bhsf,bhsd->bhfd", phi_k, v)
        z  = torch.einsum("bhsf->bhf", phi_k)
        num = torch.einsum("bhqf,bhfd->bhqd", phi_q, kv)
        den = torch.einsum("bhqf,bhf->bhq", phi_q, z)[..., None] + 1e-6
        o = num / den
        return (lambda x, *d: x.permute(*d))(o, 0, 2, 1, 3).reshape(B, S, D) @ wo

    def _B_ref(x, wqkv, wo):
        B, S, D = x.shape
        H = 32
        Dh = D // H
        qkv = (lambda x, *d: x.permute(*d))((x @ wqkv).reshape(B, S, 3, H, Dh), 2, 0, 3, 1, 4)
        q, k, v = qkv[0], qkv[1], qkv[2]
        scores = torch.einsum("bhqd,bhkd->bhqk", q, k) * (Dh ** -0.5)
        p = _softmax(scores, axis=-1)
        o = torch.einsum("bhqk,bhkd->bhqd", p, v)
        return (lambda x, *d: x.permute(*d))(o, 0, 2, 1, 3).reshape(B, S, D) @ wo

    x = A_x
    x = x + _A_ref(_layernorm(x, axis=-1), A_wqkv, A_w_phi, A_wo)
    x = x + _B_ref(_layernorm(x, axis=-1), B_wqkv, B_wo)
    x = x + _A_ref(_layernorm(x, axis=-1), A_wqkv, A_w_phi, A_wo)
    x = x + _B_ref(_layernorm(x, axis=-1), B_wqkv, B_wo)
    return x
```

```python
import re

class Asm:
    def __init__(self):
        self.lines = []
    def __call__(self, s=""):
        for ln in s.split("\n"):
            ln = ln.rstrip()
            if ln.strip() == "":
                continue
            st = ln.strip()
            if st.endswith(":") or st.startswith(".") :
                self.lines.append(st)
            elif st.startswith(";"):
                self.lines.append("    " + st)
            else:
                self.lines.append("    " + st)
    def text(self):
        return "\n".join(self.lines) + "\n"

def v(n, c=1):
    return f"v{n}" if c == 1 else f"v[{n}:{n+c-1}]"
def s(n, c=1):
    return f"s{n}" if c == 1 else f"s[{n}:{n+c-1}]"

_reg_re = re.compile(r"^(v|s|a)(?:(\d+)|\[(\d+):(\d+)\])$")
def regs_of(op):
    op = op.strip()
    neg = op.lstrip("-")
    if neg.startswith("abs(") and neg.endswith(")"): neg = neg[4:-1]
    if neg.startswith("|") and neg.endswith("|"): neg = neg[1:-1]
    m = _reg_re.match(neg)
    if m:
        k = m.group(1)
        if m.group(2) is not None: return {(k, int(m.group(2)))}
        return {(k, i) for i in range(int(m.group(3)), int(m.group(4)) + 1)}
    if neg == "vcc": return {("s", "vcc")}
    if neg == "exec": return {("s", "exec")}
    if neg == "m0": return {("s", "m0")}
    return set()

TRANS = ("v_exp_f32", "v_log_f32", "v_rcp_f32", "v_rsq_f32", "v_sqrt_f32", "v_sin_f32", "v_cos_f32", "v_rcp_iflag_f32")

class Ins:
    def __init__(self, text, idx):
        self.text = text; self.idx = idx
        t = text.split(";")[0].strip()
        p = t.split(None, 1)
        self.op = p[0]
        rest = p[1] if len(p) > 1 else ""
        ops = []; depth = 0; cur = ""
        for ch in rest:
            if ch == "[": depth += 1
            if ch == "]": depth -= 1
            if ch == "," and depth == 0:
                ops.append(cur.strip()); cur = ""
            else: cur += ch
        if cur.strip(): ops.append(cur.strip())
        mods = ""
        if ops:
            q = ops[-1].split(None, 1)
            ops[-1] = q[0]
            mods = q[1] if len(q) > 1 else ""
        self.ops = ops; self.mods = mods
        op = self.op
        self.is_mfma = op.startswith("v_mfma")
        self.is_valu = op.startswith("v_") and not self.is_mfma
        self.is_trans = any(op.startswith(x) for x in TRANS)
        self.is_vmem = op.startswith(("buffer_", "global_", "flat_"))
        self.is_ds = op.startswith("ds_")
        self.is_salu = op.startswith("s_")
        self.is_dpp = ("dpp" in op) or ("row_" in mods) or ("quad_perm" in mods)
        self.is_permlane = op.startswith("v_permlane")
        self.w = set(); self.r = set()
        R = [regs_of(o) for o in ops]
        if self.is_mfma:
            self.w = R[0]; self.ra = R[1]; self.rb = R[2]; self.rc = R[3] if len(R) > 3 else set()
            self.r = self.ra | self.rb | self.rc
            self.passes = 8 if "32x32x16" in op else (4 if "16x16x32" in op else 16)
        elif self.is_valu:
            if op.startswith("v_cmp"):
                self.w = R[0]; self.r = set().union(*R[1:]) if len(R) > 1 else set()
                if op.startswith("v_cmpx"): self.w |= {("s", "exec")}
            elif op.startswith(("v_readfirstlane", "v_readlane")):
                self.w = R[0]; self.r = set().union(*R[1:])
            elif self.is_permlane and "swap" in op:
                self.w = R[0] | R[1]; self.r = R[0] | R[1]
            elif op.startswith(("v_add_co", "v_sub_co", "v_addc_co", "v_subb_co")):
                self.w = R[0] | R[1]; self.r = set().union(*R[2:])
            else:
                self.w = R[0]; self.r = set().union(*R[1:]) if len(R) > 1 else set()
                if op.startswith(("v_fmac", "v_dot2c", "v_mac", "v_pk_fmac", "v_writelane")) or "UNUSED_PRESERVE" in mods or self.is_dpp:
                    self.r |= R[0]
                if op.startswith("v_cndmask") and len(ops) == 3: self.r |= {("s", "vcc")}
        elif self.is_vmem:
            lds = " lds" in (" " + mods)
            if "store" in op:
                self.r = set().union(*R); self.store_data = R[0] if op.startswith("buffer_") else R[1]
            elif "atomic" in op:
                self.r = set().union(*R)
                if "sc0" in mods and op.startswith("buffer_"): self.w = R[0]
            elif lds or "_lds_" in op:
                self.r = set().union(*R) | {("s", "m0")}
            elif op.startswith(("buffer_wbl2", "buffer_inv")):
                pass
            else:
                self.w = R[0]; self.r = set().union(*R[1:])
            self.lds_dma = lds or "_lds_" in op
        elif self.is_ds:
            if op.startswith(("ds_write", "ds_add", "ds_max", "ds_min", "ds_or")):
                self.r = set().union(*R)
            else:
                self.w = R[0]; self.r = set().union(*R[1:])
        elif self.is_salu:
            if op.startswith(("s_cmp", "s_cbranch", "s_branch", "s_waitcnt", "s_nop", "s_barrier", "s_endpgm", "s_sleep", "s_setprio", "s_bitcmp")):
                self.r = set().union(*R) if R else set()
            elif "saveexec" in op:
                self.w = R[0] | {("s", "exec")}; self.r = set().union(*R[1:]) | {("s", "exec")}
            else:
                self.w = R[0] if R else set(); self.r = set().union(*R[1:]) if len(R) > 1 else set()
    def states(self):
        if self.op == "s_nop": return int(self.ops[0], 0) + 1
        return 1

def isv(r): return r[0] in ("v", "a")
def iss(r): return r[0] == "s"

def check_trace(tr, problems, window=24):
    n = len(tr)
    for i, c in enumerate(tr):
        dist = 0
        j = i - 1
        while j >= 0 and dist < window:
            p = tr[j]
            need = 0; why = ""
            pwv = {r for r in p.w if isv(r)}; pws = {r for r in p.w if iss(r)}
            if p.is_valu:
                if c.is_mfma and (pwv & c.r): need, why = 2, "VALU->MFMA read"
                if c.is_permlane and (pwv & c.r): need, why = max(need, 2), "VALU->permlane"
                if c.is_valu and c.is_dpp and (pwv & c.r): need, why = max(need, 2), "VALU->DPP"
                if c.op.startswith(("v_readlane", "v_readfirstlane")) and (pwv & c.r): need, why = max(need, 1), "VALU->readlane"
                if p.is_trans and c.is_valu and not c.is_trans and (pwv & c.r): need, why = max(need, 1), "trans->VALU"
                if p.is_trans and (c.is_mfma) and (pwv & c.r): need, why = max(need, 2), "trans->MFMA"
                if c.is_vmem and (pws & c.r): need, why = max(need, 5), "VALU sgpr->VMEM"
                if c.is_valu and (pws & c.r) and ("s", "exec") not in (pws & c.r): need, why = max(need, 2), "VALU sgpr->VALU const"
                if c.is_salu and (pws & c.r) and not p.op.startswith("v_cmp"): need, why = max(need, 1), "VALU sgpr->SALU (padded)"
                if ("s", "exec") in pws:
                    if c.is_mfma: need, why = max(need, 4), "VALU exec->MFMA"
                    if c.is_permlane or c.op.startswith(("v_readlane", "v_readfirstlane")): need, why = max(need, 4), "cmpx->lane op"
                    if c.is_dpp: need, why = max(need, 5), "VALU exec->DPP"
            if p.op.startswith("v_dot2") and (pwv & (c.r | c.w)):
                if not (c.op == p.op and not (pwv & (set().union(*[regs_of(o) for o in c.ops[1:]])))):
                    need, why = max(need, 3), "DOT->other"
            if p.is_mfma:
                P = p.passes
                tA = {2: 5, 4: 8, 8: 12, 16: 20}[P]
                tC = {2: 4, 4: 6, 8: 10, 16: 18}[P]
                tW = {2: 1, 4: 3, 8: 7, 16: 15}[P]
                if c.is_mfma:
                    if p.w & (c.ra | c.rb): need, why = max(need, tA), "MFMA D->MFMA A/B"
                    if p.w & c.rc:
                        if not (p.w == c.rc and p.passes == c.passes): need, why = max(need, tC), "MFMA D->MFMA C overlap"
                    if (p.w & c.w) and not (p.w == c.w and p.w == c.rc and p.passes == c.passes):
                        need, why = max(need, tC), "MFMA D->MFMA D WAW"
                elif c.is_valu or c.is_vmem or c.is_ds:
                    if p.w & (c.r | c.w): need, why = max(need, tA), "MFMA D->VALU/VMEM/DS"
                    if c.is_valu and (p.rc & c.w): need, why = max(need, tW), "MFMA C WAR VALU"
            if p.is_vmem and "store" in p.op and ("x3" in p.op or "x4" in p.op):
                if (c.w & p.store_data):
                    need, why = max(need, 2 if c.is_valu else 1), "wide store data WAR"
            if p.is_ds and p.op.startswith("ds_write") and ("b128" in p.op or "b96" in p.op):
                pass
            if p.is_salu and ("s", "m0") in p.w and c.is_vmem and getattr(c, "lds_dma", False): need, why = max(need, 1), "M0->LDS DMA"
            if p.is_salu and ("s", "exec") in p.w and c.is_dpp: pass
            if need > dist:
                problems.append(f"{why}: need {need} have {dist}\n    {p.text.strip()}\n    {c.text.strip()}")
            dist += p.states()
            j -= 1

def check_hazards(text):
    lines = text.split("\n")
    ins = []; labels = {}
    for ln in lines:
        t = ln.split(";")[0].strip()
        if not t or t.startswith("."): continue
        if t.endswith(":"):
            labels[t[:-1]] = len(ins); continue
        ins.append(Ins(t, len(ins)))
    problems = []
    check_trace(ins, problems)
    for i, c in enumerate(ins):
        if c.op.startswith(("s_cbranch", "s_branch")):
            tgt = labels.get(c.ops[0])
            if tgt is None: continue
            a = ins[max(0, i - 30):i + 1]
            b = ins[tgt:tgt + 30]
            pr = []
            check_trace(a + b, pr)
            problems += ["[edge %s] " % c.ops[0] + x for x in pr]
    seen = [];
    for p in problems:
        if p not in seen: seen.append(p)
    return seen

def kernel_descriptor(name, vgprs, sgprs=102):
    import os
    if os.environ.get("STAMP", "0") == "1": vgprs = 256
    acc = (vgprs + 3) // 4 * 4
    return f""".p2align 6
.amdhsa_kernel {name}
  .amdhsa_next_free_vgpr {vgprs}
  .amdhsa_next_free_sgpr {sgprs}
  .amdhsa_accum_offset {acc}
  .amdhsa_group_segment_fixed_size 0
  .amdhsa_kernarg_size 80
  .amdhsa_user_sgpr_count 2
  .amdhsa_user_sgpr_kernarg_segment_ptr 1
  .amdhsa_system_sgpr_workgroup_id_x 1
.end_amdhsa_kernel
"""
```

```python
from asmlib import *

KA_AX, KA_AWQKV, KA_AWPHI, KA_AWO, KA_BX, KA_BWQKV, KA_BWO, KA_OUT, KA_DBG, KA_WS = 0, 8, 16, 24, 32, 40, 48, 56, 64, 72

S_, D_, H_ = 2048, 1024, 32
WS_XF    = 0x0000000
WS_QF    = 0x0400000
WS_KVF   = 0x0800000
WS_OF    = 0x1000000
WS_STATS = 0x1400000
WS_CSP   = 0x1440000
WS_KVP   = 0x1500000
WS_ZP    = 0x1700000
WS_SIZE  = 0x10000000

def srd(a, dst, base, nbytes, off=0):
    if off:
        a(f"s_add_u32 s{dst}, s{base}, {hex(off)}")
        a(f"s_addc_u32 s{dst+1}, s{base+1}, 0")
        a(f"s_and_b32 s{dst+1}, s{dst+1}, 0xffff")
    else:
        a(f"s_mov_b32 s{dst}, s{base}")
        a(f"s_and_b32 s{dst+1}, s{base+1}, 0xffff")
    a(f"s_mov_b32 s{dst+2}, {hex(nbytes)}")
    a(f"s_mov_b32 s{dst+3}, 0x20000")

def kstart(a, name, nwg):
    a(f".globl {name}")
    a(".p2align 8")
    a(f".type {name},@function")
    a(f"{name}:")
    a(f"s_cmp_ge_u32 s2, {nwg}")
    a(f"s_cbranch_scc1 {name}_end")

def kend(a, name):
    a(f"{name}_end:")
    a("s_endpgm")

ONES_BF16 = 0x3F803F80
SEL_LO = 0x00003F80
SEL_HI = 0x3F800000
```

```python
from common import *
import struct
def f32(x): return hex(struct.unpack("<I", struct.pack("<f", x))[0])
LOG2E = 1.4426950408889634
M32 = "v_mfma_f32_32x32x16_bf16"

def wphi_addr(a, dst, lane, lds_base_expr_sgpr, t0):
    a(f"v_lshrrev_b32 v{t0}, 5, v{lane}")
    a(f"v_bfe_u32 v{dst}, v{lane}, 2, 2")
    a(f"v_lshl_add_u32 v{t0}, v{t0}, 2, v{dst}")
    a(f"v_lshlrev_b32 v{t0}, 6, v{t0}")
    a(f"v_bfe_u32 v{dst}, v{lane}, 4, 1")
    a(f"v_lshl_add_u32 v{t0}, v{dst}, 5, v{t0}")
    a(f"v_and_b32 v{dst}, 3, v{lane}")
    a(f"v_lshl_add_u32 v{dst}, v{dst}, 3, v{t0}")
    a(f"v_add_u32 v{dst}, {lds_base_expr_sgpr}, v{dst}")

def wphi_reads(a, dst, addr):
    for t in range(2):
        for tp in range(2):
            a(f"ds_read_b64_tr_b16 {v(dst+4*t+2*tp,2)}, v{addr} offset:{(16*t+8*tp)*64}")

def softmax_pm(a, PD, EN, PT, T, sL):
    mx, mn, t1, t2, sp, sn = T, T+1, T+2, T+3, T+4, T+6
    a(f"v_max3_f32 v{mx}, v{PD}, v{PD+1}, v{PD+2}")
    a(f"v_min3_f32 v{mn}, v{PD}, v{PD+1}, v{PD+2}")
    for i in range(3, 15, 2):
        a(f"v_max3_f32 v{mx}, v{mx}, v{PD+i}, v{PD+i+1}")
        a(f"v_min3_f32 v{mn}, v{mn}, v{PD+i}, v{PD+i+1}")
    a(f"v_max_f32 v{mx}, v{mx}, v{PD+15}")
    a(f"v_min_f32 v{mn}, v{mn}, v{PD+15}")
    a(f"v_mov_b32 v{t1}, v{mx}")
    a(f"v_mov_b32 v{t2}, v{mn}")
    a("s_nop 1")
    a(f"v_permlane32_swap_b32 v{mx}, v{t1}")
    a(f"v_permlane32_swap_b32 v{mn}, v{t2}")
    a("s_nop 1")
    a(f"v_max_f32 v{mx}, v{mx}, v{t1}")
    a(f"v_min_f32 v{mn}, v{mn}, v{t2}")
    a(f"v_mul_f32 v{mx}, s{sL}, v{mx}")
    a(f"v_mul_f32 v{mn}, s{sL}, v{mn}")
    for r in range(16):
        a(f"v_fma_f32 v{EN+r}, -v{PD+r}, s{sL}, v{mn}")
    for r in range(16):
        a(f"v_fma_f32 v{PD+r}, v{PD+r}, s{sL}, -v{mx}")
    for r in range(16):
        a(f"v_exp_f32 v{EN+r}, v{EN+r}")
    for r in range(16):
        a(f"v_exp_f32 v{PD+r}, v{PD+r}")
    a(f"v_pk_add_f32 {v(sn,2)}, {v(EN,2)}, {v(EN+2,2)}")
    for r in range(2, 8): a(f"v_pk_add_f32 {v(sn,2)}, {v(sn,2)}, {v(EN+2*r,2)}")
    a(f"v_pk_add_f32 {v(sp,2)}, {v(PD,2)}, {v(PD+2,2)}")
    for r in range(2, 8): a(f"v_pk_add_f32 {v(sp,2)}, {v(sp,2)}, {v(PD+2*r,2)}")
    a(f"v_add_f32 v{sn}, v{sn}, v{sn+1}")
    a(f"v_add_f32 v{sp}, v{sp}, v{sp+1}")
    a(f"v_mov_b32 v{t1}, v{sp}")
    a(f"v_mov_b32 v{t2}, v{sn}")
    a("s_nop 1")
    a(f"v_permlane32_swap_b32 v{sp}, v{t1}")
    a(f"v_permlane32_swap_b32 v{sn}, v{t2}")
    a("s_nop 1")
    a(f"v_add_f32 v{sp}, v{sp}, v{t1}")
    a(f"v_add_f32 v{sn}, v{sn}, v{t2}")
    a(f"v_rcp_f32 v{sp}, v{sp}")
    a(f"v_rcp_f32 v{sn}, v{sn}")
    a("s_nop 0")
    for r in range(8): a(f"v_pk_mul_f32 {v(PD+2*r,2)}, {v(PD+2*r,2)}, {v(sp,2)} op_sel_hi:[1,0]")
    for r in range(8): a(f"v_pk_mul_f32 {v(EN+2*r,2)}, {v(EN+2*r,2)}, {v(sn,2)} op_sel_hi:[1,0]")
    for r in range(8): a(f"v_cvt_pk_bf16_f32 v{PT+r}, v{PD+2*r}, v{PD+2*r+1}")
    for r in range(8): a(f"v_cvt_pk_bf16_f32 v{PT+8+r}, v{EN+2*r}, v{EN+2*r+1}")
```

```python
from common import *

def gen_k0(name="prep_kernel"):
    a = Asm()
    kstart(a, name, 256)
    a("s_load_dwordx2 s[4:5], s[0:1], %d" % KA_AX)
    a("s_load_dwordx2 s[6:7], s[0:1], %d" % KA_WS)
    a("s_load_dwordx2 s[20:21], s[0:1], %d" % KA_AWQKV)
    a("s_load_dwordx2 s[22:23], s[0:1], %d" % KA_BWQKV)
    a("s_load_dwordx2 s[24:25], s[0:1], %d" % KA_AWO)
    a("s_load_dwordx2 s[26:27], s[0:1], %d" % KA_BWO)
    a("v_lshrrev_b32 v1, 6, v0")
    a("v_and_b32 v2, 63, v0")
    a("v_and_b32 v3, 31, v0")
    a("v_bfe_u32 v4, v0, 5, 1")
    a("v_readfirstlane_b32 s28, v1")
    a("s_waitcnt lgkmcnt(0)")
    srd(a, 8, 4, S_ * D_ * 2)
    srd(a, 16, 6, WS_SIZE)
    a("s_lshr_b32 s29, s2, 2")
    a("s_and_b32 s30, s2, 3")
    a("s_lshl_b32 s30, s30, 2")
    a("s_add_u32 s30, s30, s28")
    a("s_lshl_b32 s31, s29, 16")
    a("s_lshl_b32 s32, s30, 7")
    a("s_add_u32 s31, s31, s32")
    a("v_lshlrev_b32 v5, 11, v3")
    a("v_lshl_add_u32 v5, v4, 4, v5")
    for i in range(4):
        a(f"buffer_load_dwordx4 {v(8+4*i,4)}, v5, s[8:11], s31 offen offset:{i*32}")
    a("s_cmp_ge_u32 s2, 192")
    a(f"s_cbranch_scc1 {name}_pf")
    a("s_cmp_ge_u32 s2, 96")
    a("s_cselect_b32 s33, 1, 0")
    a("s_cselect_b32 s12, s22, s20")
    a("s_cselect_b32 s13, s23, s21")
    a("s_and_b32 s13, s13, 0xffff")
    a(f"s_mov_b32 s14, {hex(D_*3*D_*2)}")
    a("s_mov_b32 s15, 0x20000")
    a("s_mul_i32 s34, s33, 96")
    a("s_sub_u32 s34, s2, s34")
    a("s_mul_i32 s35, s34, 43")
    a("s_lshr_b32 s35, s35, 8")
    a("s_mul_i32 s36, s35, 6")
    a("s_sub_u32 s36, s34, s36")
    a("s_lshl_b32 s37, s35, 6")
    a("s_lshl_b32 s38, s28, 4")
    a("s_add_u32 s37, s37, s38")
    a("s_mul_i32 s37, s37, 6144")
    a("s_lshl_b32 s38, s36, 10")
    a("s_add_u32 s37, s37, s38")
    a("v_lshlrev_b32 v6, 4, v2")
    for i in range(16):
        a(f"buffer_load_dwordx4 {v(32+4*i,4)}, v6, s[12:15], s37 offen")
        if i < 15: a("s_add_u32 s37, s37, 6144")
    a(f"s_branch {name}_p1")
    a(f"{name}_pf:")
    a("s_sub_u32 s34, s2, 192")
    a("s_cmp_ge_u32 s34, 32")
    a("s_cselect_b32 s12, s26, s24")
    a("s_cselect_b32 s13, s27, s25")
    a("s_and_b32 s13, s13, 0xffff")
    a(f"s_mov_b32 s14, {hex(D_*D_*2)}")
    a("s_mov_b32 s15, 0x20000")
    a("s_and_b32 s34, s34, 31")
    a("s_lshl_b32 s37, s34, 16")
    a("s_lshl_b32 s38, s28, 14")
    a("s_add_u32 s37, s37, s38")
    a("v_lshlrev_b32 v6, 4, v2")
    for i in range(16):
        a(f"buffer_load_dwordx4 {v(32+4*i,4)}, v6, s[12:15], s37 offen")
        if i < 15: a("s_add_u32 s37, s37, 1024")
    a(f"{name}_p1:")
    a("s_waitcnt vmcnt(16)")
    a("v_mov_b32 v24, 0")
    a("v_mov_b32 v25, 0")
    a(f"s_mov_b32 s39, {hex(ONES_BF16)}")
    a("v_mov_b32 v7, s39")
    for i in range(4):
        for j in range(4):
            a(f"v_dot2c_f32_bf16 v24, v{8+4*i+j}, v7")
            a(f"v_dot2c_f32_bf16 v25, v{8+4*i+j}, v{8+4*i+j}")
    for i in range(4):
        a(f"v_permlane32_swap_b32 v{8+4*i}, v{8+4*i+2}")
        a(f"v_permlane32_swap_b32 v{8+4*i+1}, v{8+4*i+3}")
    a("s_lshl_b32 s31, s29, 16")
    a("s_lshl_b32 s32, s30, 12")
    a("s_add_u32 s31, s31, s32")
    a("v_lshlrev_b32 v26, 4, v2")
    a("v_mov_b32 v28, v24")
    a("v_mov_b32 v30, v25")
    for i in range(4):
        a(f"buffer_store_dwordx4 {v(8+4*i,4)}, v26, s[16:19], s31 offen offset:{i*1024}")
    a("v_permlane32_swap_b32 v24, v28")
    a("v_permlane32_swap_b32 v25, v30")
    a("s_nop 1")
    a("v_add_f32 v24, v24, v28")
    a("v_add_f32 v25, v25, v30")
    a("s_lshl_b32 s31, s30, 14")
    a("s_lshl_b32 s32, s29, 8")
    a("s_add_u32 s31, s31, s32")
    a(f"s_add_u32 s31, s31, {hex(WS_STATS)}")
    a("v_lshlrev_b32 v27, 3, v3")
    a("s_mov_b64 exec, 0xffffffff")
    a("buffer_store_dwordx2 v[24:25], v27, s[16:19], s31 offen")
    a("s_mov_b64 exec, -1")
    a("s_cmp_ge_u32 s2, 192")
    a(f"s_cbranch_scc1 {name}_fin")
    a(f"s_mov_b32 s39, {hex(SEL_LO)}")
    a(f"s_mov_b32 s40, {hex(SEL_HI)}")
    a("v_mov_b32 v7, s39")
    a("v_mov_b32 v6, s40")
    for j in range(8):
        a(f"v_mov_b32 v{8+j}, 0")
    for i in range(16):
        a(f"s_waitcnt vmcnt({15 - i + 5})" if i < 15 else "s_waitcnt vmcnt(5)")
        for j in range(4):
            a(f"v_dot2c_f32_bf16 v{8+2*j}, v{32+4*i+j}, v7")
            a(f"v_dot2c_f32_bf16 v{8+2*j+1}, v{32+4*i+j}, v6")
    a("s_lshl_b32 s31, s28, 11")
    a("v_lshlrev_b32 v16, 5, v2")
    a("v_add_u32 v16, s31, v16")
    a("ds_write_b128 v16, v[8:11]")
    a("ds_write_b128 v16, v[12:15] offset:16")
    a("s_waitcnt lgkmcnt(0)")
    a("s_barrier")
    a("v_lshlrev_b32 v17, 3, v0")
    for w in range(4):
        a(f"ds_read_b64 {v(18+2*w,2)}, v17 offset:{w*2048}")
    a("s_waitcnt lgkmcnt(0)")
    a("v_add_f32 v18, v18, v20")
    a("v_add_f32 v19, v19, v21")
    a("v_add_f32 v22, v22, v24")
    a("v_add_f32 v23, v23, v25")
    a("v_add_f32 v18, v18, v22")
    a("v_add_f32 v19, v19, v23")
    a("s_mul_i32 s31, s33, %d" % (16 * 3072 * 4))
    a("s_mul_i32 s32, s35, %d" % (3072 * 4))
    a("s_add_u32 s31, s31, s32")
    a("s_lshl_b32 s32, s36, 11")
    a("s_add_u32 s31, s31, s32")
    a(f"s_add_u32 s31, s31, {hex(WS_CSP)}")
    a("buffer_store_dwordx2 v[18:19], v17, s[16:19], s31 offen")
    a(f"{name}_fin:")
    a("s_waitcnt vmcnt(0)")
    kend(a, name)
    return a.text(), kernel_descriptor(name, 96), dict(name=name, grid=256, block=256, lds=8192)
```

```python
from common import *

STAGE = 40960
NST = 3
L_STATS = NST * STAGE
L_NM = L_STATS
L_RS = L_STATS + 512
L_CS = L_STATS + 1024
L_WPHI = L_STATS + 2048
K1_LDS = L_WPHI + 4096

LOG2E = 1.4426950408889634
import struct
def f32(x): return hex(struct.unpack("<I", struct.pack("<f", x))[0])

ACC = 0
FA = 96
FB = 116
VX, VW, VX0, VW0 = 136, 137, 138, 139
VT = 140

def acc(p, mi): return ACC + (p * 2 + mi) * 16

def emit_reads(a, fs, ks, which):
    def rd(n):
        if n == 0: return f"ds_read_b128 {v(fs,4)}, v{VX} offset:{ks*1024}"
        if n == 3: return f"ds_read_b128 {v(fs+4,4)}, v{VX} offset:{4096+ks*1024}"
        p, t = {1:(0,0),2:(0,1),4:(1,0),5:(1,1),6:(2,0),7:(2,1)}[n]
        return f"ds_read_b64_tr_b16 {v(fs+8+4*p+2*t,2)}, v{VW} offset:{16384+p*8192+ks*2048+t*1024}"
    for n in which: a(rd(n))

def emit_sub(a, cur, nxt, nks, barrier=False):
    x0, x1, wq, wk, wv = cur, cur+4, cur+8, cur+12, cur+16
    M = "v_mfma_f32_32x32x16_bf16"
    def mf(d, A, B): a(f"{M} {v(d,16)}, {v(A,4)}, {v(B,4)}, {v(d,16)}")
    if barrier:
        a("s_waitcnt lgkmcnt(0)")
        a("s_barrier")
        a(f"s_add_u32 s40, s40, {STAGE}")
        a(f"s_cmp_eq_u32 s40, {NST*STAGE}")
        a("s_cselect_b32 s40, 0, s40")
        a(f"v_add_u32 v{VX}, s40, v{VX0}")
        a(f"v_add_u32 v{VW}, s40, v{VW0}")
    else:
        a("s_waitcnt lgkmcnt(5)")
    mf(acc(0,0), wq, x0)
    emit_reads(a, nxt, nks, [0, 1])
    if not barrier: a("s_waitcnt lgkmcnt(6)")
    mf(acc(0,1), wq, x1)
    emit_reads(a, nxt, nks, [2, 3])
    if not barrier: a("s_waitcnt lgkmcnt(6)")
    mf(acc(1,0), wk, x0)
    emit_reads(a, nxt, nks, [4, 5])
    mf(acc(1,1), wk, x1)
    emit_reads(a, nxt, nks, [6, 7])
    if not barrier: a("s_waitcnt lgkmcnt(8)")
    mf(acc(2,0), x0, wv)
    mf(acc(2,1), x1, wv)

def loader_issue(a, name):
    a("s_mov_b32 m0, s43")
    a("s_nop 0")
    for ks in range(4):
        a(f"buffer_load_dwordx4 v2, s[8:11], s41 offen offset:{ks*1024} lds")
    for p in range(3):
        for q in range(2):
            a(f"s_add_u32 m0, s44, {p*8192+q*1024}")
            a(f"s_add_u32 s45, s42, {p*2048+q*8*6144}")
            a("buffer_load_dwordx4 v3, s[12:15], s45 offen lds")
    a("s_add_u32 s41, s41, 4096")
    a(f"s_add_u32 s42, s42, {64*6144}")
    a(f"s_add_u32 s46, s46, {STAGE}")
    a(f"s_cmp_eq_u32 s46, {NST*STAGE}")
    a("s_cselect_b32 s46, 0, s46")
    a("s_add_u32 s43, s46, s47")
    a("s_add_u32 s44, s46, s48")

def gen_k1(name, variant, epilogue=None):
    kaW = KA_AWQKV if variant == 'A' else KA_BWQKV
    m_idx = 0 if variant == 'A' else 1
    a = Asm()
    kstart(a, name, 256)
    a(f"s_load_dwordx2 s[4:5], s[0:1], {KA_WS}")
    a(f"s_load_dwordx2 s[6:7], s[0:1], {kaW}")
    if variant == 'A':
        a(f"s_load_dwordx2 s[20:21], s[0:1], {KA_AWPHI}")
    a("v_lshrrev_b32 v1, 6, v0")
    a("v_and_b32 v4, 63, v0")
    a("s_and_b32 s22, s2, 7")
    a("s_lshr_b32 s23, s2, 3")
    a("v_readfirstlane_b32 s28, v1")
    a("s_and_b32 s24, s22, 1")
    a("s_lshl_b32 s24, s24, 3")
    a("s_and_b32 s25, s23, 7")
    a("s_add_u32 s24, s24, s25")
    a("s_lshr_b32 s25, s22, 1")
    a("s_lshl_b32 s25, s25, 2")
    a("s_lshr_b32 s26, s23, 3")
    a("s_add_u32 s25, s25, s26")
    a("s_waitcnt lgkmcnt(0)")
    srd(a, 8, 4, WS_SIZE)
    srd(a, 12, 6, D_ * 3 * D_ * 2)
    a("s_cmp_lt_u32 s28, 4")
    a(f"s_cbranch_scc1 {name}_mma")
    a("s_sub_u32 s29, s28, 4")
    a("v_lshlrev_b32 v2, 4, v4")
    a("v_lshrrev_b32 v5, 3, v4")
    a("v_mul_u32_u24 v3, 6144, v5")
    a("v_and_b32 v6, 7, v4")
    a("v_bfe_u32 v7, v4, 4, 1")
    a("v_lshlrev_b32 v7, 2, v7")
    a("v_xor_b32 v6, v6, v7")
    a("v_lshl_add_u32 v3, v6, 4, v3")
    a("s_lshl_b32 s41, s24, 2")
    a("s_add_u32 s41, s41, s29")
    a("s_lshl_b32 s41, s41, 16")
    if WS_XF: a(f"s_add_u32 s41, s41, {hex(WS_XF)}")
    a(f"s_mul_i32 s42, s29, {16*6144}")
    a("s_lshl_b32 s30, s25, 7")
    a("s_add_u32 s42, s42, s30")
    a("s_lshl_b32 s47, s29, 12")
    a("s_lshl_b32 s48, s29, 11")
    a("s_add_u32 s48, s48, 16384")
    a("s_mov_b32 s46, 0")
    a("s_mov_b32 s43, s47")
    a("s_mov_b32 s44, s48")
    loader_issue(a, name)
    a("s_cmp_lt_u32 s29, 2")
    a(f"s_cbranch_scc0 {name}_stc")
    a("s_lshl_b32 s30, s24, 7")
    a("s_lshl_b32 s31, s29, 6")
    a("s_add_u32 s30, s30, s31")
    a("s_lshl_b32 s30, s30, 3")
    a(f"s_add_u32 s30, s30, {hex(WS_STATS)}")
    a("s_mov_b32 s31, 16384")
    a("v_lshlrev_b32 v5, 3, v4")
    a(f"s_branch {name}_stl")
    a(f"{name}_stc:")
    a("s_sub_u32 s30, s29, 2")
    a("s_lshl_b32 s30, s30, 1")
    a("v_lshrrev_b32 v5, 5, v4")
    a("v_add_u32 v5, s30, v5")
    a("v_min_u32 v5, 2, v5")
    a("v_and_b32 v6, 31, v4")
    a("v_lshlrev_b32 v6, 3, v6")
    a("v_lshl_add_u32 v7, v5, 8, v6")
    a("v_lshl_add_u32 v5, v5, 12, v6")
    a("s_lshl_b32 s30, s25, 8")
    a(f"s_add_u32 s30, s30, {hex(WS_CSP + m_idx*16*3072*4)}")
    a(f"s_mov_b32 s31, {3072*4}")
    a(f"{name}_stl:")
    for i in range(16):
        a(f"buffer_load_dwordx2 {v(16+2*i,2)}, v5, s[8:11], s30 offen")
        if i < 15: a("s_add_u32 s30, s30, s31")
    nextra = 0
    if variant == 'A':
        srd(a, 16, 20, 32*32*32*2)
        a("s_lshl_b32 s30, s25, 12")
        a("s_lshl_b32 s31, s29, 10")
        a("s_add_u32 s30, s30, s31")
        a(f"s_add_u32 m0, s31, {L_WPHI}")
        a("s_nop 0")
        a("buffer_load_dwordx4 v2, s[16:19], s30 offen lds")
        nextra = 1
    loader_issue(a, name)
    loader_issue(a, name)
    a(f"s_waitcnt vmcnt({36+nextra})")
    a("s_barrier")
    a("s_waitcnt vmcnt(20)")
    for i in range(1, 16):
        a(f"v_add_f32 v16, v16, v{16+2*i}")
        a(f"v_add_f32 v17, v17, v{17+2*i}")
    a("s_cmp_lt_u32 s29, 2")
    a(f"s_cbranch_scc0 {name}_stc2")
    a(f"v_mul_f32 v16, {f32(1.0/1024)}, v16")
    a(f"v_mul_f32 v17, {f32(1.0/1024)}, v17")
    a("v_fma_f32 v17, -v16, v16, v17")
    a("v_max_f32 v17, 0, v17")
    a(f"v_add_f32 v17, {f32(1e-5)}, v17")
    a("v_rsq_f32 v17, v17")
    a("v_sub_f32 v16, 0, v16")
    a("s_lshl_b32 s30, s29, 8")
    a("v_lshlrev_b32 v5, 2, v4")
    a("v_add_u32 v5, s30, v5")
    a(f"v_add_u32 v5, {L_NM}, v5")
    a("ds_write_b32 v5, v16")
    a("ds_write_b32 v5, v17 offset:512")
    a(f"s_branch {name}_std")
    a(f"{name}_stc2:")
    a(f"v_add_u32 v7, {L_CS}, v7")
    a("ds_write_b64 v7, v[16:17]")
    a(f"{name}_std:")
    a("s_waitcnt lgkmcnt(0)")
    a("s_mov_b32 s49, 13")
    a(f"{name}_lloop:")
    a("s_waitcnt vmcnt(10)")
    a("s_barrier")
    loader_issue(a, name)
    a("s_sub_u32 s49, s49, 1")
    a("s_cmp_lg_u32 s49, 0")
    a(f"s_cbranch_scc1 {name}_lloop")
    a("s_waitcnt vmcnt(10)")
    a("s_barrier")
    a("s_waitcnt vmcnt(0)")
    a("s_barrier")
    a("s_barrier")
    a("s_endpgm")
    a(f"{name}_mma:")
    a("s_lshr_b32 s29, s28, 1")
    a("s_and_b32 s30, s28, 1")
    a("s_lshl_b32 s31, s29, 13")
    a(f"v_lshlrev_b32 v{VX0}, 4, v4")
    a(f"v_add_u32 v{VX0}, s31, v{VX0}")
    a("v_lshrrev_b32 v5, 5, v4")
    a("v_bfe_u32 v6, v4, 2, 2")
    a("v_lshl_add_u32 v5, v5, 2, v6")
    a("v_lshlrev_b32 v5, 7, v5")
    a("v_bfe_u32 v6, v4, 4, 1")
    a("v_bfe_u32 v7, v4, 1, 1")
    a("v_lshl_add_u32 v6, v6, 1, v7")
    a("s_lshl_b32 s31, s30, 2")
    a("v_add_u32 v6, s31, v6")
    a("v_bfe_u32 v7, v4, 3, 1")
    a("v_lshlrev_b32 v7, 2, v7")
    a("v_xor_b32 v6, v6, v7")
    a("v_lshl_add_u32 v5, v6, 4, v5")
    a("v_and_b32 v6, 1, v4")
    a(f"v_lshl_add_u32 v{VW0}, v6, 3, v5")
    a(f"v_mov_b32 v{VX}, v{VX0}")
    a(f"v_mov_b32 v{VW}, v{VW0}")
    a(f"v_mov_b32 v{VT}, v4")
    for i in range(96): a(f"v_mov_b32 v{ACC+i}, 0")
    a("s_mov_b32 s40, 0")
    a("s_mov_b32 s49, 16")
    a("s_barrier")
    emit_reads(a, FA, 0, range(8))
    a(f"{name}_mloop:")
    emit_sub(a, FA, FB, 1)
    emit_sub(a, FB, FA, 2)
    emit_sub(a, FA, FB, 3)
    emit_sub(a, FB, FA, 0, barrier=True)
    a("s_sub_u32 s49, s49, 1")
    a("s_cmp_lg_u32 s49, 0")
    a(f"s_cbranch_scc1 {name}_mloop")
    a("s_waitcnt lgkmcnt(0)")
    epilogue(a, name)
    kend(a, name)
    return a.text(), kernel_descriptor(name, 256), dict(name=name, grid=256, block=512, lds=K1_LDS)

LANE = VT
def load_stats_T(a, dst_nm, dst_rs):
    t = VT + 1
    a(f"v_and_b32 v{t}, 31, v{LANE}")
    a("s_lshl_b32 s31, s29, 8")
    a(f"v_lshlrev_b32 v{t}, 2, v{t}")
    a(f"v_add_u32 v{t}, s31, v{t}")
    a(f"v_add_u32 v{t}, {L_NM}, v{t}")
    for mi in range(2):
        a(f"ds_read_b32 v{dst_nm+2*mi}, v{t} offset:{mi*128}")
        a(f"ds_read_b32 v{dst_rs+2*mi}, v{t} offset:{512+mi*128}")

def load_cs_T(a, p, dst):
    t = VT + 2
    a(f"v_lshrrev_b32 v{t}, 5, v{LANE}")
    a(f"v_lshlrev_b32 v{t}, 4, v{t}")
    a("s_lshl_b32 s31, s30, 7")
    a(f"v_add_u32 v{t}, s31, v{t}")
    a(f"v_add_u32 v{t}, {L_CS}, v{t}")
    for g in range(4):
        a(f"ds_read_b128 {v(dst+4*g,4)}, v{t} offset:{p*256+g*32}")

def norm_T(a, ac, cs, nm, rs):
    for r in range(8):
        a(f"v_pk_fma_f32 {v(ac+2*r,2)}, {v(cs+2*r,2)}, {v(nm,2)}, {v(ac+2*r,2)} op_sel_hi:[1,0,1]")
    for r in range(8):
        a(f"v_pk_mul_f32 {v(ac+2*r,2)}, {v(ac+2*r,2)}, {v(rs,2)} op_sel_hi:[1,0]")

def pack(a, ac, dst):
    for r in range(8):
        a(f"v_cvt_pk_bf16_f32 v{dst+r}, v{ac+2*r}, v{ac+2*r+1}")

def load_stats_F(a, mi, dst_nm, dst_rs):
    t = VT + 3
    a(f"v_lshrrev_b32 v{t}, 5, v{LANE}")
    a(f"v_lshlrev_b32 v{t}, 4, v{t}")
    a("s_lshl_b32 s31, s29, 8")
    a(f"v_add_u32 v{t}, s31, v{t}")
    a(f"v_add_u32 v{t}, {L_NM}, v{t}")
    for g in range(4):
        a(f"ds_read_b128 {v(dst_nm+4*g,4)}, v{t} offset:{mi*128+g*32}")
        a(f"ds_read_b128 {v(dst_rs+4*g,4)}, v{t} offset:{512+mi*128+g*32}")

def load_cs_F(a, dst):
    t = VT + 4
    a(f"v_and_b32 v{t}, 31, v{LANE}")
    a(f"v_lshlrev_b32 v{t}, 2, v{t}")
    a("s_lshl_b32 s31, s30, 7")
    a(f"v_add_u32 v{t}, s31, v{t}")
    a(f"v_add_u32 v{t}, {L_CS}, v{t}")
    a(f"ds_read_b32 v{dst}, v{t} offset:512")

def norm_F(a, ac, cs, nm, rs):
    for r in range(8):
        a(f"v_pk_fma_f32 {v(ac+2*r,2)}, {v(nm+2*r,2)}, {v(cs,2)}, {v(ac+2*r,2)} op_sel_hi:[1,0,1]")
    for r in range(8):
        a(f"v_pk_mul_f32 {v(ac+2*r,2)}, {v(ac+2*r,2)}, {v(rs+2*r,2)}")

def epi_B(a, name):
    NM, RS = 150, 154
    RQ = 158
    CSQ, CSK = 164, 180
    CSV = 162
    FNM, FRS = 196, 212
    PK = 228
    load_stats_T(a, NM, RS)
    load_cs_T(a, 0, CSQ)
    load_cs_T(a, 1, CSK)
    load_cs_F(a, CSV)
    load_stats_F(a, 0, FNM, FRS)
    a("s_lshl_b32 s33, s25, 1")
    a("s_add_u32 s33, s33, s30")
    a("s_lshl_b32 s34, s24, 2")
    a("s_lshl_b32 s35, s29, 1")
    a("s_add_u32 s34, s34, s35")
    a("s_lshl_b32 s35, s33, 6")
    a("s_add_u32 s35, s35, s34")
    a("s_lshl_b32 s36, s35, 11")
    a(f"s_add_u32 s36, s36, {hex(WS_QF)}")
    a("s_lshl_b32 s37, s35, 12")
    a(f"s_add_u32 s37, s37, {hex(WS_KVF)}")
    a(f"v_lshlrev_b32 v{VT+5}, 4, v{LANE}")
    VO = VT + 5
    a("s_waitcnt lgkmcnt(0)")
    c = (32 ** -0.5) * LOG2E
    for mi in range(2):
        a(f"v_mul_f32 v{RQ+2*mi}, {f32(c)}, v{RS+2*mi}")
    for mi in range(2):
        norm_T(a, acc(0, mi), CSQ, NM + 2*mi, RQ + 2*mi)
        pk = PK + 8 * (mi % 2)
        pack(a, acc(0, mi), pk)
        a(f"buffer_store_dwordx4 {v(pk,4)}, v{VO}, s[8:11], s36 offen offset:{mi*2048}")
        a(f"buffer_store_dwordx4 {v(pk+4,4)}, v{VO}, s[8:11], s36 offen offset:{mi*2048+1024}")
    for mi in range(2):
        norm_T(a, acc(1, mi), CSK, NM + 2*mi, RS + 2*mi)
        pk = PK + 8 * (mi % 2)
        pack(a, acc(1, mi), pk)
        a(f"s_add_u32 s38, s37, {mi*4096}")
        a(f"buffer_store_dwordx4 {v(pk,4)}, v{VO}, s[8:11], s38 offen")
        a(f"buffer_store_dwordx4 {v(pk+4,4)}, v{VO}, s[8:11], s38 offen offset:1024")
    for mi in range(2):
        if mi == 1:
            load_stats_F(a, 1, FNM, FRS)
            a("s_waitcnt lgkmcnt(0)")
        norm_F(a, acc(2, mi), CSV, FNM, FRS)
        pk = PK + 8 * (mi % 2)
        pack(a, acc(2, mi), pk)
        a(f"s_add_u32 s38, s37, {mi*4096}")
        a(f"buffer_store_dwordx4 {v(pk,4)}, v{VO}, s[8:11], s38 offen offset:2048")
        a(f"buffer_store_dwordx4 {v(pk+4,4)}, v{VO}, s[8:11], s38 offen offset:3072")
    a("s_waitcnt vmcnt(0)")
```

```python
from k1 import *
from feat import softmax_pm, wphi_addr, wphi_reads, M32

def epi_A(a, name):
    NM, RS = 150, 154
    CSV = 162
    CSQ, CSK = 164, 180
    FNM, FRS = 196, 212
    PK = 228
    load_stats_T(a, NM, RS)
    load_cs_T(a, 0, CSQ)
    load_cs_T(a, 1, CSK)
    load_cs_F(a, CSV)
    load_stats_F(a, 0, FNM, FRS)
    a("s_lshl_b32 s33, s25, 1")
    a("s_add_u32 s33, s33, s30")
    a("s_lshl_b32 s34, s24, 2")
    a("s_lshl_b32 s35, s29, 1")
    a("s_add_u32 s34, s34, s35")
    a("s_lshl_b32 s35, s33, 6")
    a("s_add_u32 s35, s35, s34")
    a("s_lshl_b32 s36, s35, 11")
    a(f"s_add_u32 s36, s36, {hex(WS_QF)}")
    VO = 161
    a(f"v_lshlrev_b32 v{VO}, 4, v{LANE}")
    a(f"s_mov_b32 s50, {f32(LOG2E)}")
    a("s_waitcnt lgkmcnt(0)")
    for mi in range(2):
        norm_T(a, acc(0, mi), CSQ, NM + 2*mi, RS + 2*mi)
        pk = PK + 8 * mi
        pack(a, acc(0, mi), pk)
        a(f"buffer_store_dwordx4 {v(pk,4)}, v{VO}, s[8:11], s36 offen offset:{mi*2048}")
        a(f"buffer_store_dwordx4 {v(pk+4,4)}, v{VO}, s[8:11], s36 offen offset:{mi*2048+1024}")
    VF = 228
    norm_F(a, acc(2, 0), CSV, FNM, FRS)
    load_stats_F(a, 1, FNM, FRS)
    pack(a, acc(2, 0), VF)
    a("s_waitcnt lgkmcnt(0)")
    norm_F(a, acc(2, 1), CSV, FNM, FRS)
    pack(a, acc(2, 1), VF + 8)
    KT = 196
    for mi in range(2):
        norm_T(a, acc(1, mi), CSK, NM + 2*mi, RS + 2*mi)
        pack(a, acc(1, mi), KT + 8*mi)
    WPH, I0, ONES = 212, 220, 244
    t = VT + 1
    a("s_lshl_b32 s31, s30, 11")
    a(f"s_add_u32 s31, s31, {L_WPHI}")
    wphi_addr(a, t, LANE, "s31", t + 1)
    wphi_reads(a, WPH, t)
    n4, hh, jj, val = t + 1, t + 2, t + 3, t + 4
    a(f"v_bfe_u32 v{n4}, v{LANE}, 2, 1")
    a(f"v_lshrrev_b32 v{hh}, 5, v{LANE}")
    a(f"v_cmp_eq_u32 vcc, v{n4}, v{hh}")
    a(f"v_bfe_u32 v{jj}, v{LANE}, 3, 1")
    a(f"v_lshlrev_b32 v{jj}, 2, v{jj}")
    a(f"v_and_b32 v{n4}, 3, v{LANE}")
    a(f"v_add_u32 v{jj}, v{jj}, v{n4}")
    a(f"v_and_b32 v{n4}, 1, v{jj}")
    a(f"v_lshlrev_b32 v{n4}, 4, v{n4}")
    a(f"v_mov_b32 v{val}, 0x3f80")
    a(f"v_lshlrev_b32 v{val}, v{n4}, v{val}")
    a(f"v_cndmask_b32 v{val}, 0, v{val}, vcc")
    a(f"v_lshrrev_b32 v{jj}, 1, v{jj}")
    a(f"v_bfe_u32 v{hh}, v{LANE}, 4, 1")
    a(f"v_lshl_add_u32 v{jj}, v{hh}, 2, v{jj}")
    for k in range(8):
        a(f"v_cmp_eq_u32 vcc, {k}, v{jj}")
        a("s_nop 1")
        a(f"v_cndmask_b32 v{I0+k}, 0, v{val}, vcc")
    for k in range(4): a(f"v_mov_b32 v{ONES+k}, {hex(ONES_BF16)}")
    KVA_, ZA = 0, 32
    PD, EN, PT = 64, 80, 164
    TD = [96, 112]; PF = [128, 248]
    T = 142
    a("s_waitcnt lgkmcnt(0)")
    for mi in range(2):
        a(f"{M32} {v(PD,16)}, {v(WPH,4)}, {v(KT+8*mi,4)}, 0")
        a(f"{M32} {v(PD,16)}, {v(WPH+4,4)}, {v(KT+8*mi+4,4)}, {v(PD,16)}")
        a("s_nop 11")
        softmax_pm(a, PD, EN, PT, T, 50)
        a("s_nop 1")
        for fb in range(2):
            a(f"{M32} {v(TD[fb],16)}, {v(PT+8*fb,4)}, {v(I0,4)}, 0")
            a(f"{M32} {v(TD[fb],16)}, {v(PT+8*fb+4,4)}, {v(I0+4,4)}, {v(TD[fb],16)}")
        a("s_nop 10")
        pack(a, TD[0], PF[0])
        pack(a, TD[1], PF[1])
        a("s_nop 1")
        for fb in range(2):
            for tt in range(2):
                c = "0" if (mi == 0 and tt == 0) else v(KVA_+16*fb,16)
                a(f"{M32} {v(KVA_+16*fb,16)}, {v(PF[fb]+4*tt,4)}, {v(VF+8*mi+4*tt,4)}, {c}")
        for fb in range(2):
            for tt in range(2):
                c = "0" if (mi == 0 and tt == 0) else v(ZA+16*fb,16)
                a(f"{M32} {v(ZA+16*fb,16)}, {v(PF[fb]+4*tt,4)}, {v(ONES,4)}, {c}")
    a("s_nop 15")
    a("s_lshl_b32 s31, s30, 14")
    a(f"v_add_u32 v{t}, s31, v{VO}")
    a("s_cmp_eq_u32 s29, 0")
    a(f"s_cbranch_scc1 {name}_red0")
    for q in range(16):
        a(f"ds_write_b128 v{t}, {v(4*q,4)} offset:{q*1024}")
    a("s_waitcnt lgkmcnt(0)")
    a("s_barrier")
    a(f"s_branch {name}_end")
    a(f"{name}_red0:")
    a("s_barrier")
    for q in range(16):
        a(f"ds_read_b128 {v(64+4*q,4)}, v{t} offset:{q*1024}")
    a("s_waitcnt lgkmcnt(0)")
    for r in range(32):
        a(f"v_pk_add_f32 {v(2*r,2)}, {v(2*r,2)}, {v(64+2*r,2)}")
    for r in range(16):
        a(f"v_cvt_pk_bf16_f32 v{164+r}, v{2*r}, v{2*r+1}")
    a("s_lshl_b32 s35, s33, 4")
    a("s_add_u32 s35, s35, s24")
    a("s_lshl_b32 s36, s35, 12")
    a(f"s_add_u32 s36, s36, {hex(WS_KVP)}")
    for u in range(4):
        a(f"buffer_store_dwordx4 {v(164+4*u,4)}, v{VO}, s[8:11], s36 offen offset:{u*1024}")
    a("s_lshl_b32 s36, s35, 8")
    a(f"s_add_u32 s36, s36, {hex(WS_ZP)}")
    a(f"v_lshrrev_b32 v{t}, 5, v{LANE}")
    a(f"v_lshlrev_b32 v{t}, 6, v{t}")
    a("s_mov_b32 exec_lo, 1")
    a("s_mov_b32 exec_hi, 1")
    for fb in range(2):
        for q in range(4):
            a(f"buffer_store_dwordx4 {v(ZA+16*fb+4*q,4)}, v{t}, s[8:11], s36 offen offset:{fb*128+q*16}")
    a("s_mov_b64 exec, -1")
    a("s_waitcnt vmcnt(0)")
```

```python
from common import *
from feat import *

L_KV = 0
L_Z = 4096
L_WP = 4352
K2A_LDS = L_WP + 2048

def gen_k2a(name="lin_kernel"):
    a = Asm()
    kstart(a, name, 256)
    a(f"s_load_dwordx2 s[4:5], s[0:1], {KA_WS}")
    a(f"s_load_dwordx2 s[6:7], s[0:1], {KA_AWPHI}")
    LANE = 2
    a("v_lshrrev_b32 v1, 6, v0")
    a(f"v_and_b32 v{LANE}, 63, v0")
    a("s_and_b32 s22, s2, 7")
    a("s_lshr_b32 s23, s2, 3")
    a("v_readfirstlane_b32 s28, v1")
    a("s_and_b32 s24, s23, 3")
    a("s_lshl_b32 s25, s22, 2")
    a("s_add_u32 s24, s24, s25")
    a("s_lshr_b32 s25, s23, 2")
    VL = 3
    a(f"v_lshlrev_b32 v{VL}, 4, v{LANE}")
    a("v_lshlrev_b32 v4, 3, v0")
    a("s_waitcnt lgkmcnt(0)")
    srd(a, 8, 4, WS_SIZE)
    srd(a, 12, 6, 32*32*32*2)
    a("s_lshl_b32 s30, s24, 16")
    a(f"s_add_u32 s30, s30, {hex(WS_KVP)}")
    for i in range(16):
        a(f"buffer_load_dwordx2 {v(32+2*i,2)}, v4, s[8:11], s30 offen")
        if i < 15: a("s_add_u32 s30, s30, 4096")
    Q = 8
    a("s_lshl_b32 s33, s25, 3")
    a("s_add_u32 s33, s33, s28")
    a("s_lshl_b32 s34, s24, 6")
    a("s_add_u32 s34, s34, s33")
    a("s_lshl_b32 s34, s34, 11")
    a(f"s_add_u32 s34, s34, {hex(WS_QF)}")
    a(f"buffer_load_dwordx4 {v(Q,4)}, v{VL}, s[8:11], s34 offen")
    a(f"buffer_load_dwordx4 {v(Q+4,4)}, v{VL}, s[8:11], s34 offen offset:1024")
    a("s_cmp_eq_u32 s28, 0")
    a(f"s_cbranch_scc0 {name}_nz")
    a("s_lshl_b32 s30, s24, 12")
    a(f"s_add_u32 s30, s30, {hex(WS_ZP)}")
    a(f"v_lshlrev_b32 v5, 2, v{LANE}")
    for i in range(16):
        a(f"buffer_load_dword v{64+i}, v5, s[8:11], s30 offen offset:{i*256}")
    a("s_waitcnt vmcnt(0)")
    for i in range(1, 16): a(f"v_add_f32 v64, v64, v{64+i}")
    a("v_cvt_pk_bf16_f32 v64, v64, v64")
    a(f"v_lshrrev_b32 v5, 5, v{LANE}")
    a(f"v_bfe_u32 v6, v{LANE}, 3, 1")
    a("v_lshl_add_u32 v5, v5, 1, v6")
    a(f"v_bfe_u32 v6, v{LANE}, 4, 1")
    a("v_lshl_add_u32 v5, v5, 1, v6")
    a(f"v_and_b32 v6, 7, v{LANE}")
    a("v_lshl_add_u32 v5, v5, 3, v6")
    a("v_lshlrev_b32 v5, 1, v5")
    a(f"ds_write_b16 v5, v64 offset:{L_Z}")
    a(f"s_branch {name}_z1")
    a(f"{name}_nz:")
    a("s_cmp_gt_u32 s28, 2")
    a(f"s_cbranch_scc1 {name}_z1")
    a("s_sub_u32 s30, s28, 1")
    a("s_lshl_b32 s30, s30, 10")
    a("s_lshl_b32 s31, s24, 11")
    a("s_add_u32 s31, s31, s30")
    a(f"s_add_u32 m0, s30, {L_WP}")
    a("s_nop 0")
    a(f"buffer_load_dwordx4 v{VL}, s[12:15], s31 offen lds")
    a(f"{name}_z1:")
    a("s_waitcnt vmcnt(0)")
    a("v_lshlrev_b32 v16, 16, v32")
    a("v_and_b32 v17, 0xffff0000, v32")
    a("v_lshlrev_b32 v18, 16, v33")
    a("v_and_b32 v19, 0xffff0000, v33")
    for i in range(1, 16):
        a(f"v_lshlrev_b32 v20, 16, v{32+2*i}")
        a(f"v_and_b32 v21, 0xffff0000, v{32+2*i}")
        a(f"v_lshlrev_b32 v22, 16, v{33+2*i}")
        a(f"v_and_b32 v23, 0xffff0000, v{33+2*i}")
        a("v_pk_add_f32 v[16:17], v[16:17], v[20:21]")
        a("v_pk_add_f32 v[18:19], v[18:19], v[22:23]")
    a("v_cvt_pk_bf16_f32 v16, v16, v17")
    a("v_cvt_pk_bf16_f32 v17, v18, v19")
    a(f"ds_write_b64 v4, v[16:17] offset:{L_KV}")
    a("s_waitcnt lgkmcnt(0)")
    a("s_barrier")
    KVF, ZF, WPH = 32, 48, 64
    for u in range(4):
        a(f"ds_read_b128 {v(KVF+4*u,4)}, v{VL} offset:{L_KV+u*1024}")
    a(f"v_lshrrev_b32 v5, 5, v{LANE}")
    a("v_lshlrev_b32 v5, 4, v5")
    for u in range(4):
        a(f"ds_read_b128 {v(ZF+4*u,4)}, v5 offset:{L_Z+u*32}")
    a(f"s_mov_b32 s31, {L_WP}")
    wphi_addr(a, 6, LANE, "s31", 7)
    wphi_reads(a, WPH, 6)
    a(f"s_mov_b32 s50, {f32(LOG2E)}")
    PD, EN, PT, T = 80, 96, 112, 20
    NUM, DEN = 128, 144
    a("s_waitcnt lgkmcnt(0)")
    a(f"{M32} {v(PD,16)}, {v(WPH,4)}, {v(Q,4)}, 0")
    a(f"{M32} {v(PD,16)}, {v(WPH+4,4)}, {v(Q+4,4)}, {v(PD,16)}")
    a("s_nop 11")
    softmax_pm(a, PD, EN, PT, T, 50)
    a("s_nop 1")
    for u in range(4):
        c = "0" if u == 0 else v(DEN,16)
        a(f"{M32} {v(DEN,16)}, {v(ZF+4*u,4)}, {v(PT+4*u,4)}, {c}")
    for u in range(4):
        c = "0" if u == 0 else v(NUM,16)
        a(f"{M32} {v(NUM,16)}, {v(KVF+4*u,4)}, {v(PT+4*u,4)}, {c}")
    a("s_nop 7")
    a(f"v_add_f32 v{T}, {f32(1e-6)}, v{DEN}")
    a(f"v_rcp_f32 v{T}, v{T}")
    a("s_nop 3")
    for r in range(8): a(f"v_pk_mul_f32 {v(NUM+2*r,2)}, {v(NUM+2*r,2)}, {v(T,2)} op_sel_hi:[1,0]")
    for r in range(8): a(f"v_cvt_pk_bf16_f32 v{PT+r}, v{NUM+2*r}, v{NUM+2*r+1}")
    a("s_lshl_b32 s35, s33, 16")
    a("s_lshl_b32 s36, s24, 11")
    a("s_add_u32 s35, s35, s36")
    a(f"s_add_u32 s35, s35, {hex(WS_OF)}")
    a(f"buffer_store_dwordx4 {v(PT,4)}, v{VL}, s[8:11], s35 offen")
    a(f"buffer_store_dwordx4 {v(PT+4,4)}, v{VL}, s[8:11], s35 offen offset:1024")
    a("s_waitcnt vmcnt(0)")
    kend(a, name)
    return a.text(), kernel_descriptor(name, 160), dict(name=name, grid=256, block=512, lds=K2A_LDS)
```

```python
from common import *
import struct
def f32(x): return hex(struct.unpack("<I", struct.pack("<f", x))[0])

CH = 16384
NCH = 4
K2B_LDS = CH * NCH

Q = 0
NEGM = 8
SA, SB = 24, 40
P = 56
O = 64
L = 80
SEL = 84
KVA, KVB = 88, 104
VA = 120
LANE = 122
T0 = 123

M32 = "v_mfma_f32_32x32x16_bf16"
M16 = "v_mfma_f32_16x16x32_bf16"

def gen_k2b(name="attn_kernel", nobar=False):
    a = Asm()
    kstart(a, name, 256)
    a(f"s_load_dwordx2 s[4:5], s[0:1], {KA_WS}")
    a("v_lshrrev_b32 v1, 6, v0")
    a(f"v_and_b32 v{LANE}, 63, v0")
    a("s_and_b32 s22, s2, 7")
    a("s_lshr_b32 s23, s2, 3")
    a("v_readfirstlane_b32 s28, v1")
    a("s_and_b32 s24, s23, 3")
    a("s_lshl_b32 s25, s22, 2")
    a("s_add_u32 s24, s24, s25")
    a("s_lshr_b32 s25, s23, 2")
    a(f"v_lshlrev_b32 v{VA}, 4, v{LANE}")
    a("s_waitcnt lgkmcnt(0)")
    srd(a, 8, 4, WS_SIZE)
    a("s_lshl_b32 s30, s24, 18")
    a(f"s_add_u32 s30, s30, {hex(WS_KVF)}")
    a("s_lshl_b32 s32, s28, 11")
    a("s_add_u32 s31, s30, s32")
    def dma(buf):
        a(f"s_add_u32 m0, s32, {buf*CH}")
        a("s_nop 0")
        a(f"buffer_load_dwordx4 v{VA}, s[8:11], s31 offen lds")
        a(f"buffer_load_dwordx4 v{VA}, s[8:11], s31 offen offset:1024 lds")
        a(f"s_add_u32 s31, s31, {CH}")
    def rd(kv, tile_off):
        for i in range(4):
            a(f"ds_read_b128 {v(kv+4*i,4)}, v{VA} offset:{tile_off+i*1024}")
    a("s_lshl_b32 s33, s25, 3")
    a("s_add_u32 s33, s33, s28")
    a("s_lshl_b32 s34, s24, 6")
    a("s_add_u32 s34, s34, s33")
    a("s_lshl_b32 s34, s34, 11")
    a(f"s_add_u32 s34, s34, {hex(WS_QF)}")
    dma(0)
    a(f"buffer_load_dwordx4 {v(Q,4)}, v{VA}, s[8:11], s34 offen")
    a(f"buffer_load_dwordx4 {v(Q+4,4)}, v{VA}, s[8:11], s34 offen offset:1024")
    dma(1); dma(2)
    a(f"v_and_b32 v{T0}, 3, v{LANE}")
    a(f"v_bfe_u32 v{T0+1}, v{LANE}, 2, 1")
    a(f"v_bfe_u32 v{T0+2}, v{LANE}, 4, 1")
    a(f"v_xor_b32 v{T0+1}, v{T0+1}, v{T0+2}")
    a(f"v_or_b32 v{T0}, v{T0}, v{T0+1}")
    a(f"v_cmp_eq_u32 vcc, 0, v{T0}")
    a(f"v_mov_b32 v{T0+1}, {hex(ONES_BF16)}")
    a(f"v_mov_b32 v{T0+2}, 0")
    a(f"v_cndmask_b32 v{SEL}, v{T0+2}, v{T0+1}, vcc")
    for i in range(1, 4): a(f"v_mov_b32 v{SEL+i}, v{SEL}")
    for i in range(16): a(f"v_mov_b32 v{O+i}, 0")
    for i in range(4): a(f"v_mov_b32 v{L+i}, 0")
    for i in range(8): a(f"v_mov_b32 v{P+i}, 0")
    a("s_waitcnt vmcnt(4)")
    a("s_barrier")
    rd(KVA, 0)
    a("s_waitcnt lgkmcnt(0)")
    a(f"{M32} {v(SA,16)}, {v(KVA,4)}, {v(Q,4)}, 0")
    a(f"{M32} {v(SA,16)}, {v(KVA+4,4)}, {v(Q+4,4)}, {v(SA,16)}")
    rd(KVB, 4096)
    a("s_nop 7")
    a(f"v_max3_f32 v{T0}, v{SA}, v{SA+1}, v{SA+2}")
    for i in range(3, 15, 2):
        a(f"v_max3_f32 v{T0}, v{T0}, v{SA+i}, v{SA+i+1}")
    a(f"v_max_f32 v{T0}, v{T0}, v{SA+15}")
    a(f"v_mov_b32 v{T0+1}, v{T0}")
    a("s_nop 1")
    a(f"v_permlane32_swap_b32 v{T0}, v{T0+1}")
    a("s_nop 1")
    a(f"v_max_f32 v{T0}, v{T0}, v{T0+1}")
    a(f"v_sub_f32 v{NEGM}, 0, v{T0}")
    for i in range(1, 16): a(f"v_mov_b32 v{NEGM+i}, v{NEGM}")
    for i in range(16): a(f"v_add_f32 v{SA+i}, v{SA+i}, v{NEGM}")

    def rounds(last):
        for r in range(16):
            cur, nxt = (SA, SB) if r % 2 == 0 else (SB, SA)
            kvc, kvn = (KVA, KVB) if r % 2 == 0 else (KVB, KVA)
            tK = (r + 2) % 16; tV = (r + 1) % 16
            doK = not (last and r >= 14)
            doQK = not (last and r == 15)
            e = lambda i: a(f"v_exp_f32 v{cur+i}, v{cur+i}")
            c = lambda i: a(f"v_cvt_pk_bf16_f32 v{P+i}, v{cur+2*i}, v{cur+2*i+1}")
            a("s_waitcnt lgkmcnt(0)")
            if (r + 2) % 4 == 0 and not (last and r == 14):
                b = (r + 2) // 4
                if last and b == 3:
                    a("s_waitcnt vmcnt(0)")
                else:
                    a("s_waitcnt vmcnt(2)")
                if not nobar: a("s_barrier")
                if not (last and b >= 2):
                    dma((b + 2) % 4)
            if doQK: a(f"{M32} {v(nxt,16)}, {v(kvn,4)}, {v(Q,4)}, {v(NEGM,16)}")
            if doK:
                a(f"ds_read_b128 {v(kvc,4)}, v{VA} offset:{tK*4096}")
                a(f"ds_read_b128 {v(kvc+4,4)}, v{VA} offset:{tK*4096+1024}")
            for i in range(0, 4): e(i)
            if doQK: a(f"{M32} {v(nxt,16)}, {v(kvn+4,4)}, {v(Q+4,4)}, {v(nxt,16)}")
            for i in range(4, 8): e(i)
            a(f"{M32} {v(O,16)}, {v(kvn+12,4)}, {v(P+4,4)}, {v(O,16)}")
            for i in range(0, 4): c(i)
            e(8); e(9)
            a(f"{M16} {v(L,4)}, {v(SEL,4)}, {v(P+4,4)}, {v(L,4)}")
            if doQK:
                a(f"ds_read_b128 {v(kvn+8,4)}, v{VA} offset:{tV*4096+2048}")
                a(f"ds_read_b128 {v(kvn+12,4)}, v{VA} offset:{tV*4096+3072}")
            e(10); e(11)
            a(f"{M32} {v(O,16)}, {v(kvc+8,4)}, {v(P,4)}, {v(O,16)}")
            for i in range(12, 16): e(i)
            a(f"{M16} {v(L,4)}, {v(SEL,4)}, {v(P,4)}, {v(L,4)}")
            for i in range(4, 8): c(i)
    a("s_mov_b32 s40, 3")
    a(f"{name}_loop:")
    rounds(False)
    a("s_sub_u32 s40, s40, 1")
    a("s_cmp_lg_u32 s40, 0")
    a(f"s_cbranch_scc1 {name}_loop")
    rounds(True)
    a("s_nop 1")
    a(f"{M32} {v(O,16)}, {v(KVB+12,4)}, {v(P+4,4)}, {v(O,16)}")
    a(f"{M16} {v(L,4)}, {v(SEL,4)}, {v(P+4,4)}, {v(L,4)}")
    a("s_nop 15")
    a(f"v_mov_b32 v{T0}, 0")
    for i in range(16): a(f"v_fma_f32 v{T0}, v{O+i}, 0, v{T0}")
    a(f"v_cmp_eq_f32 vcc, 0, v{T0}")
    a(f"v_mov_b32 v{T0+1}, {f32(2.0**100)}")
    a(f"v_cmp_lt_f32 s[42:43], v{L}, v{T0+1}")
    a("s_nop 1")
    a("s_and_b64 vcc, vcc, s[42:43]")
    a("s_cmp_eq_u64 vcc, exec")
    a(f"s_cbranch_scc1 {name}_fin")
    for i in range(16): a(f"v_mov_b32 v{O+i}, 0")
    for i in range(4): a(f"v_mov_b32 v{L+i}, 0")
    MV = T0 + 2
    a(f"v_mov_b32 v{MV}, {f32(-3.0e38)}")
    a("s_mov_b32 s41, s30")
    a("s_mov_b32 s40, 64")
    a(f"{name}_fb:")
    for i in range(4):
        a(f"buffer_load_dwordx4 {v(KVA+4*i,4)}, v{VA}, s[8:11], s41 offen offset:{i*1024}")
    a("s_waitcnt vmcnt(0)")
    a(f"{M32} {v(SA,16)}, {v(KVA,4)}, {v(Q,4)}, 0")
    a(f"{M32} {v(SA,16)}, {v(KVA+4,4)}, {v(Q+4,4)}, {v(SA,16)}")
    a("s_nop 15")
    a(f"v_max3_f32 v{T0}, v{SA}, v{SA+1}, v{SA+2}")
    for i in range(3, 15, 2):
        a(f"v_max3_f32 v{T0}, v{T0}, v{SA+i}, v{SA+i+1}")
    a(f"v_max_f32 v{T0}, v{T0}, v{SA+15}")
    a(f"v_mov_b32 v{T0+1}, v{T0}")
    a("s_nop 1")
    a(f"v_permlane32_swap_b32 v{T0}, v{T0+1}")
    a("s_nop 1")
    a(f"v_max3_f32 v{T0}, v{T0}, v{T0+1}, v{MV}")
    a(f"v_sub_f32 v{T0+1}, v{MV}, v{T0}")
    a(f"v_exp_f32 v{T0+1}, v{T0+1}")
    a(f"v_mov_b32 v{MV}, v{T0}")
    for i in range(16): a(f"v_sub_f32 v{SA+i}, v{SA+i}, v{T0}")
    for i in range(16): a(f"v_exp_f32 v{SA+i}, v{SA+i}")
    for i in range(16): a(f"v_mul_f32 v{O+i}, v{O+i}, v{T0+1}")
    for i in range(4): a(f"v_mul_f32 v{L+i}, v{L+i}, v{T0+1}")
    for i in range(8): a(f"v_cvt_pk_bf16_f32 v{P+i}, v{SA+2*i}, v{SA+2*i+1}")
    a("s_nop 1")
    a(f"{M32} {v(O,16)}, {v(KVA+8,4)}, {v(P,4)}, {v(O,16)}")
    a(f"{M16} {v(L,4)}, {v(SEL,4)}, {v(P,4)}, {v(L,4)}")
    a(f"{M32} {v(O,16)}, {v(KVA+12,4)}, {v(P+4,4)}, {v(O,16)}")
    a(f"{M16} {v(L,4)}, {v(SEL,4)}, {v(P+4,4)}, {v(L,4)}")
    a("s_nop 15")
    a("s_add_u32 s41, s41, 4096")
    a("s_sub_u32 s40, s40, 1")
    a("s_cmp_lg_u32 s40, 0")
    a(f"s_cbranch_scc1 {name}_fb")
    a(f"{name}_fin:")
    a(f"v_rcp_f32 v{T0}, v{L}")
    a("s_nop 0")
    for i in range(16): a(f"v_mul_f32 v{O+i}, v{O+i}, v{T0}")
    for i in range(8): a(f"v_cvt_pk_bf16_f32 v{P+i}, v{O+2*i}, v{O+2*i+1}")
    a("s_lshl_b32 s35, s33, 16")
    a("s_lshl_b32 s36, s24, 11")
    a("s_add_u32 s35, s35, s36")
    a(f"s_add_u32 s35, s35, {hex(WS_OF)}")
    a(f"buffer_store_dwordx4 {v(P,4)}, v{VA}, s[8:11], s35 offen")
    a(f"buffer_store_dwordx4 {v(P+4,4)}, v{VA}, s[8:11], s35 offen offset:1024")
    a("s_waitcnt vmcnt(0)")
    kend(a, name)
    return a.text(), kernel_descriptor(name, 128), dict(name=name, grid=256, block=512, lds=K2B_LDS)
```

```python
from common import *

STAGE = 24576
NST = 4
K3_LDS = NST * STAGE

ACC = 0
FA = 32
FB = 44
RES = 56
VX, VW0_, VW1_, VXb, VWb0, VWb1 = 72, 73, 74, 75, 76, 77
LANE = 78
VT = 80

M32 = "v_mfma_f32_32x32x16_bf16"

def emit_reads(a, fs, ks, which):
    def rd(n):
        if n == 0: return f"ds_read_b128 {v(fs,4)}, v{VX} offset:{ks*1024}"
        cb, t = {1:(0,0),2:(0,1),3:(1,0),4:(1,1)}[n]
        return f"ds_read_b64_tr_b16 {v(fs+4+4*cb+2*t,2)}, v{VW0_+cb} offset:{16384+ks*2048+t*1024}"
    for n in which: a(rd(n))

def emit_sub(a, cur, nxt, nks, barrier=False):
    x, w0, w1 = cur, cur+4, cur+8
    if barrier:
        a("s_waitcnt lgkmcnt(0)")
        a("s_barrier")
        a(f"s_add_u32 s40, s40, {STAGE}")
        a(f"s_cmp_eq_u32 s40, {NST*STAGE}")
        a("s_cselect_b32 s40, 0, s40")
        a(f"v_add_u32 v{VX}, s40, v{VXb}")
        a(f"v_add_u32 v{VW0_}, s40, v{VWb0}")
        a(f"v_add_u32 v{VW1_}, s40, v{VWb1}")
    else:
        a("s_waitcnt lgkmcnt(2)")
    a(f"{M32} {v(ACC,16)}, {v(w0,4)}, {v(x,4)}, {v(ACC,16)}")
    emit_reads(a, nxt, nks, [0, 1, 2])
    if not barrier: a("s_waitcnt lgkmcnt(3)")
    a(f"{M32} {v(ACC+16,16)}, {v(w1,4)}, {v(x,4)}, {v(ACC+16,16)}")
    emit_reads(a, nxt, nks, [3, 4])

def loader_issue(a):
    a("s_mov_b32 m0, s43")
    a("s_nop 0")
    for ks in range(4):
        a(f"buffer_load_dwordx4 v2, s[8:11], s41 offen offset:{ks*1024} lds")
    for q in range(2):
        a(f"s_add_u32 m0, s44, {q*1024}")
        a(f"s_add_u32 s45, s42, {q*8*2048}")
        a("buffer_load_dwordx4 v3, s[12:15], s45 offen lds")
    a("s_add_u32 s41, s41, 4096")
    a(f"s_add_u32 s42, s42, {64*2048}")
    a(f"s_add_u32 s46, s46, {STAGE}")
    a(f"s_cmp_eq_u32 s46, {NST*STAGE}")
    a("s_cselect_b32 s46, 0, s46")
    a("s_add_u32 s43, s46, s47")
    a("s_add_u32 s44, s46, s48")

def gen_k3(name, variant, final=False):
    kaW = KA_AWO if variant == 'A' else KA_BWO
    a = Asm()
    kstart(a, name, 256)
    a(f"s_load_dwordx2 s[4:5], s[0:1], {KA_WS}")
    a(f"s_load_dwordx2 s[6:7], s[0:1], {kaW}")
    if final: a(f"s_load_dwordx2 s[20:21], s[0:1], {KA_OUT}")
    a("v_lshrrev_b32 v1, 6, v0")
    a("v_and_b32 v4, 63, v0")
    a("s_and_b32 s22, s2, 7")
    a("s_lshr_b32 s23, s2, 3")
    a("v_readfirstlane_b32 s28, v1")
    a("s_and_b32 s24, s22, 3")
    a("s_lshl_b32 s24, s24, 2")
    a("s_and_b32 s25, s23, 3")
    a("s_add_u32 s24, s24, s25")
    a("s_lshr_b32 s25, s22, 2")
    a("s_lshl_b32 s25, s25, 3")
    a("s_lshr_b32 s26, s23, 2")
    a("s_add_u32 s25, s25, s26")
    a("s_waitcnt lgkmcnt(0)")
    srd(a, 8, 4, WS_SIZE)
    srd(a, 12, 6, D_ * D_ * 2)
    if final: srd(a, 16, 20, S_ * D_ * 2)
    a("s_cmp_lt_u32 s28, 4")
    a(f"s_cbranch_scc1 {name}_mma")
    a("s_sub_u32 s29, s28, 4")
    a("v_lshlrev_b32 v2, 4, v4")
    a("v_lshrrev_b32 v5, 3, v4")
    a("v_lshlrev_b32 v3, 11, v5")
    a("v_and_b32 v6, 7, v4")
    a("v_bfe_u32 v7, v4, 4, 1")
    a("v_lshlrev_b32 v7, 2, v7")
    a("v_xor_b32 v6, v6, v7")
    a("v_lshl_add_u32 v3, v6, 4, v3")
    a("s_lshl_b32 s41, s24, 2")
    a("s_add_u32 s41, s41, s29")
    a("s_lshl_b32 s41, s41, 16")
    a(f"s_add_u32 s41, s41, {hex(WS_OF)}")
    a(f"s_mul_i32 s42, s29, {16*2048}")
    a("s_lshl_b32 s30, s25, 7")
    a("s_add_u32 s42, s42, s30")
    a("s_lshl_b32 s47, s29, 12")
    a("s_lshl_b32 s48, s29, 11")
    a("s_add_u32 s48, s48, 16384")
    a("s_mov_b32 s46, 0")
    a("s_mov_b32 s43, s47")
    a("s_mov_b32 s44, s48")
    for i in range(NST): loader_issue(a)
    a(f"s_waitcnt vmcnt({6*(NST-1)})")
    a("s_barrier")
    a(f"s_mov_b32 s49, {16-NST}")
    a(f"{name}_lloop:")
    a(f"s_waitcnt vmcnt({6*(NST-2)})")
    a("s_barrier")
    loader_issue(a)
    a("s_sub_u32 s49, s49, 1")
    a("s_cmp_lg_u32 s49, 0")
    a(f"s_cbranch_scc1 {name}_lloop")
    for r in range(NST - 2, -1, -1):
        a(f"s_waitcnt vmcnt({6*max(r-0,0) if r < NST-1 else 0})" if False else f"s_waitcnt vmcnt({6*r})")
        a("s_barrier")
    a("s_barrier")
    a("s_endpgm")
    a(f"{name}_mma:")
    a(f"v_mov_b32 v{LANE}, v4")
    a("s_lshl_b32 s33, s24, 2")
    a("s_add_u32 s33, s33, s28")
    a("s_lshl_b32 s34, s33, 16")
    a("s_lshl_b32 s35, s25, 12")
    a("s_add_u32 s34, s34, s35")
    if WS_XF: a(f"s_add_u32 s34, s34, {hex(WS_XF)}")
    a(f"v_lshlrev_b32 v{VT}, 4, v4")
    for i in range(4):
        a(f"buffer_load_dwordx4 {v(RES+4*i,4)}, v{VT}, s[8:11], s34 offen offset:{i*1024}")
    a("s_lshl_b32 s31, s28, 12")
    a(f"v_add_u32 v{VXb}, s31, v{VT}")
    a("v_lshrrev_b32 v5, 5, v4")
    a("v_bfe_u32 v6, v4, 2, 2")
    a("v_lshl_add_u32 v5, v5, 2, v6")
    a("v_lshlrev_b32 v5, 7, v5")
    a("v_bfe_u32 v6, v4, 4, 1")
    a("v_bfe_u32 v7, v4, 1, 1")
    a("v_lshl_add_u32 v6, v6, 1, v7")
    a("v_bfe_u32 v7, v4, 3, 1")
    a("v_lshlrev_b32 v7, 2, v7")
    a("v_xor_b32 v6, v6, v7")
    a("v_lshl_add_u32 v5, v6, 4, v5")
    a("v_and_b32 v6, 1, v4")
    a(f"v_lshl_add_u32 v{VWb0}, v6, 3, v5")
    a(f"v_xor_b32 v{VWb1}, 64, v{VWb0}")
    a(f"v_mov_b32 v{VX}, v{VXb}")
    a(f"v_mov_b32 v{VW0_}, v{VWb0}")
    a(f"v_mov_b32 v{VW1_}, v{VWb1}")
    for i in range(32): a(f"v_mov_b32 v{ACC+i}, 0")
    a("s_mov_b32 s40, 0")
    a("s_mov_b32 s49, 16")
    a("s_barrier")
    emit_reads(a, FA, 0, range(5))
    a(f"{name}_mloop:")
    emit_sub(a, FA, FB, 1)
    emit_sub(a, FB, FA, 2)
    emit_sub(a, FA, FB, 3)
    emit_sub(a, FB, FA, 0, barrier=True)
    a("s_sub_u32 s49, s49, 1")
    a("s_cmp_lg_u32 s49, 0")
    a(f"s_cbranch_scc1 {name}_mloop")
    a("s_waitcnt vmcnt(0) lgkmcnt(0)")
    a(f"v_mov_b32 v{VT+1}, {hex(SEL_LO)}")
    a(f"v_mov_b32 v{VT+2}, {hex(SEL_HI)}")
    a(f"v_mov_b32 v{VT+3}, {hex(ONES_BF16)}")
    a("s_nop 7")
    for cb in range(2):
        for r in range(8):
            a(f"v_dot2c_f32_bf16 v{ACC+16*cb+2*r}, v{RES+8*cb+r}, v{VT+1}")
            a(f"v_dot2c_f32_bf16 v{ACC+16*cb+2*r+1}, v{RES+8*cb+r}, v{VT+2}")
    a("s_nop 2")
    PK = RES
    for cb in range(2):
        for r in range(8):
            a(f"v_cvt_pk_bf16_f32 v{PK+8*cb+r}, v{ACC+16*cb+2*r}, v{ACC+16*cb+2*r+1}")
    if not final:
        for i in range(4):
            a(f"buffer_store_dwordx4 {v(PK+4*i,4)}, v{VT}, s[8:11], s34 offen offset:{i*1024}")
        S1, S2, S3, S4 = VT+4, VT+5, VT+6, VT+7
        a(f"v_mov_b32 v{S1}, 0")
        a(f"v_mov_b32 v{S2}, 0")
        for r in range(16):
            a(f"v_dot2c_f32_bf16 v{S1}, v{PK+r}, v{VT+3}")
            a(f"v_dot2c_f32_bf16 v{S2}, v{PK+r}, v{PK+r}")
        a("s_nop 2")
        a(f"v_mov_b32 v{S3}, v{S1}")
        a(f"v_mov_b32 v{S4}, v{S2}")
        a("s_nop 1")
        a(f"v_permlane32_swap_b32 v{S1}, v{S3}")
        a(f"v_permlane32_swap_b32 v{S2}, v{S4}")
        a("s_nop 1")
        a(f"v_add_f32 v{S1}, v{S1}, v{S3}")
        a(f"v_add_f32 v{S2}, v{S2}, v{S4}")
        a("s_lshl_b32 s35, s25, 14")
        a("s_lshl_b32 s36, s33, 8")
        a("s_add_u32 s35, s35, s36")
        a(f"s_add_u32 s35, s35, {hex(WS_STATS)}")
        a(f"v_and_b32 v{VT+8}, 31, v{LANE}")
        a(f"v_lshlrev_b32 v{VT+8}, 3, v{VT+8}")
        a("s_mov_b64 exec, 0xffffffff")
        a(f"buffer_store_dwordx2 {v(S1,2)}, v{VT+8}, s[8:11], s35 offen")
        a("s_mov_b64 exec, -1")
    else:
        for i in range(4):
            a(f"v_permlane32_swap_b32 v{PK+4*i}, v{PK+4*i+2}")
            a(f"v_permlane32_swap_b32 v{PK+4*i+1}, v{PK+4*i+3}")
        a(f"v_and_b32 v{VT+8}, 31, v{LANE}")
        a(f"v_lshlrev_b32 v{VT+8}, 11, v{VT+8}")
        a(f"v_lshrrev_b32 v{VT+9}, 5, v{LANE}")
        a(f"v_lshl_add_u32 v{VT+8}, v{VT+9}, 4, v{VT+8}")
        a("s_lshl_b32 s35, s33, 16")
        a("s_lshl_b32 s36, s25, 7")
        a("s_add_u32 s35, s35, s36")
        for i in range(4):
            a(f"buffer_store_dwordx4 {v(PK+4*i,4)}, v{VT+8}, s[16:19], s35 offen offset:{i*32}")
    a("s_waitcnt vmcnt(0)")
    kend(a, name)
    return a.text(), kernel_descriptor(name, 96), dict(name=name, grid=256, block=512, lds=K3_LDS)
```

```python
import sys
from common import *
import k0, k1, k1a, k2a, k2b, k3

HEADER = """; Kernarg layout (80 bytes): A_x, A_wqkv, A_w_phi, A_wo, B_x, B_wqkv, B_wo, out, debug, ws
"""
def build(path, order=None, check=True):
    ks = {}
    ks['prep'] = k0.gen_k0("prep_kernel")
    ks['qkvA'] = k1.gen_k1("qkva_kernel", 'A', k1a.epi_A)
    ks['qkvB'] = k1.gen_k1("qkvb_kernel", 'B', k1.epi_B)
    ks['lin'] = k2a.gen_k2a("lin_kernel")
    ks['attn'] = k2b.gen_k2b("attn_kernel")
    ks['woA'] = k3.gen_k3("woa_kernel", 'A')
    ks['woB'] = k3.gen_k3("wob_kernel", 'B')
    ks['woBf'] = k3.gen_k3("wobf_kernel", 'B', final=True)
    if order is None:
        order = ['prep', 'qkvA', 'lin', 'woA', 'qkvB', 'attn', 'woB', 'qkvA', 'lin', 'woA', 'qkvB', 'attn', 'woBf']
    out = HEADER
    for k in order:
        m = ks[k][2]
        out += f"; @launch kernel={m['name']} grid=({m['grid']},1,1) block=({m['block']},1,1) lds={m['lds']}\n"
    out += '.amdgcn_target "amdgcn-amd-amdhsa--gfx950"\n.text\n'
    used = [k for k in ks if k in order]
    for k in used:
        if check:
            pr = check_hazards(ks[k][0])
            if pr:
                print(f"=== hazards in {k}: {len(pr)}")
                for p in pr[:40]: print(p)
        out += ks[k][0]
    out += '.section .rodata,"a"\n'
    for k in used: out += ks[k][1]
    open(path, "w").write(out)
    print("wrote", path, len(out), "bytes")

if __name__ == "__main__":
    build(sys.argv[1] if len(sys.argv) > 1 else "interleave_layers__linear_kernel_hedgehog__mha_block__prompt.s")
```

```python
from asmlib import *

KA_AX, KA_AWQKV, KA_AWPHI, KA_AWO, KA_BX, KA_BWQKV, KA_BWO, KA_OUT, KA_DBG, KA_WS = 0, 8, 16, 24, 32, 40, 48, 56, 64, 72

S_, D_, H_ = 2048, 1024, 32
WS_XF    = 0x0000000
WS_QF    = 0x0400000
WS_KVF   = 0x0800000
WS_OF    = 0x1000000
WS_STATS = 0x1400000
WS_CSP   = 0x1440000
WS_KVP   = 0x1500000
WS_ZP    = 0x1700000
WS_SIZE  = 0x10000000

def srd(a, dst, base, nbytes, off=0):
    if off:
        a(f"s_add_u32 s{dst}, s{base}, {hex(off)}")
        a(f"s_addc_u32 s{dst+1}, s{base+1}, 0")
        a(f"s_and_b32 s{dst+1}, s{dst+1}, 0xffff")
    else:
        a(f"s_mov_b32 s{dst}, s{base}")
        a(f"s_and_b32 s{dst+1}, s{base+1}, 0xffff")
    a(f"s_mov_b32 s{dst+2}, {hex(nbytes)}")
    a(f"s_mov_b32 s{dst+3}, 0x20000")

import os
STAMP = os.environ.get("STAMP", "0") == "1"

def kstart(a, name, nwg):
    a(f".globl {name}")
    a(".p2align 8")
    a(f".type {name},@function")
    a(f"{name}:")
    a(f"s_cmp_ge_u32 s2, {nwg}")
    a(f"s_cbranch_scc1 {name}_exit")
    if STAMP:
        a("s_memrealtime s[96:97]")
        a(f"s_load_dwordx2 s[92:93], s[0:1], {KA_WS}")
        a(f"s_load_dword s90, s[0:1], {KA_DBG}")
        a("v_lshrrev_b32 v255, 6, v0")
        a("s_waitcnt lgkmcnt(0)")
        a("s_and_b32 s93, s93, 0xffff")
        a("s_mov_b32 s94, 0x10000000")
        a("s_mov_b32 s95, 0x20000")
        a("s_lshr_b32 s90, s90, 9")
        a("s_and_b32 s90, s90, 31")
        a("s_lshl_b32 s90, s90, 15")
        a("s_lshl_b32 s91, s2, 6")
        a("s_add_u32 s90, s90, s91")
        a("v_readfirstlane_b32 s91, v255")
        a("s_nop 1")
        a("s_lshl_b32 s91, s91, 2")
        a("s_add_u32 s90, s90, s91")
        a("s_add_u32 s90, s90, 0x2000000")
        stamp(a, 0, use96=True)
        stamp(a, 6, cyc=True)

def stamp(a, slot, use96=False, vtmp=255, cyc=False):
    if not STAMP: return
    if not use96:
        a("s_memtime s[96:97]" if cyc else "s_memrealtime s[96:97]")
        a("s_waitcnt lgkmcnt(0)")
    a("s_mov_b64 s[98:99], exec")
    a("s_mov_b64 exec, 1")
    a(f"v_mov_b32 v{vtmp}, s96")
    a(f"s_add_u32 s91, s90, {slot * 0x100000}")
    a(f"v_mov_b32 v{vtmp-1}, 0")
    a(f"buffer_store_dword v{vtmp}, v{vtmp-1}, s[92:95], s91 offen")
    a("s_mov_b64 exec, s[98:99]")

def kend(a, name):
    a(f"{name}_end:")
    stamp(a, 1)
    stamp(a, 7, cyc=True)
    a(f"{name}_exit:")
    a("s_endpgm")

ONES_BF16 = 0x3F803F80
SEL_LO = 0x00003F80
SEL_HI = 0x3F800000
```

```python
from asmlib import *
import os, struct

KA_AX, KA_AWQKV, KA_AWPHI, KA_AWO, KA_BX, KA_BWQKV, KA_BWO, KA_OUT, KA_DBG, KA_WS = 0, 8, 16, 24, 32, 40, 48, 56, 64, 72
S_, D_, H_ = 2048, 1024, 32

WS_XF    = 0x0000000
WS_OF    = 0x1000000
WS_KVF   = 0x2000000
WS_KVP   = 0x3000000
WS_ZP    = 0x3400000
WS_STATS = 0x3500000
WS_CSP   = 0x3600000
WS_FLAGS = 0x3700000
WS_STAMP = 0x4000000
WS_SIZE  = 0x10000000
FL_KV, FL_O, FL_X = 0, 2048, 4096

def f32(x): return hex(struct.unpack("<I", struct.pack("<f", x))[0])
LOG2E = 1.4426950408889634
M32 = "v_mfma_f32_32x32x16_bf16"
M16 = "v_mfma_f32_16x16x32_bf16"
ONES_BF16 = 0x3F803F80
SEL_LO = 0x00003F80
SEL_HI = 0x3F800000

def srd(a, dst, base, nbytes):
    a(f"s_mov_b32 s{dst}, s{base}")
    a(f"s_and_b32 s{dst+1}, s{base+1}, 0xffff")
    a(f"s_mov_b32 s{dst+2}, {hex(nbytes)}")
    a(f"s_mov_b32 s{dst+3}, 0x20000")

STAMP = os.environ.get("STAMP", "0") == "1"

def kstart(a, name, nwg):
    a(f".globl {name}")
    a(".p2align 8")
    a(f".type {name},@function")
    a(f"{name}:")
    a(f"s_cmp_ge_u32 s2, {nwg}")
    a(f"s_cbranch_scc1 {name}_exit")

def kend(a, name):
    a(f"{name}_exit:")
    a("s_endpgm")
```

```python
from common import *

def gen_k0(name="prep_kernel"):
    a = Asm()
    kstart(a, name, 256)
    a("s_load_dwordx2 s[4:5], s[0:1], %d" % KA_AX)
    a("s_load_dwordx2 s[6:7], s[0:1], %d" % KA_WS)
    a("s_load_dwordx2 s[20:21], s[0:1], %d" % KA_AWQKV)
    a("s_load_dwordx2 s[22:23], s[0:1], %d" % KA_BWQKV)
    a("s_load_dwordx2 s[24:25], s[0:1], %d" % KA_AWO)
    a("s_load_dwordx2 s[26:27], s[0:1], %d" % KA_BWO)
    a("v_lshrrev_b32 v1, 6, v0")
    a("v_and_b32 v2, 63, v0")
    a("v_and_b32 v3, 31, v0")
    a("v_bfe_u32 v4, v0, 5, 1")
    a("v_readfirstlane_b32 s28, v1")
    a("s_waitcnt lgkmcnt(0)")
    srd(a, 8, 4, S_ * D_ * 2)
    srd(a, 16, 6, WS_SIZE)
    a("s_lshr_b32 s29, s2, 2")
    a("s_and_b32 s30, s2, 3")
    a("s_lshl_b32 s30, s30, 2")
    a("s_add_u32 s30, s30, s28")
    a("s_lshl_b32 s31, s29, 16")
    a("s_lshl_b32 s32, s30, 7")
    a("s_add_u32 s31, s31, s32")
    a("v_lshlrev_b32 v5, 11, v3")
    a("v_lshl_add_u32 v5, v4, 4, v5")
    for i in range(4):
        a(f"buffer_load_dwordx4 {v(8+4*i,4)}, v5, s[8:11], s31 offen offset:{i*32}")
    a("s_cmp_ge_u32 s2, 192")
    a(f"s_cbranch_scc1 {name}_pf")
    a("s_cmp_ge_u32 s2, 96")
    a("s_cselect_b32 s33, 1, 0")
    a("s_cselect_b32 s12, s22, s20")
    a("s_cselect_b32 s13, s23, s21")
    a("s_and_b32 s13, s13, 0xffff")
    a(f"s_mov_b32 s14, {hex(D_*3*D_*2)}")
    a("s_mov_b32 s15, 0x20000")
    a("s_mul_i32 s34, s33, 96")
    a("s_sub_u32 s34, s2, s34")
    a("s_mul_i32 s35, s34, 43")
    a("s_lshr_b32 s35, s35, 8")
    a("s_mul_i32 s36, s35, 6")
    a("s_sub_u32 s36, s34, s36")
    a("s_lshl_b32 s37, s35, 6")
    a("s_lshl_b32 s38, s28, 4")
    a("s_add_u32 s37, s37, s38")
    a("s_mul_i32 s37, s37, 6144")
    a("s_lshl_b32 s38, s36, 10")
    a("s_add_u32 s37, s37, s38")
    a("v_lshlrev_b32 v6, 4, v2")
    for i in range(16):
        a(f"buffer_load_dwordx4 {v(32+4*i,4)}, v6, s[12:15], s37 offen")
        if i < 15: a("s_add_u32 s37, s37, 6144")
    a(f"s_branch {name}_p1")
    a(f"{name}_pf:")
    a("s_sub_u32 s34, s2, 192")
    a("s_cmp_ge_u32 s34, 32")
    a("s_cselect_b32 s12, s26, s24")
    a("s_cselect_b32 s13, s27, s25")
    a("s_and_b32 s13, s13, 0xffff")
    a(f"s_mov_b32 s14, {hex(D_*D_*2)}")
    a("s_mov_b32 s15, 0x20000")
    a("s_and_b32 s34, s34, 31")
    a("s_lshl_b32 s37, s34, 16")
    a("s_lshl_b32 s38, s28, 14")
    a("s_add_u32 s37, s37, s38")
    a("v_lshlrev_b32 v6, 4, v2")
    for i in range(16):
        a(f"buffer_load_dwordx4 {v(32+4*i,4)}, v6, s[12:15], s37 offen")
        if i < 15: a("s_add_u32 s37, s37, 1024")
    a("s_cmp_ge_u32 s2, 198")
    a(f"s_cbranch_scc1 {name}_p1")
    a("s_sub_u32 s34, s2, 192")
    a("s_lshl_b32 s34, s34, 12")
    a(f"s_add_u32 s34, s34, {hex(WS_FLAGS)}")
    a("v_lshlrev_b32 v6, 4, v0")
    a("v_mov_b32 v96, 0")
    a("v_mov_b32 v97, 0")
    a("v_mov_b32 v98, 0")
    a("v_mov_b32 v99, 0")
    a("buffer_store_dwordx4 v[96:99], v6, s[16:19], s34 offen")
    a("s_waitcnt vmcnt(0)")
    a(f"{name}_p1:")
    a("s_waitcnt vmcnt(16)")
    a("v_mov_b32 v24, 0")
    a("v_mov_b32 v25, 0")
    a(f"s_mov_b32 s39, {hex(ONES_BF16)}")
    a("v_mov_b32 v7, s39")
    for i in range(4):
        for j in range(4):
            a(f"v_dot2c_f32_bf16 v24, v{8+4*i+j}, v7")
            a(f"v_dot2c_f32_bf16 v25, v{8+4*i+j}, v{8+4*i+j}")
    for i in range(4):
        a(f"v_permlane32_swap_b32 v{8+4*i}, v{8+4*i+2}")
        a(f"v_permlane32_swap_b32 v{8+4*i+1}, v{8+4*i+3}")
    a("s_lshl_b32 s31, s29, 16")
    a("s_lshl_b32 s32, s30, 12")
    a("s_add_u32 s31, s31, s32")
    a("v_lshlrev_b32 v26, 4, v2")
    a("v_mov_b32 v28, v24")
    a("v_mov_b32 v30, v25")
    for i in range(4):
        a(f"buffer_store_dwordx4 {v(8+4*i,4)}, v26, s[16:19], s31 offen offset:{i*1024}")
    a("v_permlane32_swap_b32 v24, v28")
    a("v_permlane32_swap_b32 v25, v30")
    a("s_nop 1")
    a("v_add_f32 v24, v24, v28")
    a("v_add_f32 v25, v25, v30")
    a("s_lshl_b32 s31, s30, 14")
    a("s_lshl_b32 s32, s29, 8")
    a("s_add_u32 s31, s31, s32")
    a(f"s_add_u32 s31, s31, {hex(WS_STATS)}")
    a("v_lshlrev_b32 v27, 3, v3")
    a("s_mov_b64 exec, 0xffffffff")
    a("buffer_store_dwordx2 v[24:25], v27, s[16:19], s31 offen")
    a("s_mov_b64 exec, -1")
    a("s_cmp_ge_u32 s2, 192")
    a(f"s_cbranch_scc1 {name}_fin")
    a(f"s_mov_b32 s39, {hex(SEL_LO)}")
    a(f"s_mov_b32 s40, {hex(SEL_HI)}")
    a("v_mov_b32 v7, s39")
    a("v_mov_b32 v6, s40")
    for j in range(8):
        a(f"v_mov_b32 v{8+j}, 0")
    for i in range(16):
        a(f"s_waitcnt vmcnt({15 - i + 5})" if i < 15 else "s_waitcnt vmcnt(5)")
        for j in range(4):
            a(f"v_dot2c_f32_bf16 v{8+2*j}, v{32+4*i+j}, v7")
            a(f"v_dot2c_f32_bf16 v{8+2*j+1}, v{32+4*i+j}, v6")
    a("s_lshl_b32 s31, s28, 11")
    a("v_lshlrev_b32 v16, 5, v2")
    a("v_add_u32 v16, s31, v16")
    a("ds_write_b128 v16, v[8:11]")
    a("ds_write_b128 v16, v[12:15] offset:16")
    a("s_waitcnt lgkmcnt(0)")
    a("s_barrier")
    a("v_lshlrev_b32 v17, 3, v0")
    for w in range(4):
        a(f"ds_read_b64 {v(18+2*w,2)}, v17 offset:{w*2048}")
    a("s_waitcnt lgkmcnt(0)")
    a("v_add_f32 v18, v18, v20")
    a("v_add_f32 v19, v19, v21")
    a("v_add_f32 v22, v22, v24")
    a("v_add_f32 v23, v23, v25")
    a("v_add_f32 v18, v18, v22")
    a("v_add_f32 v19, v19, v23")
    a("s_mul_i32 s31, s33, %d" % (16 * 3072 * 4))
    a("s_mul_i32 s32, s35, %d" % (3072 * 4))
    a("s_add_u32 s31, s31, s32")
    a("s_lshl_b32 s32, s36, 11")
    a("s_add_u32 s31, s31, s32")
    a(f"s_add_u32 s31, s31, {hex(WS_CSP)}")
    a("buffer_store_dwordx2 v[18:19], v17, s[16:19], s31 offen")
    a(f"{name}_fin:")
    a("s_waitcnt vmcnt(0)")
    kend(a, name)
    return a.text(), kernel_descriptor(name, 104), dict(name=name, grid=256, block=256, lds=8192)
```

```python
from common import *

S_MB, S_J, S_WAVE, S_R1, S_R2, S_L = 20, 21, 22, 23, 24, 25
S_AWQKV, S_BWQKV, S_AWO, S_BWO, S_AWPHI, S_OUT = 26, 28, 30, 32, 34, 36
S_XF, S_XFN, S_OF, S_KV, S_ST, S_STN, S_FL, S_ZP = 60, 61, 62, 63, 64, 65, 66, 67
S_L2E = 68
V_LANE, V_L16 = 255, 254
STAGE = 40960
NST = 3
L_SCR0 = 131072
L_NM = L_SCR0
L_RS = L_NM + 512
L_CS = L_NM + 1024
L_WPHI = L_SCR0 + 2048
L_SCR = L_WPHI + 4096
MEGA_LDS = L_SCR + 16384 + 1024
SPIN = 1 << 16

class Ctx:
    pass

def stamp(a, k):
    if not STAMP: return
    a("s_memrealtime s[96:97]")
    a(f"s_lshl_b32 s91, s{S_L}, 4")
    a(f"s_add_u32 s91, s91, {k}")
    a("s_lshl_b32 s91, s91, 14")
    a("s_add_u32 s91, s91, s90")
    a("s_waitcnt lgkmcnt(0)")
    a("s_mov_b64 s[98:99], exec")
    a("s_mov_b64 exec, 1")
    a("v_mov_b32 v253, s96")
    a("v_mov_b32 v252, 0")
    a("buffer_store_dword v253, v252, s[8:11], s91 offen")
    a("s_mov_b64 exec, s[98:99]")

def layer_setup(a):
    a(f"s_lshl_b32 s38, s{S_L}, 22")
    a(f"s_add_u32 s{S_XF}, s38, {hex(WS_XF)}" if WS_XF else f"s_mov_b32 s{S_XF}, s38")
    a(f"s_add_u32 s{S_XFN}, s{S_XF}, 0x400000")
    a(f"s_add_u32 s{S_OF}, s38, {hex(WS_OF)}")
    a(f"s_lshl_b32 s38, s{S_L}, 18")
    a(f"s_add_u32 s{S_ST}, s38, {hex(WS_STATS)}")
    a(f"s_add_u32 s{S_STN}, s{S_ST}, 0x40000")
    a(f"s_mul_i32 s38, s{S_L}, 0x1800")
    a(f"s_add_u32 s{S_FL}, s38, {hex(WS_FLAGS)}")
    a(f"s_lshr_b32 s39, s{S_L}, 1")
    a(f"s_lshl_b32 s38, s39, 17")
    a(f"s_add_u32 s{S_ZP}, s38, {hex(WS_ZP)}")
    a(f"s_lshl_b32 s38, s39, 21")
    a(f"s_add_u32 s38, s38, {hex(WS_KVP)}")
    a(f"s_lshl_b32 s39, s39, 23")
    a(f"s_add_u32 s39, s39, {hex(WS_KVF)}")
    a(f"s_bitcmp1_b32 s{S_L}, 0")
    a(f"s_cselect_b32 s{S_KV}, s39, s38")

def wsrd(a, pa, pb, nbytes):
    a(f"s_bitcmp1_b32 s{S_L}, 0")
    a(f"s_cselect_b32 s12, s{pb}, s{pa}")
    a(f"s_cselect_b32 s13, s{pb+1}, s{pa+1}")
    a("s_and_b32 s13, s13, 0xffff")
    a(f"s_mov_b32 s14, {hex(nbytes)}")
    a("s_mov_b32 s15, 0x20000")

def signal(a, sflag, sidx):
    a(f"s_lshl_b32 s39, s{sidx}, 2")
    a("v_mov_b32 v250, s39")
    a("v_mov_b32 v251, 1")
    a("s_mov_b64 exec, 1")
    a(f"buffer_store_dword v251, v250, s[8:11], s{sflag} offen sc1")
    a("s_mov_b64 exec, -1")

_poll_n = [0]
def poll(a, sflag):
    n = _poll_n[0]; _poll_n[0] += 1
    a(f"v_and_b32 v250, 15, v{V_LANE}")
    a("v_lshlrev_b32 v250, 2, v250")
    a(f"s_mov_b32 s39, {SPIN}")
    a(f"poll{n}:")
    a(f"buffer_load_dword v251, v250, s[8:11], s{sflag} offen sc1")
    a("s_waitcnt vmcnt(0)")
    a("v_cmp_eq_u32 vcc, 1, v251")
    a("s_sub_u32 s39, s39, 1")
    a("s_cmp_eq_u64 vcc, exec")
    a(f"s_cbranch_scc1 poll{n}_done")
    a("s_cmp_eq_u32 s39, 0")
    a(f"s_cbranch_scc1 poll{n}_done")
    a("s_sleep 1")
    a(f"s_branch poll{n}")
    a(f"poll{n}_done:")

def handoff(a, lbl, ftype, sgroup, sidx, layer_delta=0):
    a(f"s_cmp_eq_u32 s{S_WAVE}, 4")
    a(f"s_cbranch_scc0 {lbl}")
    a(f"s_lshl_b32 s38, s{sgroup}, 7")
    a(f"s_add_u32 s38, s38, s{S_FL}")
    off = ftype + layer_delta * 0x1800
    if off > 0: a(f"s_add_u32 s38, s38, {off}")
    if off < 0: a(f"s_sub_u32 s38, s38, {-off}")
    signal(a, 38, sidx)
    poll(a, 38)
    a(f"{lbl}:")

ACC = 0
FA, FB = 96, 116
VX, VW, VX0, VW0 = 136, 137, 138, 139
def acc(p, mi): return ACC + (p * 2 + mi) * 16

def p1_reads(a, fs, ks, which):
    def rd(n):
        if n == 0: return f"ds_read_b128 {v(fs,4)}, v{VX} offset:{ks*1024}"
        if n == 3: return f"ds_read_b128 {v(fs+4,4)}, v{VX} offset:{4096+ks*1024}"
        p, t = {1:(0,0),2:(0,1),4:(1,0),5:(1,1),6:(2,0),7:(2,1)}[n]
        return f"ds_read_b64_tr_b16 {v(fs+8+4*p+2*t,2)}, v{VW} offset:{16384+p*8192+ks*2048+t*1024}"
    for n in which: a(rd(n))

def p1_sub(a, cur, nxt, nks, barrier=False):
    x0, x1, wq, wk, wv = cur, cur+4, cur+8, cur+12, cur+16
    def mf(d, A, B): a(f"{M32} {v(d,16)}, {v(A,4)}, {v(B,4)}, {v(d,16)}")
    if barrier:
        a("s_waitcnt lgkmcnt(0)")
        a("s_barrier")
        a(f"s_add_u32 s40, s40, {STAGE}")
        a(f"s_cmp_eq_u32 s40, {NST*STAGE}")
        a("s_cselect_b32 s40, 0, s40")
        a(f"v_add_u32 v{VX}, s40, v{VX0}")
        a(f"v_add_u32 v{VW}, s40, v{VW0}")
    else:
        a("s_waitcnt lgkmcnt(5)")
    mf(acc(0,0), wq, x0)
    p1_reads(a, nxt, nks, [0, 1])
    if not barrier: a("s_waitcnt lgkmcnt(6)")
    mf(acc(0,1), wq, x1)
    p1_reads(a, nxt, nks, [2, 3])
    if not barrier: a("s_waitcnt lgkmcnt(6)")
    mf(acc(1,0), wk, x0)
    p1_reads(a, nxt, nks, [4, 5])
    mf(acc(1,1), wk, x1)
    p1_reads(a, nxt, nks, [6, 7])
    if not barrier: a("s_waitcnt lgkmcnt(8)")
    mf(acc(2,0), x0, wv)
    mf(acc(2,1), x1, wv)

def issue_x(a):
    a("s_add_u32 m0, s45, s47")
    a("s_nop 0")
    for ks in range(4):
        a(f"buffer_load_dwordx4 v2, s[8:11], s41 offen offset:{ks*1024} sc1 lds")
    a("s_add_u32 s41, s41, 4096")
    a(f"s_add_u32 s45, s45, {STAGE}")
    a(f"s_cmp_eq_u32 s45, {NST*STAGE}")
    a("s_cselect_b32 s45, 0, s45")

def issue_w(a):
    a("s_add_u32 s44, s46, s48")
    for p in range(3):
        for q in range(2):
            a(f"s_add_u32 m0, s44, {p*8192+q*1024}")
            a(f"s_add_u32 s43, s42, {p*2048+q*8*6144}")
            a("buffer_load_dwordx4 v3, s[12:15], s43 offen lds")
    a(f"s_add_u32 s42, s42, {64*6144}")
    a(f"s_add_u32 s46, s46, {STAGE}")
    a(f"s_cmp_eq_u32 s46, {NST*STAGE}")
    a("s_cselect_b32 s46, 0, s46")

def wo_dma(a, first_piece_sgpr, n):
    a(f"v_lshrrev_b32 v5, 3, v{V_LANE}")
    a("v_lshlrev_b32 v6, 11, v5")
    a(f"v_and_b32 v5, 7, v{V_LANE}")
    a(f"v_bfe_u32 v7, v{V_LANE}, 4, 1")
    a("v_lshlrev_b32 v7, 2, v7")
    a("v_xor_b32 v5, v5, v7")
    a("v_lshl_add_u32 v5, v5, 4, v6")
    a(f"s_lshl_b32 s43, s{first_piece_sgpr}, 14")
    a(f"s_lshl_b32 s44, s{S_J}, 7")
    a("s_add_u32 s43, s43, s44")
    a(f"s_lshl_b32 s44, s{first_piece_sgpr}, 10")
    for i in range(n):
        a("s_mov_b32 m0, s44")
        a("s_add_u32 s44, s44, 1024")
        a("buffer_load_dwordx4 v5, s[12:15], s43 offen lds")
        if i < n - 1: a("s_add_u32 s43, s43, 16384")

T1 = 158
def load_stats_T(a, dst_nm, dst_rs, t=148):
    a(f"v_and_b32 v{t}, 31, v{V_LANE}")
    a(f"s_lshl_b32 s39, s{S_R1}, 8")
    a(f"v_lshlrev_b32 v{t}, 2, v{t}")
    a(f"v_add_u32 v{t}, s39, v{t}")
    a(f"v_add_u32 v{t}, {L_NM}, v{t}")
    for mi in range(2):
        a(f"ds_read_b32 v{dst_nm+2*mi}, v{t} offset:{mi*128}")
        a(f"ds_read_b32 v{dst_rs+2*mi}, v{t} offset:{512+mi*128}")

def load_cs_T(a, p, dst, t=149):
    a(f"v_lshrrev_b32 v{t}, 5, v{V_LANE}")
    a(f"v_lshlrev_b32 v{t}, 4, v{t}")
    a(f"s_lshl_b32 s39, s{S_R2}, 7")
    a(f"v_add_u32 v{t}, s39, v{t}")
    a(f"v_add_u32 v{t}, {L_CS}, v{t}")
    for g in range(4):
        a(f"ds_read_b128 {v(dst+4*g,4)}, v{t} offset:{p*256+g*32}")

def norm_T(a, ac, cs, nm, rs):
    for r in range(8):
        a(f"v_pk_fma_f32 {v(ac+2*r,2)}, {v(cs+2*r,2)}, {v(nm,2)}, {v(ac+2*r,2)} op_sel_hi:[1,0,1]")
    for r in range(8):
        a(f"v_pk_mul_f32 {v(ac+2*r,2)}, {v(ac+2*r,2)}, {v(rs,2)} op_sel_hi:[1,0]")

def pack(a, ac, dst):
    for r in range(8):
        a(f"v_cvt_pk_bf16_f32 v{dst+r}, v{ac+2*r}, v{ac+2*r+1}")

def load_stats_F(a, mi, dst_nm, dst_rs, t=144):
    a(f"v_lshrrev_b32 v{t}, 5, v{V_LANE}")
    a(f"v_lshlrev_b32 v{t}, 4, v{t}")
    a(f"s_lshl_b32 s39, s{S_R1}, 8")
    a(f"v_add_u32 v{t}, s39, v{t}")
    a(f"v_add_u32 v{t}, {L_NM}, v{t}")
    for g in range(4):
        a(f"ds_read_b128 {v(dst_nm+4*g,4)}, v{t} offset:{mi*128+g*32}")
        a(f"ds_read_b128 {v(dst_rs+4*g,4)}, v{t} offset:{512+mi*128+g*32}")

def load_cs_F(a, dst, t=145):
    a(f"v_and_b32 v{t}, 31, v{V_LANE}")
    a(f"v_lshlrev_b32 v{t}, 2, v{t}")
    a(f"s_lshl_b32 s39, s{S_R2}, 7")
    a(f"v_add_u32 v{t}, s39, v{t}")
    a(f"v_add_u32 v{t}, {L_CS}, v{t}")
    a(f"ds_read_b32 v{dst}, v{t} offset:512")

def norm_F(a, ac, cs, nm, rs):
    for r in range(8):
        a(f"v_pk_fma_f32 {v(ac+2*r,2)}, {v(nm+2*r,2)}, {v(cs,2)}, {v(ac+2*r,2)} op_sel_hi:[1,0,1]")
    for r in range(8):
        a(f"v_pk_mul_f32 {v(ac+2*r,2)}, {v(ac+2*r,2)}, {v(rs+2*r,2)}")

def wphi_load(a, dst, t0, t1):
    a(f"v_lshrrev_b32 v{t0}, 5, v{V_LANE}")
    a(f"v_bfe_u32 v{t1}, v{V_LANE}, 2, 2")
    a(f"v_lshl_add_u32 v{t0}, v{t0}, 2, v{t1}")
    a(f"v_lshlrev_b32 v{t0}, 6, v{t0}")
    a(f"v_bfe_u32 v{t1}, v{V_LANE}, 4, 1")
    a(f"v_lshl_add_u32 v{t0}, v{t1}, 5, v{t0}")
    a(f"v_and_b32 v{t1}, 3, v{V_LANE}")
    a(f"v_lshl_add_u32 v{t1}, v{t1}, 3, v{t0}")
    a(f"s_lshl_b32 s39, s{S_R2}, 11")
    a(f"s_add_u32 s39, s39, {L_WPHI}")
    a(f"v_add_u32 v{t1}, s39, v{t1}")
    for t in range(2):
        for tp in range(2):
            a(f"ds_read_b64_tr_b16 {v(dst+4*t+2*tp,2)}, v{t1} offset:{(16*t+8*tp)*64}")

def softmax_pm(a, PD, EN, PT, T):
    sL = S_L2E
    mx, mn, t1, t2, sp, sn = T, T+1, T+2, T+3, T+4, T+6
    a(f"v_max3_f32 v{mx}, v{PD}, v{PD+1}, v{PD+2}")
    a(f"v_min3_f32 v{mn}, v{PD}, v{PD+1}, v{PD+2}")
    for i in range(3, 15, 2):
        a(f"v_max3_f32 v{mx}, v{mx}, v{PD+i}, v{PD+i+1}")
        a(f"v_min3_f32 v{mn}, v{mn}, v{PD+i}, v{PD+i+1}")
    a(f"v_max_f32 v{mx}, v{mx}, v{PD+15}")
    a(f"v_min_f32 v{mn}, v{mn}, v{PD+15}")
    a(f"v_mov_b32 v{t1}, v{mx}")
    a(f"v_mov_b32 v{t2}, v{mn}")
    a("s_nop 1")
    a(f"v_permlane32_swap_b32 v{mx}, v{t1}")
    a(f"v_permlane32_swap_b32 v{mn}, v{t2}")
    a("s_nop 1")
    a(f"v_max_f32 v{mx}, v{mx}, v{t1}")
    a(f"v_min_f32 v{mn}, v{mn}, v{t2}")
    a(f"v_mul_f32 v{mx}, s{sL}, v{mx}")
    a(f"v_mul_f32 v{mn}, s{sL}, v{mn}")
    for r in range(16): a(f"v_fma_f32 v{EN+r}, -v{PD+r}, s{sL}, v{mn}")
    for r in range(16): a(f"v_fma_f32 v{PD+r}, v{PD+r}, s{sL}, -v{mx}")
    for r in range(16): a(f"v_exp_f32 v{EN+r}, v{EN+r}")
    for r in range(16): a(f"v_exp_f32 v{PD+r}, v{PD+r}")
    a(f"v_pk_add_f32 {v(sn,2)}, {v(EN,2)}, {v(EN+2,2)}")
    for r in range(2, 8): a(f"v_pk_add_f32 {v(sn,2)}, {v(sn,2)}, {v(EN+2*r,2)}")
    a(f"v_pk_add_f32 {v(sp,2)}, {v(PD,2)}, {v(PD+2,2)}")
    for r in range(2, 8): a(f"v_pk_add_f32 {v(sp,2)}, {v(sp,2)}, {v(PD+2*r,2)}")
    a(f"v_add_f32 v{sn}, v{sn}, v{sn+1}")
    a(f"v_add_f32 v{sp}, v{sp}, v{sp+1}")
    a(f"v_mov_b32 v{t1}, v{sp}")
    a(f"v_mov_b32 v{t2}, v{sn}")
    a("s_nop 1")
    a(f"v_permlane32_swap_b32 v{sp}, v{t1}")
    a(f"v_permlane32_swap_b32 v{sn}, v{t2}")
    a("s_nop 1")
    a(f"v_add_f32 v{sp}, v{sp}, v{t1}")
    a(f"v_add_f32 v{sn}, v{sn}, v{t2}")
    a(f"v_rcp_f32 v{sp}, v{sp}")
    a(f"v_rcp_f32 v{sn}, v{sn}")
    a("s_nop 0")
    for r in range(8): a(f"v_pk_mul_f32 {v(PD+2*r,2)}, {v(PD+2*r,2)}, {v(sp,2)} op_sel_hi:[1,0]")
    for r in range(8): a(f"v_pk_mul_f32 {v(EN+2*r,2)}, {v(EN+2*r,2)}, {v(sn,2)} op_sel_hi:[1,0]")
    for r in range(8): a(f"v_cvt_pk_bf16_f32 v{PT+r}, v{PD+2*r}, v{PD+2*r+1}")
    for r in range(8): a(f"v_cvt_pk_bf16_f32 v{PT+8+r}, v{EN+2*r}, v{EN+2*r+1}")

NM, RS = 150, 154
CSV, CSQ, CSK, FNM, FRS = 162, 164, 180, 196, 212

def head_tb(a):
    a(f"s_lshl_b32 s50, s{S_J}, 1")
    a(f"s_add_u32 s50, s50, s{S_R2}")
    a(f"s_lshl_b32 s51, s{S_MB}, 2")
    a(f"s_lshl_b32 s39, s{S_R1}, 1")
    a("s_add_u32 s51, s51, s39")

def m_layer_A(a):
    PD, EN = 32, 48
    KVA_, TD, PF = 64, [96, 112], [128, 136]
    ONES = [144, 158]
    PT0, PT1, ZA = 164, 180, 180
    KT, WPH, I0, VF, T = 196, 212, 220, 228, 246
    load_stats_T(a, NM, RS)
    load_cs_T(a, 1, CSK)
    load_cs_F(a, CSV)
    load_stats_F(a, 0, FNM, FRS)
    head_tb(a)
    a("s_waitcnt lgkmcnt(0)")
    norm_F(a, acc(2, 0), CSV, FNM, FRS)
    load_stats_F(a, 1, FNM, FRS)
    pack(a, acc(2, 0), VF)
    for mi in range(2): norm_T(a, acc(1, mi), CSK, NM + 2*mi, RS + 2*mi)
    a("s_waitcnt lgkmcnt(0)")
    norm_F(a, acc(2, 1), CSV, FNM, FRS)
    pack(a, acc(2, 1), VF + 8)
    for mi in range(2): pack(a, acc(1, mi), KT + 8*mi)
    wphi_load(a, WPH, 148, 149)
    n4, hh, jj, val = 144, 145, 146, 147
    a(f"v_bfe_u32 v{n4}, v{V_LANE}, 2, 1")
    a(f"v_lshrrev_b32 v{hh}, 5, v{V_LANE}")
    a(f"v_cmp_eq_u32 vcc, v{n4}, v{hh}")
    a(f"v_bfe_u32 v{jj}, v{V_LANE}, 3, 1")
    a(f"v_lshlrev_b32 v{jj}, 2, v{jj}")
    a(f"v_and_b32 v{n4}, 3, v{V_LANE}")
    a(f"v_add_u32 v{jj}, v{jj}, v{n4}")
    a(f"v_and_b32 v{n4}, 1, v{jj}")
    a(f"v_lshlrev_b32 v{n4}, 4, v{n4}")
    a(f"v_mov_b32 v{val}, 0x3f80")
    a(f"v_lshlrev_b32 v{val}, v{n4}, v{val}")
    a(f"v_cndmask_b32 v{val}, 0, v{val}, vcc")
    a(f"v_lshrrev_b32 v{jj}, 1, v{jj}")
    a(f"v_bfe_u32 v{hh}, v{V_LANE}, 4, 1")
    a(f"v_lshl_add_u32 v{jj}, v{hh}, 2, v{jj}")
    for k in range(8):
        a(f"v_cmp_eq_u32 vcc, {k}, v{jj}")
        a("s_nop 1")
        a(f"v_cndmask_b32 v{I0+k}, 0, v{val}, vcc")
    a(f"v_cmp_eq_u32 vcc, 0, v{hh}")
    a(f"v_mov_b32 v{val}, {hex(ONES_BF16)}")
    a("s_nop 0")
    a(f"v_cndmask_b32 v148, 0, v{val}, vcc")
    a(f"v_sub_u32 v149, v{val}, v148")
    for k in range(4):
        a(f"v_mov_b32 v{ONES[0]+k}, v148")
        a(f"v_mov_b32 v{ONES[1]+k}, v149")
    a("s_waitcnt lgkmcnt(0)")
    for mi in range(2):
        a(f"{M32} {v(PD,16)}, {v(WPH,4)}, {v(KT+8*mi,4)}, 0")
        a(f"{M32} {v(PD,16)}, {v(WPH+4,4)}, {v(KT+8*mi+4,4)}, {v(PD,16)}")
        a("s_nop 11")
        softmax_pm(a, PD, EN, PT0, T)
        a("s_nop 1")
        for fb in range(2):
            a(f"{M32} {v(TD[fb],16)}, {v(PT0+8*fb,4)}, {v(I0,4)}, 0")
            a(f"{M32} {v(TD[fb],16)}, {v(PT0+8*fb+4,4)}, {v(I0+4,4)}, {v(TD[fb],16)}")
        a("s_nop 10")
        pack(a, TD[0], PF[0])
        pack(a, TD[1], PF[1])
        a("s_nop 1")
        for fb in range(2):
            for tt in range(2):
                c = "0" if (mi == 0 and tt == 0) else v(KVA_+16*fb,16)
                a(f"{M32} {v(KVA_+16*fb,16)}, {v(PF[fb]+4*tt,4)}, {v(VF+8*mi+4*tt,4)}, {c}")
        for fb in range(2):
            for tt in range(2):
                c = "0" if (mi == 0 and tt == 0 and fb == 0) else v(ZA,16)
                a(f"{M32} {v(ZA,16)}, {v(PF[fb]+4*tt,4)}, {v(ONES[fb],4)}, {c}")
    a("s_nop 15")
    stamp(a, 4)
    t = 148
    a(f"s_lshl_b32 s39, s{S_R2}, 13")
    a(f"s_add_u32 s39, s39, {L_SCR}")
    a(f"v_add_u32 v{t}, s39, v{V_L16}")
    a(f"v_lshrrev_b32 v149, 4, v{V_LANE}")
    a("v_lshlrev_b32 v149, 6, v149")
    a(f"s_lshl_b32 s39, s{S_R2}, 8")
    a(f"s_add_u32 s39, s39, {L_SCR+16384}")
    a("v_add_u32 v149, s39, v149")
    a(f"s_cmp_eq_u32 s{S_R1}, 0")
    a("s_cbranch_scc1 mA_red0")
    for q in range(8):
        a(f"ds_write_b128 v{t}, {v(KVA_+4*q,4)} offset:{q*1024}")
    a("s_mov_b32 exec_lo, 0x00010001")
    a("s_mov_b32 exec_hi, 0x00010001")
    for q in range(4):
        a(f"ds_write_b128 v149, {v(ZA+4*q,4)} offset:{q*16}")
    a("s_mov_b64 exec, -1")
    a("s_waitcnt lgkmcnt(0)")
    a("s_barrier")
    a("s_branch mA_red1")
    a("mA_red0:")
    a("s_barrier")
    for q in range(8):
        a(f"ds_read_b128 {v(96+4*q,4)}, v{t} offset:{q*1024}")
    for q in range(4):
        a(f"ds_read_b128 {v(128+4*q,4)}, v149 offset:{q*16}")
    a("s_waitcnt lgkmcnt(0)")
    for r in range(16): a(f"v_pk_add_f32 {v(KVA_+2*r,2)}, {v(KVA_+2*r,2)}, {v(96+2*r,2)}")
    for r in range(8): a(f"v_pk_add_f32 {v(ZA+2*r,2)}, {v(ZA+2*r,2)}, {v(128+2*r,2)}")
    for r in range(16): a(f"v_cvt_pk_bf16_f32 v{96+r}, v{KVA_+2*r}, v{KVA_+2*r+1}")
    a("s_lshl_b32 s52, s50, 4")
    a(f"s_add_u32 s52, s52, s{S_MB}")
    a("s_lshl_b32 s53, s52, 12")
    a(f"s_add_u32 s53, s53, s{S_KV}")
    for u in range(4):
        a(f"buffer_store_dwordx4 {v(96+4*u,4)}, v{V_L16}, s[8:11], s53 offen offset:{u*1024} sc1")
    a("s_lshl_b32 s53, s52, 8")
    a(f"s_add_u32 s53, s53, s{S_ZP}")
    a(f"v_bfe_u32 v148, v{V_LANE}, 4, 1")
    a("v_lshlrev_b32 v148, 7, v148")
    a(f"v_lshrrev_b32 v149, 5, v{V_LANE}")
    a("v_lshl_add_u32 v148, v149, 6, v148")
    a("s_mov_b32 exec_lo, 0x00010001")
    a("s_mov_b32 exec_hi, 0x00010001")
    for q in range(4):
        a(f"buffer_store_dwordx4 {v(ZA+4*q,4)}, v148, s[8:11], s53 offen offset:{q*16} sc1")
    a("s_mov_b64 exec, -1")
    a("s_waitcnt vmcnt(0)")
    a("mA_red1:")
    a("s_barrier")
    stamp(a, 5)
    load_cs_T(a, 0, CSQ)
    a("s_waitcnt lgkmcnt(0)")
    for mi in range(2): norm_T(a, acc(0, mi), CSQ, NM + 2*mi, RS + 2*mi)
    for mi in range(2): pack(a, acc(0, mi), KT + 8*mi)
    a("s_nop 1")
    for mi in range(2):
        a(f"{M32} {v(PD,16)}, {v(WPH,4)}, {v(KT+8*mi,4)}, 0")
        a(f"{M32} {v(PD,16)}, {v(WPH+4,4)}, {v(KT+8*mi+4,4)}, {v(PD,16)}")
        a("s_nop 11")
        softmax_pm(a, PD, EN, PT0 if mi == 0 else PT1, T)
    stamp(a, 6)
    a("s_barrier")

def kv_reduce(a):
    a("v_lshrrev_b32 v144, 8, v253") if False else None
    a(f"s_lshr_b32 s39, s{S_WAVE}, 2")
    a("s_lshl_b32 s39, s39, 16")
    a(f"s_and_b32 s40, s{S_WAVE}, 3")
    a("s_lshl_b32 s40, s40, 10")
    a("s_add_u32 s39, s39, s40")
    a(f"s_lshl_b32 s41, s{S_J}, 17")
    a("s_add_u32 s39, s39, s41")
    a(f"s_add_u32 s39, s39, s{S_KV}")
    for i in range(16):
        a(f"buffer_load_dwordx4 {v(64+4*i,4)}, v{V_L16}, s[8:11], s39 offen sc1")
        if i < 15: a("s_add_u32 s39, s39, 4096")
    a(f"s_cmp_lt_u32 s{S_WAVE}, 2")
    a("s_cbranch_scc0 kvr_nz")
    a(f"s_lshl_b32 s39, s{S_J}, 1")
    a(f"s_add_u32 s39, s39, s{S_WAVE}")
    a("s_lshl_b32 s39, s39, 12")
    a(f"s_add_u32 s39, s39, s{S_ZP}")
    a(f"v_lshlrev_b32 v143, 2, v{V_LANE}")
    for i in range(16):
        a(f"buffer_load_dword v{144+i}, v143, s[8:11], s39 offen offset:{i*256} sc1")
    a("s_waitcnt vmcnt(0)")
    for i in range(1, 16): a(f"v_add_f32 v144, v144, v{144+i}")
    a("v_cvt_pk_bf16_f32 v144, v144, v144")
    a(f"v_lshrrev_b32 v145, 5, v{V_LANE}")
    a(f"v_bfe_u32 v146, v{V_LANE}, 3, 1")
    a("v_lshl_add_u32 v145, v145, 1, v146")
    a(f"v_bfe_u32 v146, v{V_LANE}, 4, 1")
    a("v_lshl_add_u32 v145, v145, 1, v146")
    a(f"v_and_b32 v146, 7, v{V_LANE}")
    a("v_lshl_add_u32 v145, v145, 3, v146")
    a("v_lshlrev_b32 v145, 1, v145")
    a(f"s_lshl_b32 s39, s{S_WAVE}, 7")
    a(f"s_add_u32 s39, s39, {L_SCR+8192}")
    a("v_add_u32 v145, s39, v145")
    a("ds_write_b16 v145, v144")
    a("kvr_nz:")
    a(f"v_mov_b32 v140, {hex(SEL_LO)}")
    a(f"v_mov_b32 v141, {hex(SEL_HI)}")
    for r in range(8): a(f"v_mov_b32 v{128+r}, 0")
    for i in range(16):
        a(f"s_waitcnt vmcnt({15-i})")
        for d in range(4):
            a(f"v_dot2c_f32_bf16 v{128+2*d}, v{64+4*i+d}, v140")
            a(f"v_dot2c_f32_bf16 v{128+2*d+1}, v{64+4*i+d}, v141")
    a("s_nop 2")
    for d in range(4): a(f"v_cvt_pk_bf16_f32 v{136+d}, v{128+2*d}, v{128+2*d+1}")
    a(f"s_lshl_b32 s39, s{S_WAVE}, 10")
    a(f"s_add_u32 s39, s39, {L_SCR}")
    a(f"v_add_u32 v142, s39, v{V_L16}")
    a("ds_write_b128 v142, v[136:139]")
    a("s_waitcnt lgkmcnt(0)")
    a("s_barrier")

def m_layer_A2(a):
    PT = [164, 180]
    KVF, ZF, NUM, DEN, T = 64, 80, 96, 112, 246
    a(f"s_lshl_b32 s39, s{S_R2}, 12")
    a(f"s_add_u32 s39, s39, {L_SCR}")
    a(f"v_add_u32 v148, s39, v{V_L16}")
    for u in range(4): a(f"ds_read_b128 {v(KVF+4*u,4)}, v148 offset:{u*1024}")
    a(f"v_lshrrev_b32 v149, 5, v{V_LANE}")
    a("v_lshlrev_b32 v149, 4, v149")
    a(f"s_lshl_b32 s39, s{S_R2}, 7")
    a(f"s_add_u32 s39, s39, {L_SCR+8192}")
    a("v_add_u32 v149, s39, v149")
    for u in range(4): a(f"ds_read_b128 {v(ZF+4*u,4)}, v149 offset:{u*32}")
    head_tb(a)
    a("s_lshl_b32 s52, s51, 16")
    a("s_lshl_b32 s53, s50, 11")
    a("s_add_u32 s52, s52, s53")
    a(f"s_add_u32 s52, s52, s{S_OF}")
    a("s_waitcnt lgkmcnt(0)")
    NUMS, DENS = [96, 128], [112, 144]
    for mi in range(2):
        for u in range(4):
            c = "0" if u == 0 else v(DENS[mi],16)
            a(f"{M32} {v(DENS[mi],16)}, {v(ZF+4*u,4)}, {v(PT[mi]+4*u,4)}, {c}")
        for u in range(4):
            c = "0" if u == 0 else v(NUMS[mi],16)
            a(f"{M32} {v(NUMS[mi],16)}, {v(KVF+4*u,4)}, {v(PT[mi]+4*u,4)}, {c}")
    for mi in range(2):
        a("s_nop 7" if mi == 1 else "s_nop 1")
        a(f"v_add_f32 v{T}, {f32(1e-6)}, v{DENS[mi]}")
        a(f"v_rcp_f32 v{T}, v{T}")
        a("s_nop 0")
        for r in range(8): a(f"v_pk_mul_f32 {v(NUMS[mi]+2*r,2)}, {v(NUMS[mi]+2*r,2)}, {v(T,2)} op_sel_hi:[1,0]")
        pack(a, NUMS[mi], 196 + 8*mi)
        a(f"s_add_u32 s53, s52, {mi*65536}")
        a(f"buffer_store_dwordx4 {v(196+8*mi,4)}, v{V_L16}, s[8:11], s53 offen sc1")
        a(f"buffer_store_dwordx4 {v(196+8*mi+4,4)}, v{V_L16}, s[8:11], s53 offen offset:1024 sc1")
    a("s_waitcnt vmcnt(0)")

def m_layer_B(a):
    RQ, PK = 158, 228
    load_stats_T(a, NM, RS)
    load_cs_T(a, 1, CSK)
    load_cs_F(a, CSV)
    load_stats_F(a, 0, FNM, FRS)
    load_cs_T(a, 0, CSQ)
    head_tb(a)
    a("s_lshl_b32 s52, s50, 6")
    a("s_add_u32 s52, s52, s51")
    a("s_lshl_b32 s52, s52, 12")
    a(f"s_add_u32 s52, s52, s{S_KV}")
    a("s_waitcnt lgkmcnt(0)")
    for mi in range(2):
        norm_T(a, acc(1, mi), CSK, NM + 2*mi, RS + 2*mi)
        pk = PK + 8 * mi
        pack(a, acc(1, mi), pk)
        a(f"s_add_u32 s53, s52, {mi*4096}")
        a(f"buffer_store_dwordx4 {v(pk,4)}, v{V_L16}, s[8:11], s53 offen sc1")
        a(f"buffer_store_dwordx4 {v(pk+4,4)}, v{V_L16}, s[8:11], s53 offen offset:1024 sc1")
    for mi in range(2):
        if mi == 1:
            load_stats_F(a, 1, FNM, FRS)
            a("s_waitcnt lgkmcnt(0)")
        norm_F(a, acc(2, mi), CSV, FNM, FRS)
        pk = PK + 8 * mi
        pack(a, acc(2, mi), pk)
        a(f"s_add_u32 s53, s52, {mi*4096}")
        a(f"buffer_store_dwordx4 {v(pk,4)}, v{V_L16}, s[8:11], s53 offen offset:2048 sc1")
        a(f"buffer_store_dwordx4 {v(pk+4,4)}, v{V_L16}, s[8:11], s53 offen offset:3072 sc1")
    c = (32 ** -0.5) * LOG2E
    for mi in range(2): a(f"v_mul_f32 v{RQ+2*mi}, {f32(c)}, v{RS+2*mi}")
    a(f"s_lshl_b32 s39, s{S_R1}, 2")
    a(f"s_add_u32 s39, s39, s{S_R2}")
    a("s_lshl_b32 s39, s39, 11")
    a(f"s_add_u32 s39, s39, {L_SCR}")
    a(f"v_add_u32 v148, s39, v{V_L16}")
    for mi in range(2):
        norm_T(a, acc(0, mi), CSQ, NM + 2*mi, RQ + 2*mi)
        pack(a, acc(0, mi), 196 + 8*mi)
        a(f"ds_write_b128 v148, {v(196+8*mi,4)} offset:{mi*4096}")
        a(f"ds_write_b128 v148, {v(196+8*mi+4,4)} offset:{mi*4096+1024}")
    a("s_waitcnt vmcnt(0) lgkmcnt(0)")

CH = 16384
aQ, aNEGM, aSA, aSB, aP, aO, aL, aSEL, aKVA, aKVB, aVA, aVG, aT0 = 0, 8, 24, 40, 56, 64, 80, 84, 88, 104, 120, 121, 123

def attention(a):
    Q, NEGM, SA, SB, P, O, L, SEL, KVA, KVB, VA, VG, T0 = aQ, aNEGM, aSA, aSB, aP, aO, aL, aSEL, aKVA, aKVB, aVA, aVG, aT0
    a(f"s_and_b32 s50, s{S_WAVE}, 1")
    a(f"s_lshr_b32 s51, s{S_WAVE}, 1")
    a("s_lshl_b32 s52, s50, 16")
    a(f"v_add_u32 v{VA}, s52, v{V_L16}")
    a(f"s_lshl_b32 s53, s{S_J}, 1")
    a("s_add_u32 s53, s53, s50")
    a("s_lshl_b32 s30, s53, 18") if False else None
    a("s_lshl_b32 s54, s53, 18")
    a(f"s_add_u32 s54, s54, s{S_KV}")
    a("s_lshl_b32 s55, s51, 12")
    a("s_add_u32 s56, s54, s55")
    a("s_add_u32 s55, s55, s52")
    def dma(buf):
        a(f"s_add_u32 m0, s55, {buf*CH}")
        a("s_nop 0")
        for i in range(4):
            a(f"buffer_load_dwordx4 v{V_L16}, s[8:11], s56 offen offset:{i*1024} sc1 lds")
        a(f"s_add_u32 s56, s56, {CH}")
    def rd(kv, off):
        for i in range(4): a(f"ds_read_b128 {v(kv+4*i,4)}, v{VA} offset:{off+i*1024}")
    dma(0); dma(1); dma(2)
    a(f"s_lshl_b32 s39, s{S_WAVE}, 11")
    a(f"s_add_u32 s39, s39, {L_SCR}")
    a(f"v_add_u32 v{T0}, s39, v{V_L16}")
    a(f"ds_read_b128 {v(Q,4)}, v{T0}")
    a(f"ds_read_b128 {v(Q+4,4)}, v{T0} offset:1024")
    a(f"v_and_b32 v{T0}, 3, v{V_LANE}")
    a(f"v_bfe_u32 v{T0+1}, v{V_LANE}, 2, 1")
    a(f"v_bfe_u32 v{T0+2}, v{V_LANE}, 4, 1")
    a(f"v_xor_b32 v{T0+1}, v{T0+1}, v{T0+2}")
    a(f"v_or_b32 v{T0}, v{T0}, v{T0+1}")
    a(f"v_cmp_eq_u32 vcc, 0, v{T0}")
    a(f"v_mov_b32 v{T0+1}, {hex(ONES_BF16)}")
    a(f"v_mov_b32 v{T0+2}, 0")
    a(f"v_cndmask_b32 v{SEL}, v{T0+2}, v{T0+1}, vcc")
    for i in range(1, 4): a(f"v_mov_b32 v{SEL+i}, v{SEL}")
    for i in range(16): a(f"v_mov_b32 v{O+i}, 0")
    for i in range(4): a(f"v_mov_b32 v{L+i}, 0")
    for i in range(8): a(f"v_mov_b32 v{P+i}, 0")
    a("s_waitcnt vmcnt(8)")
    a("s_barrier")
    stamp(a, 5)
    rd(KVA, 0)
    a("s_waitcnt lgkmcnt(0)")
    a(f"{M32} {v(SA,16)}, {v(KVA,4)}, {v(Q,4)}, 0")
    a(f"{M32} {v(SA,16)}, {v(KVA+4,4)}, {v(Q+4,4)}, {v(SA,16)}")
    rd(KVB, 4096)
    a("s_nop 7")
    a(f"v_max3_f32 v{T0}, v{SA}, v{SA+1}, v{SA+2}")
    for i in range(3, 15, 2): a(f"v_max3_f32 v{T0}, v{T0}, v{SA+i}, v{SA+i+1}")
    a(f"v_max_f32 v{T0}, v{T0}, v{SA+15}")
    a(f"v_mov_b32 v{T0+1}, v{T0}")
    a("s_nop 1")
    a(f"v_permlane32_swap_b32 v{T0}, v{T0+1}")
    a("s_nop 1")
    a(f"v_max_f32 v{T0}, v{T0}, v{T0+1}")
    a(f"v_sub_f32 v{NEGM}, 0, v{T0}")
    for i in range(1, 16): a(f"v_mov_b32 v{NEGM+i}, v{NEGM}")
    for i in range(16): a(f"v_add_f32 v{SA+i}, v{SA+i}, v{NEGM}")
    def rounds(last):
        for r in range(16):
            cur, nxt = (SA, SB) if r % 2 == 0 else (SB, SA)
            kvc, kvn = (KVA, KVB) if r % 2 == 0 else (KVB, KVA)
            tK = (r + 2) % 16; tV = (r + 1) % 16
            doK = not (last and r >= 14)
            doQK = not (last and r == 15)
            e = lambda i: a(f"v_exp_f32 v{cur+i}, v{cur+i}")
            c = lambda i: a(f"v_cvt_pk_bf16_f32 v{P+i}, v{cur+2*i}, v{cur+2*i+1}")
            a("s_waitcnt lgkmcnt(0)")
            if (r + 2) % 4 == 0 and not (last and r == 14):
                b = (r + 2) // 4
                a("s_waitcnt vmcnt(0)" if (last and b == 3) else "s_waitcnt vmcnt(4)")
                a("s_barrier")
                if not (last and b >= 2): dma((b + 2) % 4)
            if doQK: a(f"{M32} {v(nxt,16)}, {v(kvn,4)}, {v(Q,4)}, {v(NEGM,16)}")
            for i in range(0, 4): e(i)
            if doK:
                a(f"ds_read_b128 {v(kvc,4)}, v{VA} offset:{tK*4096}")
                a(f"ds_read_b128 {v(kvc+4,4)}, v{VA} offset:{tK*4096+1024}")
            if doQK: a(f"{M32} {v(nxt,16)}, {v(kvn+4,4)}, {v(Q+4,4)}, {v(nxt,16)}")
            for i in range(4, 8): e(i)
            a(f"{M32} {v(O,16)}, {v(kvn+12,4)}, {v(P+4,4)}, {v(O,16)}")
            for i in range(0, 4): c(i)
            e(8); e(9)
            if doQK:
                a(f"ds_read_b128 {v(kvn+8,4)}, v{VA} offset:{tV*4096+2048}")
                a(f"ds_read_b128 {v(kvn+12,4)}, v{VA} offset:{tV*4096+3072}")
            a(f"{M16} {v(L,4)}, {v(SEL,4)}, {v(P+4,4)}, {v(L,4)}")
            e(10); e(11)
            a(f"{M32} {v(O,16)}, {v(kvc+8,4)}, {v(P,4)}, {v(O,16)}")
            for i in range(12, 16): e(i)
            a(f"{M16} {v(L,4)}, {v(SEL,4)}, {v(P,4)}, {v(L,4)}")
            for i in range(4, 8): c(i)
    a("s_mov_b32 s40, 3")
    a("at_loop:")
    rounds(False)
    a("s_sub_u32 s40, s40, 1")
    a("s_cmp_lg_u32 s40, 0")
    a("s_cbranch_scc1 at_loop")
    rounds(True)
    a("s_nop 1")
    a(f"{M32} {v(O,16)}, {v(KVB+12,4)}, {v(P+4,4)}, {v(O,16)}")
    a(f"{M16} {v(L,4)}, {v(SEL,4)}, {v(P+4,4)}, {v(L,4)}")
    a("s_barrier")
    stamp(a, 6)
    a("s_nop 15")
    a(f"v_mov_b32 v{T0}, 0")
    for i in range(16): a(f"v_fma_f32 v{T0}, v{O+i}, 0, v{T0}")
    a(f"v_cmp_eq_f32 vcc, 0, v{T0}")
    a(f"v_mov_b32 v{T0+1}, {f32(2.0**100)}")
    a(f"v_cmp_lt_f32 s[42:43], v{L}, v{T0+1}")
    a("s_nop 1")
    a("s_and_b64 vcc, vcc, s[42:43]")
    a("s_cmp_eq_u64 vcc, exec")
    a("s_cbranch_scc1 at_fin")
    for i in range(16): a(f"v_mov_b32 v{O+i}, 0")
    for i in range(4): a(f"v_mov_b32 v{L+i}, 0")
    MV = T0 + 2
    a(f"v_mov_b32 v{MV}, {f32(-3.0e38)}")
    a("s_mov_b32 s41, s54")
    a("s_mov_b32 s40, 64")
    a("at_fb:")
    for i in range(4):
        a(f"buffer_load_dwordx4 {v(KVA+4*i,4)}, v{V_L16}, s[8:11], s41 offen offset:{i*1024} sc1")
    a("s_waitcnt vmcnt(0)")
    a(f"{M32} {v(SA,16)}, {v(KVA,4)}, {v(Q,4)}, 0")
    a(f"{M32} {v(SA,16)}, {v(KVA+4,4)}, {v(Q+4,4)}, {v(SA,16)}")
    a("s_nop 15")
    a(f"v_max3_f32 v{T0}, v{SA}, v{SA+1}, v{SA+2}")
    for i in range(3, 15, 2): a(f"v_max3_f32 v{T0}, v{T0}, v{SA+i}, v{SA+i+1}")
    a(f"v_max_f32 v{T0}, v{T0}, v{SA+15}")
    a(f"v_mov_b32 v{T0+1}, v{T0}")
    a("s_nop 1")
    a(f"v_permlane32_swap_b32 v{T0}, v{T0+1}")
    a("s_nop 1")
    a(f"v_max3_f32 v{T0}, v{T0}, v{T0+1}, v{MV}")
    a(f"v_sub_f32 v{T0+1}, v{MV}, v{T0}")
    a(f"v_exp_f32 v{T0+1}, v{T0+1}")
    a(f"v_mov_b32 v{MV}, v{T0}")
    for i in range(16): a(f"v_sub_f32 v{SA+i}, v{SA+i}, v{T0}")
    for i in range(16): a(f"v_exp_f32 v{SA+i}, v{SA+i}")
    for i in range(16): a(f"v_mul_f32 v{O+i}, v{O+i}, v{T0+1}")
    for i in range(4): a(f"v_mul_f32 v{L+i}, v{L+i}, v{T0+1}")
    for i in range(8): a(f"v_cvt_pk_bf16_f32 v{P+i}, v{SA+2*i}, v{SA+2*i+1}")
    a("s_nop 1")
    a(f"{M32} {v(O,16)}, {v(KVA+8,4)}, {v(P,4)}, {v(O,16)}")
    a(f"{M16} {v(L,4)}, {v(SEL,4)}, {v(P,4)}, {v(L,4)}")
    a(f"{M32} {v(O,16)}, {v(KVA+12,4)}, {v(P+4,4)}, {v(O,16)}")
    a(f"{M16} {v(L,4)}, {v(SEL,4)}, {v(P+4,4)}, {v(L,4)}")
    a("s_nop 15")
    a("s_add_u32 s41, s41, 4096")
    a("s_sub_u32 s40, s40, 1")
    a("s_cmp_lg_u32 s40, 0")
    a("s_cbranch_scc1 at_fb")
    a("at_fin:")
    a(f"v_rcp_f32 v{T0}, v{L}")
    a("s_nop 0")
    for i in range(16): a(f"v_mul_f32 v{O+i}, v{O+i}, v{T0}")
    for i in range(8): a(f"v_cvt_pk_bf16_f32 v{P+i}, v{O+2*i}, v{O+2*i+1}")
    a(f"s_lshl_b32 s39, s{S_MB}, 2")
    a("s_add_u32 s39, s39, s51")
    a("s_lshl_b32 s39, s39, 16")
    a("s_lshl_b32 s40, s53, 11")
    a("s_add_u32 s39, s39, s40")
    a(f"s_add_u32 s39, s39, s{S_OF}")
    a(f"buffer_store_dwordx4 {v(P,4)}, v{V_L16}, s[8:11], s39 offen sc1")
    a(f"buffer_store_dwordx4 {v(P+4,4)}, v{V_L16}, s[8:11], s39 offen offset:1024 sc1")
    wsrd(a, S_AWO, S_BWO, D_ * D_ * 2)
    a(f"s_lshl_b32 s41, s{S_WAVE}, 4")
    wo_dma(a, 41, 16)
    a("s_waitcnt vmcnt(16)")

def m_p3(a):
    ACC3, AR, WF, RES = 0, 32, [96, 104], 112
    VWA = [128, 129, 130, 131]
    L_ = V_LANE
    a(f"s_lshl_b32 s50, s{S_MB}, 2")
    a(f"s_add_u32 s50, s50, s{S_WAVE}")
    a("s_lshl_b32 s51, s50, 16")
    a(f"s_lshl_b32 s39, s{S_J}, 12")
    a("s_add_u32 s52, s51, s39")
    a(f"s_add_u32 s53, s52, s{S_XF}")
    for i in range(4):
        a(f"buffer_load_dwordx4 {v(RES+4*i,4)}, v{V_L16}, s[8:11], s53 offen offset:{i*1024} sc1")
    a(f"s_add_u32 s54, s51, s{S_OF}")
    def aload(ks):
        slot = ks % 16
        if ks % 4 == 0 and ks > 0: a("s_add_u32 s54, s54, 4096")
        a(f"buffer_load_dwordx4 {v(AR+4*slot,4)}, v{V_L16}, s[8:11], s54 offen offset:{(ks%4)*1024} sc1")
    for ks in range(16): aload(ks)
    a(f"v_lshrrev_b32 v132, 5, v{L_}")
    a(f"v_bfe_u32 v133, v{L_}, 2, 2")
    a("v_lshl_add_u32 v132, v132, 2, v133")
    a("v_lshlrev_b32 v132, 7, v132")
    a(f"v_bfe_u32 v133, v{L_}, 4, 1")
    a(f"v_bfe_u32 v134, v{L_}, 1, 1")
    a("v_lshl_add_u32 v133, v133, 1, v134")
    a(f"v_bfe_u32 v134, v{L_}, 3, 1")
    a("v_lshlrev_b32 v134, 2, v134")
    a("v_xor_b32 v133, v133, v134")
    a("v_lshl_add_u32 v132, v133, 4, v132")
    a(f"v_and_b32 v133, 1, v{L_}")
    a(f"v_lshl_add_u32 v{VWA[0]}, v133, 3, v132")
    a(f"v_xor_b32 v{VWA[1]}, 64, v{VWA[0]}")
    a(f"v_add_u32 v{VWA[2]}, 0x10000, v{VWA[0]}")
    a(f"v_add_u32 v{VWA[3]}, 0x10000, v{VWA[1]}")
    for i in range(32): a(f"v_mov_b32 v{ACC3+i}, 0")
    def wreads(ks, cb):
        fs = WF[ks % 2]
        half, kk = ks // 32, ks % 32
        for t in range(2):
            a(f"ds_read_b64_tr_b16 {v(fs+4*cb+2*t,2)}, v{VWA[half*2+cb]} offset:{kk*2048+t*1024}")
    wreads(0, 0); wreads(0, 1)
    stamp(a, 9)
    for ks in range(64):
        fs = WF[ks % 2]; A = AR + 4 * (ks % 16)
        vm = min(15, 63 - ks)
        a(f"s_waitcnt vmcnt({vm}) lgkmcnt(2)")
        a(f"{M32} {v(ACC3,16)}, {v(fs,4)}, {v(A,4)}, {v(ACC3,16)}")
        if ks < 63:
            wreads(ks + 1, 0)
            a("s_waitcnt lgkmcnt(2)")
        else:
            a("s_waitcnt lgkmcnt(0)")
        a(f"{M32} {v(ACC3+16,16)}, {v(fs+4,4)}, {v(A,4)}, {v(ACC3+16,16)}")
        if ks < 63: wreads(ks + 1, 1)
        if ks + 16 < 64: aload(ks + 16)
    a("s_barrier")
    stamp(a, 10)
    T = 136
    a(f"v_mov_b32 v{T}, {hex(SEL_LO)}")
    a(f"v_mov_b32 v{T+1}, {hex(SEL_HI)}")
    a(f"v_mov_b32 v{T+2}, {hex(ONES_BF16)}")
    a("s_nop 7")
    for cb in range(2):
        for r in range(8):
            a(f"v_dot2c_f32_bf16 v{ACC3+16*cb+2*r}, v{RES+8*cb+r}, v{T}")
            a(f"v_dot2c_f32_bf16 v{ACC3+16*cb+2*r+1}, v{RES+8*cb+r}, v{T+1}")
    a("s_nop 2")
    PK = RES
    for cb in range(2):
        for r in range(8):
            a(f"v_cvt_pk_bf16_f32 v{PK+8*cb+r}, v{ACC3+16*cb+2*r}, v{ACC3+16*cb+2*r+1}")
    a(f"s_cmp_eq_u32 s{S_L}, 3")
    a("s_cbranch_scc1 p3_final")
    a(f"s_add_u32 s53, s52, s{S_XFN}")
    for i in range(4):
        a(f"buffer_store_dwordx4 {v(PK+4*i,4)}, v{V_L16}, s[8:11], s53 offen offset:{i*1024} sc1")
    S1, S2, S3, S4 = 140, 141, 142, 143
    a(f"v_mov_b32 v{S1}, 0")
    a(f"v_mov_b32 v{S2}, 0")
    for r in range(16):
        a(f"v_dot2c_f32_bf16 v{S1}, v{PK+r}, v{T+2}")
        a(f"v_dot2c_f32_bf16 v{S2}, v{PK+r}, v{PK+r}")
    a("s_nop 2")
    a(f"v_mov_b32 v{S3}, v{S1}")
    a(f"v_mov_b32 v{S4}, v{S2}")
    a("s_nop 1")
    a(f"v_permlane32_swap_b32 v{S1}, v{S3}")
    a(f"v_permlane32_swap_b32 v{S2}, v{S4}")
    a("s_nop 1")
    a(f"v_add_f32 v{S1}, v{S1}, v{S3}")
    a(f"v_add_f32 v{S2}, v{S2}, v{S4}")
    a(f"s_lshl_b32 s39, s{S_J}, 14")
    a("s_lshl_b32 s40, s50, 8")
    a("s_add_u32 s39, s39, s40")
    a(f"s_add_u32 s39, s39, s{S_STN}")
    a(f"v_and_b32 v144, 31, v{L_}")
    a("v_lshlrev_b32 v144, 3, v144")
    a("s_mov_b64 exec, 0xffffffff")
    a(f"buffer_store_dwordx2 {v(S1,2)}, v144, s[8:11], s39 offen sc1")
    a("s_mov_b64 exec, -1")
    a("s_waitcnt vmcnt(0)")
    a("s_barrier")
    stamp(a, 11)
    a("s_barrier")
    a(f"s_add_u32 s{S_L}, s{S_L}, 1")
    a("s_branch m_layer")
    a("p3_final:")
    for i in range(4):
        a(f"v_permlane32_swap_b32 v{PK+4*i}, v{PK+4*i+2}")
        a(f"v_permlane32_swap_b32 v{PK+4*i+1}, v{PK+4*i+3}")
    a(f"v_and_b32 v144, 31, v{L_}")
    a("v_lshlrev_b32 v144, 11, v144")
    a(f"v_lshrrev_b32 v145, 5, v{L_}")
    a("v_lshl_add_u32 v144, v145, 4, v144")
    a(f"s_lshl_b32 s39, s{S_J}, 7")
    a("s_add_u32 s39, s39, s51")
    srd(a, 16, S_OUT, S_ * D_ * 2)
    for i in range(4):
        a(f"buffer_store_dwordx4 {v(PK+4*i,4)}, v144, s[16:19], s39 offen offset:{i*32}")
    a("s_waitcnt vmcnt(0)")
    stamp(a, 11)
    a("s_endpgm")

def gen_mega(name="mega_kernel"):
    a = Asm()
    kstart(a, name, 256)
    a(f"s_load_dwordx2 s[4:5], s[0:1], {KA_WS}")
    a(f"s_load_dwordx2 s[{S_AWQKV}:{S_AWQKV+1}], s[0:1], {KA_AWQKV}")
    a(f"s_load_dwordx2 s[{S_BWQKV}:{S_BWQKV+1}], s[0:1], {KA_BWQKV}")
    a(f"s_load_dwordx2 s[{S_AWO}:{S_AWO+1}], s[0:1], {KA_AWO}")
    a(f"s_load_dwordx2 s[{S_BWO}:{S_BWO+1}], s[0:1], {KA_BWO}")
    a(f"s_load_dwordx2 s[{S_AWPHI}:{S_AWPHI+1}], s[0:1], {KA_AWPHI}")
    a(f"s_load_dwordx2 s[{S_OUT}:{S_OUT+1}], s[0:1], {KA_OUT}")
    a("v_lshrrev_b32 v1, 6, v0")
    a(f"v_and_b32 v{V_LANE}, 63, v0")
    a(f"v_lshlrev_b32 v{V_L16}, 4, v{V_LANE}")
    a("s_and_b32 s38, s2, 7")
    a("s_lshr_b32 s39, s2, 3")
    a(f"v_readfirstlane_b32 s{S_WAVE}, v1")
    a(f"s_and_b32 s{S_MB}, s38, 1")
    a(f"s_lshl_b32 s{S_MB}, s{S_MB}, 3")
    a("s_and_b32 s40, s39, 7")
    a(f"s_add_u32 s{S_MB}, s{S_MB}, s40")
    a(f"s_lshr_b32 s{S_J}, s38, 1")
    a(f"s_lshl_b32 s{S_J}, s{S_J}, 2")
    a("s_lshr_b32 s40, s39, 3")
    a(f"s_add_u32 s{S_J}, s{S_J}, s40")
    a(f"s_mov_b32 s{S_L}, 0")
    a(f"s_mov_b32 s{S_L2E}, {f32(LOG2E)}")
    if STAMP:
        a("s_lshl_b32 s90, s2, 6")
        a(f"s_lshl_b32 s91, s{S_WAVE}, 2")
        a("s_add_u32 s90, s90, s91")
        a(f"s_add_u32 s90, s90, {hex(WS_STAMP)}")
    a("s_waitcnt lgkmcnt(0)")
    srd(a, 8, 4, WS_SIZE)
    stamp(a, 0)
    a(f"s_cmp_lt_u32 s{S_WAVE}, 4")
    a("s_cbranch_scc1 m_entry")
    a(f"s_sub_u32 s{S_R1}, s{S_WAVE}, 4")
    a("l_layer:")
    layer_setup(a)
    wsrd(a, S_AWQKV, S_BWQKV, D_ * 3 * D_ * 2)
    a(f"v_mov_b32 v2, v{V_L16}")
    a(f"v_lshrrev_b32 v5, 3, v{V_LANE}")
    a("v_mul_u32_u24 v3, 6144, v5")
    a(f"v_and_b32 v6, 7, v{V_LANE}")
    a(f"v_bfe_u32 v7, v{V_LANE}, 4, 1")
    a("v_lshlrev_b32 v7, 2, v7")
    a("v_xor_b32 v6, v6, v7")
    a("v_lshl_add_u32 v3, v6, 4, v3")
    a(f"s_mul_i32 s42, s{S_R1}, {16*6144}")
    a(f"s_lshl_b32 s39, s{S_J}, 7")
    a("s_add_u32 s42, s42, s39")
    a(f"s_lshl_b32 s47, s{S_R1}, 12")
    a(f"s_lshl_b32 s48, s{S_R1}, 11")
    a("s_add_u32 s48, s48, 16384")
    a("s_mov_b32 s45, 0")
    a("s_mov_b32 s46, 0")
    for st in range(3): issue_w(a)
    a(f"s_lshl_b32 s41, s{S_MB}, 2")
    a(f"s_add_u32 s41, s41, s{S_R1}")
    a("s_lshl_b32 s41, s41, 16")
    a(f"s_add_u32 s41, s41, s{S_XF}")
    a(f"s_cmp_eq_u32 s{S_L}, 0")
    a("s_cbranch_scc1 l_nowait")
    a("s_barrier")
    handoff(a, "l_hx", FL_X, S_MB, S_J, layer_delta=-1)
    a("s_barrier")
    a("l_nowait:")
    stamp(a, 1)
    issue_x(a)
    a(f"s_cmp_lt_u32 s{S_R1}, 2")
    a("s_cbranch_scc0 l_stc")
    a(f"s_lshl_b32 s49, s{S_MB}, 7")
    a(f"s_lshl_b32 s39, s{S_R1}, 6")
    a("s_add_u32 s49, s49, s39")
    a("s_lshl_b32 s49, s49, 3")
    a(f"s_add_u32 s49, s49, s{S_ST}")
    a("s_mov_b32 s50, 16384")
    a(f"v_lshlrev_b32 v5, 3, v{V_LANE}")
    a("s_branch l_stl")
    a("l_stc:")
    a(f"s_sub_u32 s49, s{S_R1}, 2")
    a("s_lshl_b32 s49, s49, 1")
    a(f"v_lshrrev_b32 v5, 5, v{V_LANE}")
    a("v_add_u32 v5, s49, v5")
    a("v_min_u32 v5, 2, v5")
    a(f"v_and_b32 v6, 31, v{V_LANE}")
    a("v_lshlrev_b32 v6, 3, v6")
    a("v_lshl_add_u32 v7, v5, 8, v6")
    a("v_lshl_add_u32 v5, v5, 12, v6")
    a(f"s_and_b32 s39, s{S_L}, 1")
    a(f"s_mul_i32 s39, s39, {16*3072*4}")
    a(f"s_lshl_b32 s49, s{S_J}, 8")
    a("s_add_u32 s49, s49, s39")
    a(f"s_add_u32 s49, s49, {hex(WS_CSP)}")
    a(f"s_mov_b32 s50, {3072*4}")
    a("l_stl:")
    for i in range(16):
        a(f"buffer_load_dwordx2 {v(16+2*i,2)}, v5, s[8:11], s49 offen sc1")
        if i < 15: a("s_add_u32 s49, s49, s50")
    srd(a, 16, S_AWPHI, 32*32*32*2)
    a(f"s_lshl_b32 s49, s{S_J}, 12")
    a(f"s_lshl_b32 s39, s{S_R1}, 10")
    a("s_add_u32 s49, s49, s39")
    a(f"s_add_u32 m0, s39, {L_WPHI}")
    a("s_nop 0")
    a("buffer_load_dwordx4 v2, s[16:19], s49 offen lds")
    issue_x(a); issue_x(a)
    a("s_waitcnt vmcnt(25)")
    a("s_barrier")
    a("s_waitcnt vmcnt(8)")
    for i in range(1, 16):
        a(f"v_add_f32 v16, v16, v{16+2*i}")
        a(f"v_add_f32 v17, v17, v{17+2*i}")
    a(f"s_cmp_lt_u32 s{S_R1}, 2")
    a("s_cbranch_scc0 l_stc2")
    a(f"v_mul_f32 v16, {f32(1.0/1024)}, v16")
    a(f"v_mul_f32 v17, {f32(1.0/1024)}, v17")
    a("v_fma_f32 v17, -v16, v16, v17")
    a("v_max_f32 v17, 0, v17")
    a(f"v_add_f32 v17, {f32(1e-5)}, v17")
    a("v_rsq_f32 v17, v17")
    a("v_sub_f32 v16, 0, v16")
    a(f"s_lshl_b32 s39, s{S_R1}, 8")
    a(f"v_lshlrev_b32 v5, 2, v{V_LANE}")
    a("v_add_u32 v5, s39, v5")
    a(f"v_add_u32 v5, {L_NM}, v5")
    a("ds_write_b32 v5, v16")
    a("ds_write_b32 v5, v17 offset:512")
    a("s_branch l_std")
    a("l_stc2:")
    a(f"v_add_u32 v7, {L_CS}, v7")
    a("ds_write_b64 v7, v[16:17]")
    a("l_std:")
    a("s_waitcnt lgkmcnt(0)")
    a("s_waitcnt vmcnt(4)")
    a("s_barrier")
    issue_x(a); issue_w(a)
    a("s_mov_b32 s49, 12")
    a("l_loop:")
    a("s_waitcnt vmcnt(10)")
    a("s_barrier")
    issue_x(a); issue_w(a)
    a("s_sub_u32 s49, s49, 1")
    a("s_cmp_lg_u32 s49, 0")
    a("s_cbranch_scc1 l_loop")
    a("s_waitcnt vmcnt(10)")
    a("s_barrier")
    a("s_waitcnt vmcnt(0)")
    a("s_barrier")
    a("s_barrier")
    a(f"s_bitcmp1_b32 s{S_L}, 0")
    a("s_cbranch_scc1 l_B")
    wsrd(a, S_AWO, S_BWO, D_ * D_ * 2)
    a(f"s_lshl_b32 s41, s{S_R1}, 5")
    wo_dma(a, 41, 32)
    a("s_barrier")
    a("s_barrier")
    handoff(a, "l_hkv", FL_KV, S_J, S_MB)
    a("s_barrier")
    a("s_branch kv_reduce")
    a("l_B:")
    a("s_barrier")
    handoff(a, "l_hkvb", FL_KV, S_J, S_MB)
    a("s_barrier")
    a("s_branch attention")
    a("m_entry:")
    a(f"s_lshr_b32 s{S_R1}, s{S_WAVE}, 1")
    a(f"s_and_b32 s{S_R2}, s{S_WAVE}, 1")
    a("m_layer:")
    layer_setup(a)
    a(f"s_lshl_b32 s39, s{S_R1}, 13")
    a(f"v_add_u32 v{VX0}, s39, v{V_L16}")
    L_ = V_LANE
    a(f"v_lshrrev_b32 v5, 5, v{L_}")
    a(f"v_bfe_u32 v6, v{L_}, 2, 2")
    a("v_lshl_add_u32 v5, v5, 2, v6")
    a("v_lshlrev_b32 v5, 7, v5")
    a(f"v_bfe_u32 v6, v{L_}, 4, 1")
    a(f"v_bfe_u32 v7, v{L_}, 1, 1")
    a("v_lshl_add_u32 v6, v6, 1, v7")
    a(f"s_lshl_b32 s39, s{S_R2}, 2")
    a("v_add_u32 v6, s39, v6")
    a(f"v_bfe_u32 v7, v{L_}, 3, 1")
    a("v_lshlrev_b32 v7, 2, v7")
    a("v_xor_b32 v6, v6, v7")
    a("v_lshl_add_u32 v5, v6, 4, v5")
    a(f"v_and_b32 v6, 1, v{L_}")
    a(f"v_lshl_add_u32 v{VW0}, v6, 3, v5")
    a(f"v_mov_b32 v{VX}, v{VX0}")
    a(f"v_mov_b32 v{VW}, v{VW0}")
    for i in range(96): a(f"v_mov_b32 v{ACC+i}, 0")
    a("s_mov_b32 s40, 0")
    a("s_mov_b32 s49, 16")
    a("s_barrier")
    stamp(a, 2)
    p1_reads(a, FA, 0, range(8))
    a("m_loop:")
    p1_sub(a, FA, FB, 1)
    p1_sub(a, FB, FA, 2)
    p1_sub(a, FA, FB, 3)
    p1_sub(a, FB, FA, 0, barrier=True)
    a("s_sub_u32 s49, s49, 1")
    a("s_cmp_lg_u32 s49, 0")
    a("s_cbranch_scc1 m_loop")
    a("s_waitcnt lgkmcnt(0)")
    stamp(a, 3)
    a(f"s_bitcmp1_b32 s{S_L}, 0")
    a("s_cbranch_scc1 m_B")
    m_layer_A(a)
    a("kv_reduce:")
    kv_reduce(a)
    a(f"s_cmp_lt_u32 s{S_WAVE}, 4")
    a("s_cbranch_scc0 l_A2")
    m_layer_A2(a)
    stamp(a, 7)
    a("s_barrier")
    a("s_barrier")
    a("s_branch m_p3")
    a("l_A2:")
    a("s_barrier")
    handoff(a, "l_ho", FL_O, S_MB, S_J)
    a("s_waitcnt vmcnt(0)")
    a("s_barrier")
    a("s_branch l_p3")
    a("m_B:")
    m_layer_B(a)
    stamp(a, 4)
    a("s_barrier")
    a("s_barrier")
    a("attention:")
    attention(a)
    stamp(a, 7)
    a("s_barrier")
    handoff(a, "at_ho", FL_O, S_MB, S_J)
    a("s_waitcnt vmcnt(0)")
    a("s_barrier")
    a(f"s_cmp_lt_u32 s{S_WAVE}, 4")
    a("s_cbranch_scc1 m_p3")
    a("l_p3:")
    a("s_barrier")
    a(f"s_add_u32 s{S_L}, s{S_L}, 1")
    a(f"s_cmp_lt_u32 s{S_L}, 4")
    a("s_cbranch_scc1 l_layer")
    a("s_endpgm")
    a("m_p3:")
    stamp(a, 8)
    m_p3(a)
    kend(a, name)
    return a.text(), kernel_descriptor(name, 256), dict(name=name, grid=256, block=512, lds=MEGA_LDS)
```

```python
import sys
from common import *
import k0, mega
HEADER = """; Kernarg layout (80 bytes): A_x, A_wqkv, A_w_phi, A_wo, B_x, B_wqkv, B_wo, out, debug, ws
"""
def build(path):
    ks = [k0.gen_k0("prep_kernel"), mega.gen_mega("mega_kernel")]
    out = HEADER
    for k in ks:
        m = k[2]
        out += f"; @launch kernel={m['name']} grid=({m['grid']},1,1) block=({m['block']},1,1) lds={m['lds']}\n"
    out += '.amdgcn_target "amdgcn-amd-amdhsa--gfx950"\n.text\n'
    for k in ks:
        pr = check_hazards(k[0])
        if pr:
            print(f"=== hazards in {k[2]['name']}: {len(pr)}")
            for p in pr[:40]: print(p)
        out += k[0]
    out += '.section .rodata,"a"\n'
    for k in ks: out += k[1]
    open(path, "w").write(out)
    print("wrote", path, len(out), "bytes")
if __name__ == "__main__":
    build(sys.argv[1])
```

```python
from common import *

S_MB, S_J, S_WAVE, S_R1, S_R2, S_L = 20, 21, 22, 23, 24, 25
S_AWQKV, S_BWQKV, S_AWO, S_BWO, S_AWPHI, S_OUT = 26, 28, 30, 32, 34, 36
S_XF, S_XFN, S_OF, S_KV, S_ST, S_STN, S_FL, S_ZP = 60, 61, 62, 63, 64, 65, 66, 67
S_L2E = 68
S_N, S_CS = 69, 70
V_LANE, V_L16 = 255, 254
STAGE = 40960
NST = 3
L_SCR0 = 131072
L_NM = L_SCR0
L_RS = L_NM + 512
L_CS = L_NM + 1024
L_WPHI = L_SCR0 + 3072
L_SCR = L_WPHI + 4096
L_SH = [122880, L_SCR + 4096, L_SCR + 16384 + 1024]
MEGA_LDS = 163840
assert L_SH[2] + 8192 <= MEGA_LDS
SPIN = 1 << 16

class Ctx:
    pass

def stamp(a, k):
    if not STAMP: return
    a("s_memrealtime s[96:97]")
    a(f"s_lshl_b32 s91, s{S_L}, 4")
    a(f"s_add_u32 s91, s91, {k}")
    a("s_lshl_b32 s91, s91, 14")
    a("s_add_u32 s91, s91, s90")
    a("s_waitcnt lgkmcnt(0)")
    a("s_mov_b64 s[98:99], exec")
    a("s_mov_b64 exec, 1")
    a("v_mov_b32 v253, s96")
    a("v_mov_b32 v252, 0")
    a("buffer_store_dword v253, v252, s[8:11], s91 offen")
    a("s_mov_b64 exec, s[98:99]")

def layer_setup(a):
    a(f"s_lshl_b32 s38, s{S_L}, 22")
    a(f"s_add_u32 s{S_XF}, s38, {hex(WS_XF)}" if WS_XF else f"s_mov_b32 s{S_XF}, s38")
    a(f"s_add_u32 s{S_XFN}, s{S_XF}, 0x400000")
    a(f"s_add_u32 s{S_OF}, s38, {hex(WS_OF)}")
    a(f"s_lshl_b32 s38, s{S_L}, 18")
    a(f"s_add_u32 s{S_ST}, s38, {hex(WS_STATS)}")
    a(f"s_add_u32 s{S_STN}, s{S_ST}, 0x40000")
    a(f"s_mul_i32 s38, s{S_L}, 0x1800")
    a(f"s_add_u32 s{S_FL}, s38, {hex(WS_FLAGS + 0x1800)}")
    a(f"s_and_b32 s38, s{S_L}, 1")
    a("s_mul_i32 s38, s38, 768")
    a(f"s_add_u32 s{S_CS}, s38, {L_CS}")
    a(f"s_lshr_b32 s39, s{S_L}, 1")
    a(f"s_lshl_b32 s38, s39, 17")
    a(f"s_add_u32 s{S_ZP}, s38, {hex(WS_ZP)}")
    a(f"s_lshl_b32 s38, s39, 21")
    a(f"s_add_u32 s38, s38, {hex(WS_KVP)}")
    a(f"s_lshl_b32 s39, s39, 23")
    a(f"s_add_u32 s39, s39, {hex(WS_KVF)}")
    a(f"s_bitcmp1_b32 s{S_L}, 0")
    a(f"s_cselect_b32 s{S_KV}, s39, s38")

def wsrd(a, pa, pb, nbytes):
    a(f"s_bitcmp1_b32 s{S_L}, 0")
    a(f"s_cselect_b32 s12, s{pb}, s{pa}")
    a(f"s_cselect_b32 s13, s{pb+1}, s{pa+1}")
    a("s_and_b32 s13, s13, 0xffff")
    a(f"s_mov_b32 s14, {hex(nbytes)}")
    a("s_mov_b32 s15, 0x20000")

def signal(a, sflag, sidx):
    a(f"s_lshl_b32 s39, s{sidx}, 3")
    a("v_mov_b32 v250, s39")
    a(f"v_mov_b32 v248, s{S_N}")
    a(f"v_not_b32 v249, v248")
    a("s_mov_b64 exec, 1")
    a(f"buffer_store_dwordx2 v[248:249], v250, s[8:11], s{sflag} offen sc1")
    a("s_mov_b64 exec, -1")

_poll_n = [0]
NPOLL = int(os.environ.get('NPOLL', '3'))
def poll(a, sflag):
    n = _poll_n[0]; _poll_n[0] += 1
    a(f"v_and_b32 v250, 15, v{V_LANE}")
    a("v_lshlrev_b32 v250, 3, v250")
    a(f"s_mov_b32 s39, {SPIN}")
    a(f"s_not_b32 s37x, s{S_N}".replace("s37x", "s71"))
    regs = [248, 246, 244][:NPOLL]
    for i, r in enumerate(regs):
        a(f"buffer_load_dwordx2 {v(r,2)}, v250, s[8:11], s{sflag} offen sc1")
        if i < NPOLL - 1: a("s_sleep 3")
    a(f"poll{n}:")
    for r in regs:
        a(f"s_waitcnt vmcnt({NPOLL-1})")
        a(f"v_cmp_eq_u32 vcc, s{S_N}, v{r}")
        a(f"v_cmp_eq_u32 s[72:73], s71, v{r+1}")
        a("s_nop 0")
        a("s_and_b64 vcc, vcc, s[72:73]")
        a("s_cmp_eq_u64 vcc, exec")
        a(f"s_cbranch_scc1 poll{n}_done")
        a(f"buffer_load_dwordx2 {v(r,2)}, v250, s[8:11], s{sflag} offen sc1")
    a("s_sub_u32 s39, s39, 1")
    a("s_cmp_lg_u32 s39, 0")
    a(f"s_cbranch_scc1 poll{n}")
    a(f"poll{n}_done:")

def handoff(a, lbl, ftype, sgroup, sidx, layer_delta=0, wave=4, do_signal=True, do_poll=True):
    a(f"s_cmp_eq_u32 s{S_WAVE}, {wave}")
    a(f"s_cbranch_scc0 {lbl}")
    a(f"s_lshl_b32 s38, s{sgroup}, 7")
    a(f"s_add_u32 s38, s38, s{S_FL}")
    off = ftype + layer_delta * 0x1800
    if off > 0: a(f"s_add_u32 s38, s38, {off}")
    if off < 0: a(f"s_sub_u32 s38, s38, {-off}")
    if do_signal: signal(a, 38, sidx)
    if do_poll: poll(a, 38)
    a(f"{lbl}:")

ACC = 0
FA, FB = 96, 116
VX, VW, VX0, VW0 = 136, 137, 138, 139
def acc(p, mi): return ACC + (p * 2 + mi) * 16

def p1_reads(a, fs, ks, which):
    def rd(n):
        if n == 0: return f"ds_read_b128 {v(fs,4)}, v{VX} offset:{ks*1024}"
        if n == 3: return f"ds_read_b128 {v(fs+4,4)}, v{VX} offset:{4096+ks*1024}"
        p, t = {1:(0,0),2:(0,1),4:(1,0),5:(1,1),6:(2,0),7:(2,1)}[n]
        return f"ds_read_b64_tr_b16 {v(fs+8+4*p+2*t,2)}, v{VW} offset:{16384+p*8192+ks*2048+t*1024}"
    for n in which: a(rd(n))

def p1_sub(a, cur, nxt, nks, barrier=False):
    x0, x1, wq, wk, wv = cur, cur+4, cur+8, cur+12, cur+16
    def mf(d, A, B):
        if os.environ.get("M16EXP"):
            a(f"{M16} {v(d,4)}, {v(A,4)}, {v(B,4)}, {v(d,4)}")
            a(f"{M16} {v(d+8,4)}, {v(A,4)}, {v(B,4)}, {v(d+8,4)}")
        else:
            a(f"{M32} {v(d,16)}, {v(A,4)}, {v(B,4)}, {v(d,16)}")
    if barrier:
        a("s_waitcnt lgkmcnt(0)")
        a("s_barrier")
        a(f"s_add_u32 s40, s40, {STAGE}")
        a(f"s_cmp_eq_u32 s40, {NST*STAGE}")
        a("s_cselect_b32 s40, 0, s40")
        a(f"v_add_u32 v{VX}, s40, v{VX0}")
        a(f"v_add_u32 v{VW}, s40, v{VW0}")
    else:
        a("s_waitcnt lgkmcnt(5)")
    mf(acc(0,0), wq, x0)
    p1_reads(a, nxt, nks, [0, 1])
    if not barrier: a("s_waitcnt lgkmcnt(6)")
    mf(acc(0,1), wq, x1)
    p1_reads(a, nxt, nks, [2, 3])
    if not barrier: a("s_waitcnt lgkmcnt(6)")
    mf(acc(1,0), wk, x0)
    p1_reads(a, nxt, nks, [4, 5])
    mf(acc(1,1), wk, x1)
    p1_reads(a, nxt, nks, [6, 7])
    if not barrier: a("s_waitcnt lgkmcnt(8)")
    mf(acc(2,0), x0, wv)
    mf(acc(2,1), x1, wv)

ROT = os.environ.get("ROT", "none")
def issue_x(a, fill=None):
    a("s_lshl_b32 s41, s56, 12")
    a("s_add_u32 s41, s41, s58")
    a("s_add_u32 m0, s45, s47")
    a("s_add_u32 s56, s56, 1")
    a("s_and_b32 s56, s56, 15")
    for ks in range(4):
        a(f"buffer_load_dwordx4 v2, s[8:11], s41 offen offset:{ks*1024} sc1 lds")
        if fill: fill()
    a(f"s_add_u32 s45, s45, {STAGE}")
    a(f"s_cmp_eq_u32 s45, {NST*STAGE}")
    a("s_cselect_b32 s45, 0, s45")

def issue_w(a, fill=None):
    a(f"s_mul_i32 s42, s57, {64*6144}")
    a("s_add_u32 s42, s42, s59")
    a("s_add_u32 s57, s57, 1")
    a("s_and_b32 s57, s57, 15")
    a("s_add_u32 s44, s46, s48")
    for p in range(3):
        for q in range(2):
            a(f"s_add_u32 m0, s44, {p*8192+q*1024}")
            a(f"s_add_u32 s43, s42, {p*2048+q*8*6144}")
            a("buffer_load_dwordx4 v3, s[12:15], s43 offen lds")
            if fill: fill()
    a(f"s_add_u32 s46, s46, {STAGE}")
    a(f"s_cmp_eq_u32 s46, {NST*STAGE}")
    a("s_cselect_b32 s46, 0, s46")

WPF = int(os.environ.get("WPF", "0"))
PFD = int(os.environ.get("PFD", "6"))
def m_w_prefetch(a, sstage, lbl):
    a(f"s_mul_i32 s43, s{sstage}, {64*6144}")
    a("s_add_u32 s43, s43, s45")
    n = 0
    for q in range(2):
        for p in range(3):
            a(f"s_add_u32 s44, s43, {q*8*6144 + p*2048}")
            a(f"buffer_load_dwordx4 {v(196+4*n,4)}, v220, s[12:15], s44 offen")
            n += 1
PFMOD = os.environ.get("PFMOD", "")
def w_prefetch(a, srow0, nrows, vdst, vtmp):
    a(f"s_bitcmp1_b32 s{S_L}, 0")
    a(f"s_cselect_b32 s16, s{S_AWQKV}, s{S_BWQKV}")
    a(f"s_cselect_b32 s17, s{S_AWQKV+1}, s{S_BWQKV+1}")
    a("s_and_b32 s17, s17, 0xffff")
    a(f"s_mov_b32 s18, {hex(D_*3*D_*2)}")
    a("s_mov_b32 s19, 0x20000")
    a(f"v_lshrrev_b32 v{vtmp}, 3, v{V_LANE}")
    a(f"v_mul_u32_u24 v{vtmp}, 6144, v{vtmp}")
    a(f"v_and_b32 v{vtmp+1}, 7, v{V_LANE}")
    a(f"v_lshl_add_u32 v{vtmp}, v{vtmp+1}, 4, v{vtmp}")
    a(f"s_mul_i32 s43, s{srow0}, 6144")
    a(f"s_lshl_b32 s44, s{S_J}, 7")
    a("s_add_u32 s43, s43, s44")
    n = 0
    for g in range(nrows // 8):
        for p in range(3):
            a(f"s_add_u32 s44, s43, {g*8*6144 + p*2048}")
            a(f"buffer_load_dwordx4 {v(vdst+4*n,4)}, v{vtmp}, s[16:19], s44 offen {PFMOD}")
            n += 1

def wo_voff(a, vd=5, t0=6, t1=7):
    a(f"v_lshrrev_b32 v{vd}, 3, v{V_LANE}")
    a(f"v_lshlrev_b32 v{t0}, 11, v{vd}")
    a(f"v_and_b32 v{vd}, 7, v{V_LANE}")
    a(f"v_bfe_u32 v{t1}, v{V_LANE}, 4, 1")
    a(f"v_lshlrev_b32 v{t1}, 2, v{t1}")
    a(f"v_xor_b32 v{vd}, v{vd}, v{t1}")
    a(f"v_lshl_add_u32 v{vd}, v{vd}, 4, v{t0}")

def wo_dma(a, first_piece_sgpr, n, vd=5):
    a(f"s_lshl_b32 s43, s{first_piece_sgpr}, 14")
    a(f"s_lshl_b32 s44, s{S_J}, 7")
    a("s_add_u32 s43, s43, s44")
    a(f"s_lshl_b32 s44, s{first_piece_sgpr}, 10")
    for i in range(n):
        a("s_mov_b32 m0, s44")
        a("s_add_u32 s44, s44, 1024")
        a(f"buffer_load_dwordx4 v{vd}, s[12:15], s43 offen lds")
        if i < n - 1: a("s_add_u32 s43, s43, 16384")

CSACC, CSF, CSV0, CSONE = 48, 56, 8, 10
def csflag(a):
    a(f"s_and_b32 s38, s{S_L}, 1")
    a(f"s_mul_i32 s38, s38, {FL_O - FL_KV}")
    a(f"s_lshl_b32 s39, s{S_J}, 7")
    a("s_add_u32 s38, s38, s39")
    a(f"s_add_u32 s38, s38, {hex(WS_FLAGS + FL_KV)}")

def colsum_setup(a):
    L_ = V_LANE
    a(f"v_lshrrev_b32 v11, 5, v{L_}")
    a(f"v_bfe_u32 v12, v{L_}, 2, 2")
    a("v_lshl_add_u32 v11, v11, 2, v12")
    a("v_lshlrev_b32 v11, 7, v11")
    a(f"v_bfe_u32 v12, v{L_}, 4, 1")
    a(f"v_bfe_u32 v13, v{L_}, 1, 1")
    a("v_lshl_add_u32 v12, v12, 1, v13")
    a(f"v_bfe_u32 v13, v{L_}, 3, 1")
    a("v_lshlrev_b32 v13, 2, v13")
    a("v_xor_b32 v12, v12, v13")
    a("v_lshl_add_u32 v11, v12, 4, v11")
    a(f"v_and_b32 v12, 1, v{L_}")
    a("v_lshl_add_u32 v11, v12, 3, v11")
    a(f"s_lshl_b32 s39, s{S_R1}, 11")
    a("s_add_u32 s39, s39, 16384")
    a(f"v_add_u32 v{CSV0}, s39, v11")
    a(f"v_xor_b32 v{CSV0+1}, 64, v{CSV0}")
    a(f"v_mov_b32 v{CSONE}, {hex(ONES_BF16)}")
    for i in range(6): a(f"v_mov_b32 v{CSACC+i}, 0")
    a("s_mov_b32 s51, 0")

def colsum_stage(a, lbl):
    a(f"s_cmp_lt_u32 s{S_L}, 2")
    a(f"s_cbranch_scc0 {lbl}")
    a(f"v_add_u32 v12, s51, v{CSV0}")
    a(f"v_add_u32 v13, s51, v{CSV0+1}")
    for p in range(3):
        for hd in range(2):
            for t in range(2):
                a(f"ds_read_b64_tr_b16 {v(CSF+(p*2+hd)*4+2*t,2)}, v{12+hd} offset:{p*8192+t*1024}")
    a(f"s_add_u32 s51, s51, {STAGE}")
    a(f"s_cmp_eq_u32 s51, {NST*STAGE}")
    a("s_cselect_b32 s51, 0, s51")
    a("s_waitcnt lgkmcnt(0)")
    for q in range(4):
        for f in range(6):
            a(f"v_dot2c_f32_bf16 v{CSACC+f}, v{CSF+f*4+q}, v{CSONE}")
    a(f"{lbl}:")

def colsum_reads(a):
    a(f"v_add_u32 v12, s51, v{CSV0}")
    a(f"v_add_u32 v13, s51, v{CSV0+1}")
    for p in range(3):
        for hd in range(2):
            for t in range(2):
                a(f"ds_read_b64_tr_b16 {v(CSF+(p*2+hd)*4+2*t,2)}, v{12+hd} offset:{p*8192+t*1024}")
    a(f"s_add_u32 s51, s51, {STAGE}")
    a(f"s_cmp_eq_u32 s51, {NST*STAGE}")
    a("s_cselect_b32 s51, 0, s51")

def colsum_filler(a):
    st = {"n": 0, "k": 0}
    ops = [(f, q) for q in range(4) for f in range(6)]
    def fill():
        st["n"] += 1
        if st["n"] < 3: return
        if st["n"] == 3: a("s_waitcnt lgkmcnt(0)")
        for _ in range(3):
            if st["k"] < 24:
                f, q = ops[st["k"]]; st["k"] += 1
                a(f"v_dot2c_f32_bf16 v{CSACC+f}, v{CSF+f*4+q}, v{CSONE}")
    return fill

def issue_stage(a, cs):
    if cs:
        colsum_reads(a)
        f = colsum_filler(a)
        issue_x(a, f); issue_w(a, f)
    else:
        issue_x(a); issue_w(a)

def colsum_finish(a, lbl):
    a(f"s_cmp_lt_u32 s{S_L}, 2")
    a(f"s_cbranch_scc0 {lbl}")
    a("s_nop 2")
    for f in range(6): a(f"v_mov_b32 v{56+f}, v{CSACC+f}")
    a("s_nop 1")
    for f in range(6): a(f"v_permlane32_swap_b32 v{CSACC+f}, v{56+f}")
    a("s_nop 1")
    for f in range(6): a(f"v_add_f32 v{CSACC+f}, v{CSACC+f}, v{56+f}")
    a(f"v_and_b32 v12, 31, v{V_LANE}")
    a("v_lshlrev_b32 v12, 2, v12")
    a(f"v_add_u32 v12, s{S_CS}, v12")
    a("s_mov_b64 exec, 0xffffffff")
    for p in range(3):
        for hd in range(2):
            a(f"ds_add_f32 v12, v{CSACC+p*2+hd} offset:{p*256+hd*128}")
    a("s_mov_b64 exec, -1")
    a("s_waitcnt lgkmcnt(0)")
    a(f"{lbl}:")

T1 = 158
def load_stats_T(a, dst_nm, dst_rs, t=148):
    a(f"v_and_b32 v{t}, 31, v{V_LANE}")
    a(f"s_lshl_b32 s39, s{S_R1}, 8")
    a(f"v_lshlrev_b32 v{t}, 2, v{t}")
    a(f"v_add_u32 v{t}, s39, v{t}")
    a(f"v_add_u32 v{t}, {L_NM}, v{t}")
    for mi in range(2):
        a(f"ds_read_b32 v{dst_nm+2*mi}, v{t} offset:{mi*128}")
        a(f"ds_read_b32 v{dst_rs+2*mi}, v{t} offset:{512+mi*128}")

def load_cs_T(a, p, dst, t=149):
    a(f"v_lshrrev_b32 v{t}, 5, v{V_LANE}")
    a(f"v_lshlrev_b32 v{t}, 4, v{t}")
    a(f"s_lshl_b32 s39, s{S_R2}, 7")
    a(f"s_add_u32 s39, s39, s{S_CS}")
    a(f"v_add_u32 v{t}, s39, v{t}")
    for g in range(4):
        a(f"ds_read_b128 {v(dst+4*g,4)}, v{t} offset:{p*256+g*32}")

def norm_T(a, ac, cs, nm, rs):
    for r in range(8):
        a(f"v_pk_fma_f32 {v(ac+2*r,2)}, {v(cs+2*r,2)}, {v(nm,2)}, {v(ac+2*r,2)} op_sel_hi:[1,0,1]")
    for r in range(8):
        a(f"v_pk_mul_f32 {v(ac+2*r,2)}, {v(ac+2*r,2)}, {v(rs,2)} op_sel_hi:[1,0]")

def pack(a, ac, dst):
    for r in range(8):
        a(f"v_cvt_pk_bf16_f32 v{dst+r}, v{ac+2*r}, v{ac+2*r+1}")

def load_stats_F(a, mi, dst_nm, dst_rs, t=144):
    a(f"v_lshrrev_b32 v{t}, 5, v{V_LANE}")
    a(f"v_lshlrev_b32 v{t}, 4, v{t}")
    a(f"s_lshl_b32 s39, s{S_R1}, 8")
    a(f"v_add_u32 v{t}, s39, v{t}")
    a(f"v_add_u32 v{t}, {L_NM}, v{t}")
    for g in range(4):
        a(f"ds_read_b128 {v(dst_nm+4*g,4)}, v{t} offset:{mi*128+g*32}")
        a(f"ds_read_b128 {v(dst_rs+4*g,4)}, v{t} offset:{512+mi*128+g*32}")

def load_cs_F(a, dst, t=145):
    a(f"v_and_b32 v{t}, 31, v{V_LANE}")
    a(f"v_lshlrev_b32 v{t}, 2, v{t}")
    a(f"s_lshl_b32 s39, s{S_R2}, 7")
    a(f"s_add_u32 s39, s39, s{S_CS}")
    a(f"v_add_u32 v{t}, s39, v{t}")
    a(f"ds_read_b32 v{dst}, v{t} offset:512")

def norm_F(a, ac, cs, nm, rs):
    for r in range(8):
        a(f"v_pk_fma_f32 {v(ac+2*r,2)}, {v(nm+2*r,2)}, {v(cs,2)}, {v(ac+2*r,2)} op_sel_hi:[1,0,1]")
    for r in range(8):
        a(f"v_pk_mul_f32 {v(ac+2*r,2)}, {v(ac+2*r,2)}, {v(rs+2*r,2)}")

def wphi_load(a, dst, t0, t1):
    a(f"v_lshrrev_b32 v{t0}, 5, v{V_LANE}")
    a(f"v_bfe_u32 v{t1}, v{V_LANE}, 2, 2")
    a(f"v_lshl_add_u32 v{t0}, v{t0}, 2, v{t1}")
    a(f"v_lshlrev_b32 v{t0}, 6, v{t0}")
    a(f"v_bfe_u32 v{t1}, v{V_LANE}, 4, 1")
    a(f"v_lshl_add_u32 v{t0}, v{t1}, 5, v{t0}")
    a(f"v_and_b32 v{t1}, 3, v{V_LANE}")
    a(f"v_lshl_add_u32 v{t1}, v{t1}, 3, v{t0}")
    a(f"s_lshl_b32 s39, s{S_R2}, 11")
    a(f"s_add_u32 s39, s39, {L_WPHI}")
    a(f"v_add_u32 v{t1}, s39, v{t1}")
    for t in range(2):
        for tp in range(2):
            a(f"ds_read_b64_tr_b16 {v(dst+4*t+2*tp,2)}, v{t1} offset:{(16*t+8*tp)*64}")

def softmax_pm(a, PD, EN, PT, T):
    sL = S_L2E
    mx, mn, t1, t2, sp, sn = T, T+1, T+2, T+3, T+4, T+6
    a(f"v_max3_f32 v{mx}, v{PD}, v{PD+1}, v{PD+2}")
    a(f"v_min3_f32 v{mn}, v{PD}, v{PD+1}, v{PD+2}")
    for i in range(3, 15, 2):
        a(f"v_max3_f32 v{mx}, v{mx}, v{PD+i}, v{PD+i+1}")
        a(f"v_min3_f32 v{mn}, v{mn}, v{PD+i}, v{PD+i+1}")
    a(f"v_max_f32 v{mx}, v{mx}, v{PD+15}")
    a(f"v_min_f32 v{mn}, v{mn}, v{PD+15}")
    a(f"v_mov_b32 v{t1}, v{mx}")
    a(f"v_mov_b32 v{t2}, v{mn}")
    a("s_nop 1")
    a(f"v_permlane32_swap_b32 v{mx}, v{t1}")
    a(f"v_permlane32_swap_b32 v{mn}, v{t2}")
    a("s_nop 1")
    a(f"v_max_f32 v{mx}, v{mx}, v{t1}")
    a(f"v_min_f32 v{mn}, v{mn}, v{t2}")
    a(f"v_mul_f32 v{mx}, s{sL}, v{mx}")
    a(f"v_mul_f32 v{mn}, s{sL}, v{mn}")
    for r in range(16): a(f"v_fma_f32 v{EN+r}, -v{PD+r}, s{sL}, v{mn}")
    for r in range(16): a(f"v_fma_f32 v{PD+r}, v{PD+r}, s{sL}, -v{mx}")
    for r in range(16): a(f"v_exp_f32 v{EN+r}, v{EN+r}")
    for r in range(16): a(f"v_exp_f32 v{PD+r}, v{PD+r}")
    a(f"v_pk_add_f32 {v(sn,2)}, {v(EN,2)}, {v(EN+2,2)}")
    for r in range(2, 8): a(f"v_pk_add_f32 {v(sn,2)}, {v(sn,2)}, {v(EN+2*r,2)}")
    a(f"v_pk_add_f32 {v(sp,2)}, {v(PD,2)}, {v(PD+2,2)}")
    for r in range(2, 8): a(f"v_pk_add_f32 {v(sp,2)}, {v(sp,2)}, {v(PD+2*r,2)}")
    a(f"v_add_f32 v{sn}, v{sn}, v{sn+1}")
    a(f"v_add_f32 v{sp}, v{sp}, v{sp+1}")
    a(f"v_mov_b32 v{t1}, v{sp}")
    a(f"v_mov_b32 v{t2}, v{sn}")
    a("s_nop 1")
    a(f"v_permlane32_swap_b32 v{sp}, v{t1}")
    a(f"v_permlane32_swap_b32 v{sn}, v{t2}")
    a("s_nop 1")
    a(f"v_add_f32 v{sp}, v{sp}, v{t1}")
    a(f"v_add_f32 v{sn}, v{sn}, v{t2}")
    a(f"v_rcp_f32 v{sp}, v{sp}")
    a(f"v_rcp_f32 v{sn}, v{sn}")
    a("s_nop 0")
    for r in range(8): a(f"v_pk_mul_f32 {v(PD+2*r,2)}, {v(PD+2*r,2)}, {v(sp,2)} op_sel_hi:[1,0]")
    for r in range(8): a(f"v_pk_mul_f32 {v(EN+2*r,2)}, {v(EN+2*r,2)}, {v(sn,2)} op_sel_hi:[1,0]")
    for r in range(8): a(f"v_cvt_pk_bf16_f32 v{PT+r}, v{PD+2*r}, v{PD+2*r+1}")
    for r in range(8): a(f"v_cvt_pk_bf16_f32 v{PT+8+r}, v{EN+2*r}, v{EN+2*r+1}")

NM, RS = 150, 154
CSV, CSQ, CSK, FNM, FRS = 162, 164, 180, 196, 212

def head_tb(a):
    a(f"s_lshl_b32 s50, s{S_J}, 1")
    a(f"s_add_u32 s50, s50, s{S_R2}")
    a(f"s_lshl_b32 s51, s{S_MB}, 2")
    a(f"s_lshl_b32 s39, s{S_R1}, 1")
    a("s_add_u32 s51, s51, s39")

def m_layer_A(a):
    PD, EN = 32, 48
    KVA_, TD, PF = 64, [96, 112], [128, 136]
    ONES = [144, 158]
    PT0, PT1, ZA = 164, 180, 180
    KT, WPH, I0, VF, T = 196, 212, 220, 228, 246
    load_stats_T(a, NM, RS)
    load_cs_T(a, 1, CSK)
    load_cs_F(a, CSV)
    load_stats_F(a, 0, FNM, FRS)
    head_tb(a)
    a("s_waitcnt lgkmcnt(0)")
    norm_F(a, acc(2, 0), CSV, FNM, FRS)
    load_stats_F(a, 1, FNM, FRS)
    pack(a, acc(2, 0), VF)
    for mi in range(2): norm_T(a, acc(1, mi), CSK, NM + 2*mi, RS + 2*mi)
    a("s_waitcnt lgkmcnt(0)")
    norm_F(a, acc(2, 1), CSV, FNM, FRS)
    pack(a, acc(2, 1), VF + 8)
    for mi in range(2): pack(a, acc(1, mi), KT + 8*mi)
    wphi_load(a, WPH, 148, 149)
    n4, hh, jj, val = 144, 145, 146, 147
    a(f"v_bfe_u32 v{n4}, v{V_LANE}, 2, 1")
    a(f"v_lshrrev_b32 v{hh}, 5, v{V_LANE}")
    a(f"v_cmp_eq_u32 vcc, v{n4}, v{hh}")
    a(f"v_bfe_u32 v{jj}, v{V_LANE}, 3, 1")
    a(f"v_lshlrev_b32 v{jj}, 2, v{jj}")
    a(f"v_and_b32 v{n4}, 3, v{V_LANE}")
    a(f"v_add_u32 v{jj}, v{jj}, v{n4}")
    a(f"v_and_b32 v{n4}, 1, v{jj}")
    a(f"v_lshlrev_b32 v{n4}, 4, v{n4}")
    a(f"v_mov_b32 v{val}, 0x3f80")
    a(f"v_lshlrev_b32 v{val}, v{n4}, v{val}")
    a(f"v_cndmask_b32 v{val}, 0, v{val}, vcc")
    a(f"v_lshrrev_b32 v{jj}, 1, v{jj}")
    a(f"v_bfe_u32 v{hh}, v{V_LANE}, 4, 1")
    a(f"v_lshl_add_u32 v{jj}, v{hh}, 2, v{jj}")
    for k in range(8):
        a(f"v_cmp_eq_u32 vcc, {k}, v{jj}")
        a("s_nop 1")
        a(f"v_cndmask_b32 v{I0+k}, 0, v{val}, vcc")
    a(f"v_cmp_eq_u32 vcc, 0, v{hh}")
    a(f"v_mov_b32 v{val}, {hex(ONES_BF16)}")
    a("s_nop 0")
    a(f"v_cndmask_b32 v148, 0, v{val}, vcc")
    a(f"v_sub_u32 v149, v{val}, v148")
    for k in range(4):
        a(f"v_mov_b32 v{ONES[0]+k}, v148")
        a(f"v_mov_b32 v{ONES[1]+k}, v149")
    a("s_waitcnt lgkmcnt(0)")
    for mi in range(2):
        a(f"{M32} {v(PD,16)}, {v(WPH,4)}, {v(KT+8*mi,4)}, 0")
        a(f"{M32} {v(PD,16)}, {v(WPH+4,4)}, {v(KT+8*mi+4,4)}, {v(PD,16)}")
        a("s_nop 11")
        softmax_pm(a, PD, EN, PT0, T)
        a("s_nop 1")
        for fb in range(2):
            a(f"{M32} {v(TD[fb],16)}, {v(PT0+8*fb,4)}, {v(I0,4)}, 0")
            a(f"{M32} {v(TD[fb],16)}, {v(PT0+8*fb+4,4)}, {v(I0+4,4)}, {v(TD[fb],16)}")
        a("s_nop 10")
        pack(a, TD[0], PF[0])
        pack(a, TD[1], PF[1])
        a("s_nop 1")
        for fb in range(2):
            for tt in range(2):
                c = "0" if (mi == 0 and tt == 0) else v(KVA_+16*fb,16)
                a(f"{M32} {v(KVA_+16*fb,16)}, {v(PF[fb]+4*tt,4)}, {v(VF+8*mi+4*tt,4)}, {c}")
        for fb in range(2):
            for tt in range(2):
                c = "0" if (mi == 0 and tt == 0 and fb == 0) else v(ZA,16)
                a(f"{M32} {v(ZA,16)}, {v(PF[fb]+4*tt,4)}, {v(ONES[fb],4)}, {c}")
    a("s_nop 15")
    stamp(a, 4)
    t = 148
    a(f"s_lshl_b32 s39, s{S_R2}, 13")
    a(f"s_add_u32 s39, s39, {L_SCR}")
    a(f"v_add_u32 v{t}, s39, v{V_L16}")
    a(f"v_lshrrev_b32 v149, 4, v{V_LANE}")
    a("v_lshlrev_b32 v149, 6, v149")
    a(f"s_lshl_b32 s39, s{S_R2}, 8")
    a(f"s_add_u32 s39, s39, {L_SCR+16384}")
    a("v_add_u32 v149, s39, v149")
    a(f"s_cmp_eq_u32 s{S_R1}, 0")
    a("s_cbranch_scc1 mA_red0")
    for q in range(8):
        a(f"ds_write_b128 v{t}, {v(KVA_+4*q,4)} offset:{q*1024}")
    a("s_mov_b32 exec_lo, 0x00010001")
    a("s_mov_b32 exec_hi, 0x00010001")
    for q in range(4):
        a(f"ds_write_b128 v149, {v(ZA+4*q,4)} offset:{q*16}")
    a("s_mov_b64 exec, -1")
    a("s_waitcnt lgkmcnt(0)")
    a("s_barrier")
    a("s_branch mA_red1")
    a("mA_red0:")
    a("s_barrier")
    for q in range(8):
        a(f"ds_read_b128 {v(96+4*q,4)}, v{t} offset:{q*1024}")
    for q in range(4):
        a(f"ds_read_b128 {v(128+4*q,4)}, v149 offset:{q*16}")
    a("s_waitcnt lgkmcnt(0)")
    for r in range(16): a(f"v_pk_add_f32 {v(KVA_+2*r,2)}, {v(KVA_+2*r,2)}, {v(96+2*r,2)}")
    for r in range(8): a(f"v_pk_add_f32 {v(ZA+2*r,2)}, {v(ZA+2*r,2)}, {v(128+2*r,2)}")
    for r in range(16): a(f"v_cvt_pk_bf16_f32 v{96+r}, v{KVA_+2*r}, v{KVA_+2*r+1}")
    a("s_lshl_b32 s52, s50, 4")
    a(f"s_add_u32 s52, s52, s{S_MB}")
    a("s_lshl_b32 s53, s52, 12")
    a(f"s_add_u32 s53, s53, s{S_KV}")
    for u in range(4):
        a(f"buffer_store_dwordx4 {v(96+4*u,4)}, v{V_L16}, s[8:11], s53 offen offset:{u*1024} sc1")
    a("s_lshl_b32 s53, s52, 8")
    a(f"s_add_u32 s53, s53, s{S_ZP}")
    a(f"v_bfe_u32 v148, v{V_LANE}, 4, 1")
    a("v_lshlrev_b32 v148, 7, v148")
    a(f"v_lshrrev_b32 v149, 5, v{V_LANE}")
    a("v_lshl_add_u32 v148, v149, 6, v148")
    a("s_mov_b32 exec_lo, 0x00010001")
    a("s_mov_b32 exec_hi, 0x00010001")
    for q in range(4):
        a(f"buffer_store_dwordx4 {v(ZA+4*q,4)}, v148, s[8:11], s53 offen offset:{q*16} sc1")
    a("s_mov_b64 exec, -1")
    a("s_waitcnt vmcnt(0)")
    a("mA_red1:")
    a("s_barrier")
    stamp(a, 5)
    load_cs_T(a, 0, CSQ)
    a("s_waitcnt lgkmcnt(0)")
    for mi in range(2): norm_T(a, acc(0, mi), CSQ, NM + 2*mi, RS + 2*mi)
    for mi in range(2): pack(a, acc(0, mi), KT + 8*mi)
    a("s_nop 1")
    for mi in range(2):
        a(f"{M32} {v(PD,16)}, {v(WPH,4)}, {v(KT+8*mi,4)}, 0")
        a(f"{M32} {v(PD,16)}, {v(WPH+4,4)}, {v(KT+8*mi+4,4)}, {v(PD,16)}")
        a("s_nop 11")
        softmax_pm(a, PD, EN, PT0 if mi == 0 else PT1, T)
    stamp(a, 6)
    a("s_barrier")

def kv_reduce(a):
    a("v_lshrrev_b32 v144, 8, v253") if False else None
    a(f"s_lshr_b32 s39, s{S_WAVE}, 2")
    a("s_lshl_b32 s39, s39, 16")
    a(f"s_and_b32 s40, s{S_WAVE}, 3")
    a("s_lshl_b32 s40, s40, 10")
    a("s_add_u32 s39, s39, s40")
    a(f"s_lshl_b32 s41, s{S_J}, 17")
    a("s_add_u32 s39, s39, s41")
    a(f"s_add_u32 s39, s39, s{S_KV}")
    for i in range(16):
        a(f"buffer_load_dwordx4 {v(64+4*i,4)}, v{V_L16}, s[8:11], s39 offen sc1")
        if i < 15: a("s_add_u32 s39, s39, 4096")
    a(f"s_cmp_lt_u32 s{S_WAVE}, 2")
    a("s_cbranch_scc0 kvr_nz")
    a(f"s_lshl_b32 s39, s{S_J}, 1")
    a(f"s_add_u32 s39, s39, s{S_WAVE}")
    a("s_lshl_b32 s39, s39, 12")
    a(f"s_add_u32 s39, s39, s{S_ZP}")
    a(f"v_lshlrev_b32 v143, 2, v{V_LANE}")
    for i in range(16):
        a(f"buffer_load_dword v{144+i}, v143, s[8:11], s39 offen offset:{i*256} sc1")
    a("s_waitcnt vmcnt(0)")
    for i in range(1, 16): a(f"v_add_f32 v144, v144, v{144+i}")
    a("v_cvt_pk_bf16_f32 v144, v144, v144")
    a(f"v_lshrrev_b32 v145, 5, v{V_LANE}")
    a(f"v_bfe_u32 v146, v{V_LANE}, 3, 1")
    a("v_lshl_add_u32 v145, v145, 1, v146")
    a(f"v_bfe_u32 v146, v{V_LANE}, 4, 1")
    a("v_lshl_add_u32 v145, v145, 1, v146")
    a(f"v_and_b32 v146, 7, v{V_LANE}")
    a("v_lshl_add_u32 v145, v145, 3, v146")
    a("v_lshlrev_b32 v145, 1, v145")
    a(f"s_lshl_b32 s39, s{S_WAVE}, 7")
    a(f"s_add_u32 s39, s39, {L_SCR+8192}")
    a("v_add_u32 v145, s39, v145")
    a("ds_write_b16 v145, v144")
    a("kvr_nz:")
    a(f"v_mov_b32 v140, {hex(SEL_LO)}")
    a(f"v_mov_b32 v141, {hex(SEL_HI)}")
    for r in range(8): a(f"v_mov_b32 v{128+r}, 0")
    for i in range(16):
        a(f"s_waitcnt vmcnt({15-i})")
        for d in range(4):
            a(f"v_dot2c_f32_bf16 v{128+2*d}, v{64+4*i+d}, v140")
            a(f"v_dot2c_f32_bf16 v{128+2*d+1}, v{64+4*i+d}, v141")
    a("s_nop 2")
    for d in range(4): a(f"v_cvt_pk_bf16_f32 v{136+d}, v{128+2*d}, v{128+2*d+1}")
    a(f"s_lshl_b32 s39, s{S_WAVE}, 10")
    a(f"s_add_u32 s39, s39, {L_SCR}")
    a(f"v_add_u32 v142, s39, v{V_L16}")
    a("ds_write_b128 v142, v[136:139]")
    a("s_waitcnt lgkmcnt(0)")
    a("s_barrier")

def m_layer_A2(a):
    PT = [164, 180]
    KVF, ZF, NUM, DEN, T = 64, 80, 96, 112, 246
    a(f"s_lshl_b32 s39, s{S_R2}, 12")
    a(f"s_add_u32 s39, s39, {L_SCR}")
    a(f"v_add_u32 v148, s39, v{V_L16}")
    for u in range(4): a(f"ds_read_b128 {v(KVF+4*u,4)}, v148 offset:{u*1024}")
    a(f"v_lshrrev_b32 v149, 5, v{V_LANE}")
    a("v_lshlrev_b32 v149, 4, v149")
    a(f"s_lshl_b32 s39, s{S_R2}, 7")
    a(f"s_add_u32 s39, s39, {L_SCR+8192}")
    a("v_add_u32 v149, s39, v149")
    for u in range(4): a(f"ds_read_b128 {v(ZF+4*u,4)}, v149 offset:{u*32}")
    head_tb(a)
    a("s_lshl_b32 s52, s51, 16")
    a("s_lshl_b32 s53, s50, 11")
    a("s_add_u32 s52, s52, s53")
    a(f"s_add_u32 s52, s52, s{S_OF}")
    a("s_waitcnt lgkmcnt(0)")
    NUMS, DENS = [96, 128], [112, 144]
    for mi in range(2):
        for u in range(4):
            c = "0" if u == 0 else v(DENS[mi],16)
            a(f"{M32} {v(DENS[mi],16)}, {v(ZF+4*u,4)}, {v(PT[mi]+4*u,4)}, {c}")
        for u in range(4):
            c = "0" if u == 0 else v(NUMS[mi],16)
            a(f"{M32} {v(NUMS[mi],16)}, {v(KVF+4*u,4)}, {v(PT[mi]+4*u,4)}, {c}")
    for mi in range(2):
        a("s_nop 7" if mi == 1 else "s_nop 1")
        a(f"v_add_f32 v{T}, {f32(1e-6)}, v{DENS[mi]}")
        a(f"v_rcp_f32 v{T}, v{T}")
        a("s_nop 0")
        for r in range(8): a(f"v_pk_mul_f32 {v(NUMS[mi]+2*r,2)}, {v(NUMS[mi]+2*r,2)}, {v(T,2)} op_sel_hi:[1,0]")
        pack(a, NUMS[mi], 196 + 8*mi)
        a(f"s_add_u32 s53, s52, {mi*65536}")
        a(f"buffer_store_dwordx4 {v(196+8*mi,4)}, v{V_L16}, s[8:11], s53 offen sc1")
        a(f"buffer_store_dwordx4 {v(196+8*mi+4,4)}, v{V_L16}, s[8:11], s53 offen offset:1024 sc1")
    a("s_waitcnt vmcnt(0)")

def m_layer_B(a):
    RQ, PK = 158, 228
    load_stats_T(a, NM, RS)
    load_cs_T(a, 1, CSK)
    load_cs_F(a, CSV)
    load_stats_F(a, 0, FNM, FRS)
    load_cs_T(a, 0, CSQ)
    head_tb(a)
    a("s_lshl_b32 s52, s50, 6")
    a("s_add_u32 s52, s52, s51")
    a("s_lshl_b32 s52, s52, 12")
    a(f"s_add_u32 s52, s52, s{S_KV}")
    a(f"s_lshl_b32 s39, s{S_R2}, 16")
    a(f"s_lshl_b32 s40, s{S_R1}, 13")
    a("s_add_u32 s39, s39, s40")
    a(f"v_add_u32 v149, s39, v{V_L16}")
    a("s_waitcnt lgkmcnt(0)")
    for mi in range(2):
        norm_T(a, acc(1, mi), CSK, NM + 2*mi, RS + 2*mi)
        pk = PK + 8 * mi
        pack(a, acc(1, mi), pk)
        a(f"s_add_u32 s53, s52, {mi*4096}")
        a(f"buffer_store_dwordx4 {v(pk,4)}, v{V_L16}, s[8:11], s53 offen sc1")
        a(f"buffer_store_dwordx4 {v(pk+4,4)}, v{V_L16}, s[8:11], s53 offen offset:1024 sc1")
        a(f"ds_write_b128 v149, {v(pk,4)} offset:{mi*4096}")
        a(f"ds_write_b128 v149, {v(pk+4,4)} offset:{mi*4096+1024}")
    for mi in range(2):
        if mi == 1:
            load_stats_F(a, 1, FNM, FRS)
            a("s_waitcnt lgkmcnt(0)")
        norm_F(a, acc(2, mi), CSV, FNM, FRS)
        pk = PK + 8 * mi
        pack(a, acc(2, mi), pk)
        a(f"s_add_u32 s53, s52, {mi*4096}")
        a(f"buffer_store_dwordx4 {v(pk,4)}, v{V_L16}, s[8:11], s53 offen offset:2048 sc1")
        a(f"buffer_store_dwordx4 {v(pk+4,4)}, v{V_L16}, s[8:11], s53 offen offset:3072 sc1")
        a(f"ds_write_b128 v149, {v(pk,4)} offset:{mi*4096+2048}")
        a(f"ds_write_b128 v149, {v(pk+4,4)} offset:{mi*4096+3072}")
    c = (32 ** -0.5) * LOG2E
    for mi in range(2): a(f"v_mul_f32 v{RQ+2*mi}, {f32(c)}, v{RS+2*mi}")
    a(f"s_lshl_b32 s39, s{S_R1}, 2")
    a(f"s_add_u32 s39, s39, s{S_R2}")
    a("s_lshl_b32 s39, s39, 11")
    a(f"s_add_u32 s39, s39, {L_SCR}")
    a(f"v_add_u32 v148, s39, v{V_L16}")
    for mi in range(2):
        norm_T(a, acc(0, mi), CSQ, NM + 2*mi, RQ + 2*mi)
        pack(a, acc(0, mi), 196 + 8*mi)
        a(f"ds_write_b128 v148, {v(196+8*mi,4)} offset:{mi*4096}")
        a(f"ds_write_b128 v148, {v(196+8*mi+4,4)} offset:{mi*4096+1024}")
    a("s_waitcnt vmcnt(0) lgkmcnt(0)")

CH = 16384
aQ, aNEGM, aSA, aSB, aP, aO, aL, aSEL, aKVA, aKVB, aVA, aVG, aT0 = 0, 8, 24, 40, 56, 64, 80, 84, 88, 104, 120, 121, 123

def attention(a):
    Q, NEGM, SA, SB, P, O, L, SEL, KVA, KVB, VA, VG, T0 = aQ, aNEGM, aSA, aSB, aP, aO, aL, aSEL, aKVA, aKVB, aVA, aVG, aT0
    a(f"s_and_b32 s50, s{S_WAVE}, 1")
    a(f"s_lshr_b32 s51, s{S_WAVE}, 1")
    a("s_lshl_b32 s52, s50, 16")
    a(f"v_add_u32 v{VA}, s52, v{V_L16}")
    a(f"s_lshl_b32 s53, s{S_J}, 1")
    a("s_add_u32 s53, s53, s50")
    a("s_lshl_b32 s30, s53, 18") if False else None
    a("s_lshl_b32 s54, s53, 18")
    a(f"s_add_u32 s54, s54, s{S_KV}")
    a("s_lshl_b32 s55, s51, 12")
    a("s_add_u32 s57, s54, s55")
    a("s_add_u32 s55, s55, s52")
    a(f"s_add_u32 s58, s{S_MB}, 1")
    def dma(buf):
        a("s_and_b32 s58, s58, 15")
        a("s_lshl_b32 s56, s58, 14")
        a("s_add_u32 s56, s56, s57")
        a(f"s_add_u32 m0, s55, {buf*CH}")
        a("s_add_u32 s58, s58, 1")
        for i in range(4):
            a(f"buffer_load_dwordx4 v{V_L16}, s[8:11], s56 offen offset:{i*1024} sc1 lds")
    def wo_part(k):
        a(f"s_and_b32 s41, s{S_WAVE}, 3")
        a("s_lshl_b32 s41, s41, 2")
        a(f"s_lshr_b32 s42, s{S_WAVE}, 2")
        a("s_lshl_b32 s42, s42, 6")
        a("s_add_u32 s41, s41, s42")
        if k: a(f"s_add_u32 s41, s41, {16*k}")
        wo_dma(a, 41, 4, vd=VG)
    def rd(kv, off):
        for i in range(4): a(f"ds_read_b128 {v(kv+4*i,4)}, v{VA} offset:{off+i*1024}")
    handoff(a, "at_sig", FL_KV, S_J, S_MB, wave=0, do_poll=False)
    wsrd(a, S_AWO, S_BWO, D_ * D_ * 2)
    wo_voff(a, VG, T0, T0 + 1)
    a(f"s_lshl_b32 s39, s{S_WAVE}, 11")
    a(f"s_add_u32 s39, s39, {L_SCR}")
    a(f"v_add_u32 v{T0}, s39, v{V_L16}")
    a(f"ds_read_b128 {v(Q,4)}, v{T0}")
    a(f"ds_read_b128 {v(Q+4,4)}, v{T0} offset:1024")
    a(f"v_and_b32 v{T0}, 3, v{V_LANE}")
    a(f"v_bfe_u32 v{T0+1}, v{V_LANE}, 2, 1")
    a(f"v_bfe_u32 v{T0+2}, v{V_LANE}, 4, 1")
    a(f"v_xor_b32 v{T0+1}, v{T0+1}, v{T0+2}")
    a(f"v_or_b32 v{T0}, v{T0}, v{T0+1}")
    a(f"v_cmp_eq_u32 vcc, 0, v{T0}")
    a(f"v_mov_b32 v{T0+1}, {hex(ONES_BF16)}")
    a(f"v_mov_b32 v{T0+2}, 0")
    a(f"v_cndmask_b32 v{SEL}, v{T0+2}, v{T0+1}, vcc")
    for i in range(1, 4): a(f"v_mov_b32 v{SEL+i}, v{SEL}")
    for i in range(16): a(f"v_mov_b32 v{O+i}, 0")
    for i in range(4): a(f"v_mov_b32 v{L+i}, 0")
    for i in range(8): a(f"v_mov_b32 v{P+i}, 0")
    rd(KVA, 0)
    a("s_waitcnt lgkmcnt(0)")
    a(f"{M32} {v(SA,16)}, {v(KVA,4)}, {v(Q,4)}, 0")
    a(f"{M32} {v(SA,16)}, {v(KVA+4,4)}, {v(Q+4,4)}, {v(SA,16)}")
    rd(KVB, 4096)
    a("s_nop 7")
    a(f"v_max3_f32 v{T0}, v{SA}, v{SA+1}, v{SA+2}")
    for i in range(3, 15, 2): a(f"v_max3_f32 v{T0}, v{T0}, v{SA+i}, v{SA+i+1}")
    a(f"v_max_f32 v{T0}, v{T0}, v{SA+15}")
    a(f"v_mov_b32 v{T0+1}, v{T0}")
    a("s_nop 1")
    a(f"v_permlane32_swap_b32 v{T0}, v{T0+1}")
    a("s_nop 1")
    a(f"v_max_f32 v{T0}, v{T0}, v{T0+1}")
    a(f"v_sub_f32 v{NEGM}, 0, v{T0}")
    for i in range(1, 16): a(f"v_mov_b32 v{NEGM+i}, v{NEGM}")
    for i in range(16): a(f"v_add_f32 v{SA+i}, v{SA+i}, v{NEGM}")
    handoff(a, "at_pol", FL_KV, S_J, S_MB, wave=0, do_signal=False)
    a("s_barrier")
    stamp(a, 5)
    dma(1); dma(2)
    def rounds(last):
        for r in range(16):
            cur, nxt = (SA, SB) if r % 2 == 0 else (SB, SA)
            kvc, kvn = (KVA, KVB) if r % 2 == 0 else (KVB, KVA)
            tK = (r + 2) % 16; tV = (r + 1) % 16
            doK = not (last and r >= 14)
            doQK = not (last and r == 15)
            e = lambda i: a(f"v_exp_f32 v{cur+i}, v{cur+i}")
            c = lambda i: a(f"v_cvt_pk_bf16_f32 v{P+i}, v{cur+2*i}, v{cur+2*i+1}")
            a("s_waitcnt lgkmcnt(0)")
            if (r + 2) % 4 == 0 and not (last and r == 14):
                b = (r + 2) // 4
                a("s_waitcnt vmcnt(4)")
                a("s_barrier")
                if last and b == 1 and WPF:
                    a(f"s_cmp_eq_u32 s{S_L}, 3")
                    a("s_cbranch_scc1 at_nopf")
                    a(f"s_and_b32 s41, s{S_MB}, 7")
                    a("s_lshl_b32 s41, s41, 7")
                    a(f"s_lshl_b32 s42, s{S_WAVE}, 4")
                    a("s_add_u32 s41, s41, s42")
                    w_prefetch(a, 41, 16, 128, 152)
                    a("at_nopf:")
                if not (last and b >= 2): dma((b + 2) % 4)
                if last and b == 2: wo_part(0)
                if last and b == 3: wo_part(1)
            if doQK: a(f"{M32} {v(nxt,16)}, {v(kvn,4)}, {v(Q,4)}, {v(NEGM,16)}")
            for i in range(0, 4): e(i)
            if doK:
                a(f"ds_read_b128 {v(kvc,4)}, v{VA} offset:{tK*4096}")
                a(f"ds_read_b128 {v(kvc+4,4)}, v{VA} offset:{tK*4096+1024}")
            if doQK: a(f"{M32} {v(nxt,16)}, {v(kvn+4,4)}, {v(Q+4,4)}, {v(nxt,16)}")
            for i in range(4, 8): e(i)
            a(f"{M32} {v(O,16)}, {v(kvn+12,4)}, {v(P+4,4)}, {v(O,16)}")
            for i in range(0, 4): c(i)
            e(8); e(9)
            if doQK:
                a(f"ds_read_b128 {v(kvn+8,4)}, v{VA} offset:{tV*4096+2048}")
                a(f"ds_read_b128 {v(kvn+12,4)}, v{VA} offset:{tV*4096+3072}")
            a(f"{M16} {v(L,4)}, {v(SEL,4)}, {v(P+4,4)}, {v(L,4)}")
            e(10); e(11)
            a(f"{M32} {v(O,16)}, {v(kvc+8,4)}, {v(P,4)}, {v(O,16)}")
            for i in range(12, 16): e(i)
            a(f"{M16} {v(L,4)}, {v(SEL,4)}, {v(P,4)}, {v(L,4)}")
            for i in range(4, 8): c(i)
    a("s_mov_b32 s40, 3")
    a("at_loop:")
    rounds(False)
    a("s_sub_u32 s40, s40, 1")
    a("s_cmp_lg_u32 s40, 0")
    a("s_cbranch_scc1 at_loop")
    rounds(True)
    a("s_nop 1")
    a(f"{M32} {v(O,16)}, {v(KVB+12,4)}, {v(P+4,4)}, {v(O,16)}")
    a(f"{M16} {v(L,4)}, {v(SEL,4)}, {v(P+4,4)}, {v(L,4)}")
    stamp(a, 6)
    a("s_nop 15")
    a(f"v_mov_b32 v{T0}, 0")
    for i in range(16): a(f"v_fma_f32 v{T0}, v{O+i}, 0, v{T0}")
    a(f"v_cmp_eq_f32 vcc, 0, v{T0}")
    a(f"v_mov_b32 v{T0+1}, {f32(2.0**100)}")
    a(f"v_cmp_lt_f32 s[42:43], v{L}, v{T0+1}")
    a("s_nop 1")
    a("s_and_b64 vcc, vcc, s[42:43]")
    a("s_cmp_eq_u64 vcc, exec")
    a("s_cbranch_scc1 at_fin")
    for i in range(16): a(f"v_mov_b32 v{O+i}, 0")
    for i in range(4): a(f"v_mov_b32 v{L+i}, 0")
    MV = T0 + 2
    a(f"v_mov_b32 v{MV}, {f32(-3.0e38)}")
    a("s_mov_b32 s41, s54")
    a("s_mov_b32 s40, 64")
    a("at_fb:")
    for i in range(4):
        a(f"buffer_load_dwordx4 {v(KVA+4*i,4)}, v{V_L16}, s[8:11], s41 offen offset:{i*1024} sc1")
    a("s_waitcnt vmcnt(0)")
    a(f"{M32} {v(SA,16)}, {v(KVA,4)}, {v(Q,4)}, 0")
    a(f"{M32} {v(SA,16)}, {v(KVA+4,4)}, {v(Q+4,4)}, {v(SA,16)}")
    a("s_nop 15")
    a(f"v_max3_f32 v{T0}, v{SA}, v{SA+1}, v{SA+2}")
    for i in range(3, 15, 2): a(f"v_max3_f32 v{T0}, v{T0}, v{SA+i}, v{SA+i+1}")
    a(f"v_max_f32 v{T0}, v{T0}, v{SA+15}")
    a(f"v_mov_b32 v{T0+1}, v{T0}")
    a("s_nop 1")
    a(f"v_permlane32_swap_b32 v{T0}, v{T0+1}")
    a("s_nop 1")
    a(f"v_max3_f32 v{T0}, v{T0}, v{T0+1}, v{MV}")
    a(f"v_sub_f32 v{T0+1}, v{MV}, v{T0}")
    a(f"v_exp_f32 v{T0+1}, v{T0+1}")
    a(f"v_mov_b32 v{MV}, v{T0}")
    for i in range(16): a(f"v_sub_f32 v{SA+i}, v{SA+i}, v{T0}")
    for i in range(16): a(f"v_exp_f32 v{SA+i}, v{SA+i}")
    for i in range(16): a(f"v_mul_f32 v{O+i}, v{O+i}, v{T0+1}")
    for i in range(4): a(f"v_mul_f32 v{L+i}, v{L+i}, v{T0+1}")
    for i in range(8): a(f"v_cvt_pk_bf16_f32 v{P+i}, v{SA+2*i}, v{SA+2*i+1}")
    a("s_nop 1")
    a(f"{M32} {v(O,16)}, {v(KVA+8,4)}, {v(P,4)}, {v(O,16)}")
    a(f"{M16} {v(L,4)}, {v(SEL,4)}, {v(P,4)}, {v(L,4)}")
    a(f"{M32} {v(O,16)}, {v(KVA+12,4)}, {v(P+4,4)}, {v(O,16)}")
    a(f"{M16} {v(L,4)}, {v(SEL,4)}, {v(P+4,4)}, {v(L,4)}")
    a("s_nop 15")
    a("s_add_u32 s41, s41, 4096")
    a("s_sub_u32 s40, s40, 1")
    a("s_cmp_lg_u32 s40, 0")
    a("s_cbranch_scc1 at_fb")
    a("at_fin:")
    a(f"v_rcp_f32 v{T0}, v{L}")
    a("s_nop 0")
    for i in range(16): a(f"v_mul_f32 v{O+i}, v{O+i}, v{T0}")
    for i in range(8): a(f"v_cvt_pk_bf16_f32 v{P+i}, v{O+2*i}, v{O+2*i+1}")
    a(f"s_lshl_b32 s39, s{S_MB}, 2")
    a("s_add_u32 s39, s39, s51")
    a("s_lshl_b32 s39, s39, 16")
    a("s_lshl_b32 s40, s53, 11")
    a("s_add_u32 s39, s39, s40")
    a(f"s_add_u32 s39, s39, s{S_OF}")
    a(f"buffer_store_dwordx4 {v(P,4)}, v{V_L16}, s[8:11], s39 offen sc1")
    a(f"buffer_store_dwordx4 {v(P+4,4)}, v{V_L16}, s[8:11], s39 offen offset:1024 sc1")
    a("s_waitcnt vmcnt(0)")

def m_setup(a):
    layer_setup(a)
    a(f"s_lshl_b32 s39, s{S_R1}, 13")
    a(f"v_add_u32 v{VX0}, s39, v{V_L16}")
    L_ = V_LANE
    a(f"v_lshrrev_b32 v5, 5, v{L_}")
    a(f"v_bfe_u32 v6, v{L_}, 2, 2")
    a("v_lshl_add_u32 v5, v5, 2, v6")
    a("v_lshlrev_b32 v5, 7, v5")
    a(f"v_bfe_u32 v6, v{L_}, 4, 1")
    a(f"v_bfe_u32 v7, v{L_}, 1, 1")
    a("v_lshl_add_u32 v6, v6, 1, v7")
    a(f"s_lshl_b32 s39, s{S_R2}, 2")
    a("v_add_u32 v6, s39, v6")
    a(f"v_bfe_u32 v7, v{L_}, 3, 1")
    a("v_lshlrev_b32 v7, 2, v7")
    a("v_xor_b32 v6, v6, v7")
    a("v_lshl_add_u32 v5, v6, 4, v5")
    a(f"v_and_b32 v6, 1, v{L_}")
    a(f"v_lshl_add_u32 v{VW0}, v6, 3, v5")
    a(f"v_mov_b32 v{VX}, v{VX0}")
    a(f"v_mov_b32 v{VW}, v{VW0}")
    if PFD:
        wsrd(a, S_AWQKV, S_BWQKV, D_ * 3 * D_ * 2)
        a(f"v_lshrrev_b32 v220, 3, v{V_LANE}")
        a("v_mul_u32_u24 v220, 6144, v220")
        a(f"v_and_b32 v221, 7, v{V_LANE}")
        a("v_lshl_add_u32 v220, v221, 4, v220")
        a(f"s_mul_i32 s45, s{S_WAVE}, {16*6144}")
        a(f"s_lshl_b32 s39, s{S_J}, 7")
        a("s_add_u32 s45, s45, s39")
        a(f"s_and_b32 s42, s{S_MB}, 7")
        a(f"s_mov_b32 s41, {PFD}")
    for i in range(96): a(f"v_mov_b32 v{ACC+i}, 0")
    a("s_mov_b32 s40, 0")
    a("s_mov_b32 s49, 16")

def m_p3(a):
    ACC3, AR, WF, RES = 0, 32, [96, 104], 112
    VWA = [128, 129, 130, 131]
    L_ = V_LANE
    a(f"s_lshl_b32 s50, s{S_MB}, 2")
    a(f"s_add_u32 s50, s50, s{S_WAVE}")
    a("s_lshl_b32 s51, s50, 16")
    a(f"s_lshl_b32 s39, s{S_J}, 12")
    a("s_add_u32 s52, s51, s39")
    a(f"s_add_u32 s53, s52, s{S_XF}")
    for i in range(4):
        a(f"buffer_load_dwordx4 {v(RES+4*i,4)}, v{V_L16}, s[8:11], s53 offen offset:{i*1024} sc1")
    a(f"s_add_u32 s54, s51, s{S_OF}")
    seq = list(range(0, 16)) + list(range(32, 48)) + list(range(16, 32)) + list(range(48, 64))
    def aload(idx):
        ks = seq[idx]; slot = idx % 16
        if ks % 4 == 0: a(f"s_add_u32 s55, s54, {(ks//4)*4096}")
        a(f"buffer_load_dwordx4 {v(AR+4*slot,4)}, v{V_L16}, s[8:11], s55 offen offset:{(ks%4)*1024} sc1 {os.environ.get('ANT','')}")
    for idx in range(16): aload(idx)
    a(f"v_lshrrev_b32 v132, 5, v{L_}")
    a(f"v_bfe_u32 v133, v{L_}, 2, 2")
    a("v_lshl_add_u32 v132, v132, 2, v133")
    a("v_lshlrev_b32 v132, 7, v132")
    a(f"v_bfe_u32 v133, v{L_}, 4, 1")
    a(f"v_bfe_u32 v134, v{L_}, 1, 1")
    a("v_lshl_add_u32 v133, v133, 1, v134")
    a(f"v_bfe_u32 v134, v{L_}, 3, 1")
    a("v_lshlrev_b32 v134, 2, v134")
    a("v_xor_b32 v133, v133, v134")
    a("v_lshl_add_u32 v132, v133, 4, v132")
    a(f"v_and_b32 v133, 1, v{L_}")
    a(f"v_lshl_add_u32 v{VWA[0]}, v133, 3, v132")
    a(f"v_xor_b32 v{VWA[1]}, 64, v{VWA[0]}")
    a(f"v_add_u32 v{VWA[2]}, 0x10000, v{VWA[0]}")
    a(f"v_add_u32 v{VWA[3]}, 0x10000, v{VWA[1]}")
    for i in range(32): a(f"v_mov_b32 v{ACC3+i}, 0")
    def wreads(idx, cb):
        fs = WF[idx % 2]; ks = seq[idx]
        half, kk = ks // 32, ks % 32
        for t in range(2):
            a(f"ds_read_b64_tr_b16 {v(fs+4*cb+2*t,2)}, v{VWA[half*2+cb]} offset:{kk*2048+t*1024}")
    wreads(0, 0); wreads(0, 1)
    stamp(a, 9)
    for ks in range(64):
        fs = WF[ks % 2]; A = AR + 4 * (ks % 16)
        vm = min(15, 63 - ks)
        a(f"s_waitcnt vmcnt({vm}) lgkmcnt(2)")
        a(f"{M32} {v(ACC3,16)}, {v(fs,4)}, {v(A,4)}, {v(ACC3,16)}")
        if ks == 31: a("s_barrier")
        if ks < 63:
            wreads(ks + 1, 0)
            a("s_waitcnt lgkmcnt(2)")
        else:
            a("s_waitcnt lgkmcnt(0)")
        a(f"{M32} {v(ACC3+16,16)}, {v(fs+4,4)}, {v(A,4)}, {v(ACC3+16,16)}")
        if ks < 63: wreads(ks + 1, 1)
        if ks + 16 < 64: aload(ks + 16)
    stamp(a, 10)
    T = 136
    a(f"v_mov_b32 v{T}, {hex(SEL_LO)}")
    a(f"v_mov_b32 v{T+1}, {hex(SEL_HI)}")
    a(f"v_mov_b32 v{T+2}, {hex(ONES_BF16)}")
    a("s_nop 7")
    for cb in range(2):
        for r in range(8):
            a(f"v_dot2c_f32_bf16 v{ACC3+16*cb+2*r}, v{RES+8*cb+r}, v{T}")
            a(f"v_dot2c_f32_bf16 v{ACC3+16*cb+2*r+1}, v{RES+8*cb+r}, v{T+1}")
    a("s_nop 2")
    PK = RES
    for cb in range(2):
        for r in range(8):
            a(f"v_cvt_pk_bf16_f32 v{PK+8*cb+r}, v{ACC3+16*cb+2*r}, v{ACC3+16*cb+2*r+1}")
    a(f"s_cmp_eq_u32 s{S_L}, 3")
    a("s_cbranch_scc1 p3_final")
    a("p3_tail:")
    a(f"s_add_u32 s53, s52, s{S_XFN}")
    for i in range(4):
        a(f"buffer_store_dwordx4 {v(PK+4*i,4)}, v{V_L16}, s[8:11], s53 offen offset:{i*1024} sc1")
    S1, S2, S3, S4 = 140, 141, 142, 143
    a(f"v_mov_b32 v{S1}, 0")
    a(f"v_mov_b32 v{S2}, 0")
    for r in range(16):
        a(f"v_dot2c_f32_bf16 v{S1}, v{PK+r}, v{T+2}")
        a(f"v_dot2c_f32_bf16 v{S2}, v{PK+r}, v{PK+r}")
    a("s_nop 2")
    a(f"v_mov_b32 v{S3}, v{S1}")
    a(f"v_mov_b32 v{S4}, v{S2}")
    a("s_nop 1")
    a(f"v_permlane32_swap_b32 v{S1}, v{S3}")
    a(f"v_permlane32_swap_b32 v{S2}, v{S4}")
    a("s_nop 1")
    a(f"v_add_f32 v{S1}, v{S1}, v{S3}")
    a(f"v_add_f32 v{S2}, v{S2}, v{S4}")
    a(f"s_lshl_b32 s39, s{S_J}, 14")
    a("s_lshl_b32 s40, s50, 8")
    a("s_add_u32 s39, s39, s40")
    a(f"s_add_u32 s39, s39, s{S_STN}")
    a(f"v_and_b32 v144, 31, v{L_}")
    a("v_lshlrev_b32 v144, 3, v144")
    a("s_mov_b64 exec, 0xffffffff")
    a(f"buffer_store_dwordx2 {v(S1,2)}, v144, s[8:11], s39 offen sc1")
    a("s_mov_b64 exec, -1")
    a(f"s_add_u32 s{S_L}, s{S_L}, 1")
    m_setup(a)
    a("s_waitcnt vmcnt(0)")
    a("s_barrier")
    if STAMP: a(f"s_sub_u32 s{S_L}, s{S_L}, 1")
    stamp(a, 11)
    if STAMP: a(f"s_add_u32 s{S_L}, s{S_L}, 1")
    handoff(a, "m_hx", FL_X, S_MB, S_J, layer_delta=-1, wave=0)
    a("s_barrier")
    a("s_branch m_layer")
    a("p3_final:")
    for i in range(4):
        a(f"v_permlane32_swap_b32 v{PK+4*i}, v{PK+4*i+2}")
        a(f"v_permlane32_swap_b32 v{PK+4*i+1}, v{PK+4*i+3}")
    a(f"v_and_b32 v144, 31, v{L_}")
    a("v_lshlrev_b32 v144, 11, v144")
    a(f"v_lshrrev_b32 v145, 5, v{L_}")
    a("v_lshl_add_u32 v144, v145, 4, v144")
    a(f"s_lshl_b32 s39, s{S_J}, 7")
    a("s_add_u32 s39, s39, s51")
    srd(a, 16, S_OUT, S_ * D_ * 2)
    for i in range(4):
        a(f"buffer_store_dwordx4 {v(PK+4*i,4)}, v144, s[16:19], s39 offen offset:{i*32}")
    a("s_waitcnt vmcnt(0)")
    stamp(a, 11)
    a("s_endpgm")

def gen_mega(name="mega_kernel"):
    a = Asm()
    kstart(a, name, 256)
    a(f"s_load_dwordx2 s[4:5], s[0:1], {KA_WS}")
    a(f"s_load_dwordx2 s[{S_AWQKV}:{S_AWQKV+1}], s[0:1], {KA_AWQKV}")
    a(f"s_load_dwordx2 s[{S_BWQKV}:{S_BWQKV+1}], s[0:1], {KA_BWQKV}")
    a(f"s_load_dwordx2 s[{S_AWO}:{S_AWO+1}], s[0:1], {KA_AWO}")
    a(f"s_load_dwordx2 s[{S_BWO}:{S_BWO+1}], s[0:1], {KA_BWO}")
    a(f"s_load_dwordx2 s[{S_AWPHI}:{S_AWPHI+1}], s[0:1], {KA_AWPHI}")
    a(f"s_load_dwordx2 s[{S_OUT}:{S_OUT+1}], s[0:1], {KA_OUT}")
    a("v_lshrrev_b32 v1, 6, v0")
    a(f"v_and_b32 v{V_LANE}, 63, v0")
    a(f"v_lshlrev_b32 v{V_L16}, 4, v{V_LANE}")
    a("s_and_b32 s38, s2, 7")
    a("s_lshr_b32 s39, s2, 3")
    a(f"v_readfirstlane_b32 s{S_WAVE}, v1")
    a(f"s_and_b32 s{S_MB}, s38, 1")
    a(f"s_lshl_b32 s{S_MB}, s{S_MB}, 3")
    a("s_and_b32 s40, s39, 7")
    a(f"s_add_u32 s{S_MB}, s{S_MB}, s40")
    a(f"s_lshr_b32 s{S_J}, s38, 1")
    a(f"s_lshl_b32 s{S_J}, s{S_J}, 2")
    a("s_lshr_b32 s40, s39, 3")
    a(f"s_add_u32 s{S_J}, s{S_J}, s40")
    a(f"s_mov_b32 s{S_L}, 0")
    a(f"s_mov_b32 s{S_L2E}, {f32(LOG2E)}")
    a(f"s_load_dwordx2 s[74:75], s[0:1], {KA_AX}")
    if STAMP:
        a("s_lshl_b32 s90, s2, 6")
        a(f"s_lshl_b32 s91, s{S_WAVE}, 2")
        a("s_add_u32 s90, s90, s91")
        a(f"s_add_u32 s90, s90, {hex(WS_STAMP)}")
    a("s_waitcnt lgkmcnt(0)")
    srd(a, 8, 4, WS_SIZE)
    stamp(a, 0)
    a("v_mov_b32 v217, 0")
    a(f"s_mov_b32 s39, {hex(WS_FLAGS + 4*0x1800 + FL_O)}")
    a("buffer_load_dword v218, v217, s[8:11], s39 offen sc1")
    a(f"s_cmp_lt_u32 s{S_WAVE}, 4")
    a("s_cbranch_scc1 m_entry")
    a(f"s_sub_u32 s{S_R1}, s{S_WAVE}, 4")
    a("l_layer:")
    layer_setup(a)
    wsrd(a, S_AWQKV, S_BWQKV, D_ * 3 * D_ * 2)
    a(f"v_mov_b32 v2, v{V_L16}")
    a(f"v_lshrrev_b32 v5, 3, v{V_LANE}")
    a("v_mul_u32_u24 v3, 6144, v5")
    a(f"v_and_b32 v6, 7, v{V_LANE}")
    a(f"v_bfe_u32 v7, v{V_LANE}, 4, 1")
    a("v_lshlrev_b32 v7, 2, v7")
    a("v_xor_b32 v6, v6, v7")
    a("v_lshl_add_u32 v3, v6, 4, v3")
    a(f"s_mul_i32 s59, s{S_R1}, {16*6144}")
    a(f"s_lshl_b32 s39, s{S_J}, 7")
    a("s_add_u32 s59, s59, s39")
    if ROT == "mb":
        a(f"s_mov_b32 s56, s{S_MB}")
    elif ROT == "mb2":
        a(f"s_lshl_b32 s56, s{S_MB}, 1")
        a("s_and_b32 s56, s56, 15")
    elif ROT == "mbj":
        a(f"s_add_u32 s56, s{S_MB}, s{S_J}")
        a("s_and_b32 s56, s56, 15")
    else:
        a("s_mov_b32 s56, 0")
    a("s_mov_b32 s57, s56")
    a(f"s_lshl_b32 s47, s{S_R1}, 12")
    a(f"s_lshl_b32 s48, s{S_R1}, 11")
    a("s_add_u32 s48, s48, 16384")
    a("s_mov_b32 s45, 0")
    a("s_mov_b32 s46, 0")
    a(f"s_lshl_b32 s58, s{S_MB}, 2")
    a(f"s_add_u32 s58, s58, s{S_R1}")
    a("s_lshl_b32 s58, s58, 16")
    a(f"s_add_u32 s58, s58, s{S_XF}")
    def share_dma():
        if os.environ.get("NOSHDMA"): return
        a(f"s_cmp_lt_u32 s{S_L}, 2")
        n = _poll_n[0]; _poll_n[0] += 1
        a(f"s_cbranch_scc0 l_nosh{n}")
        a(f"s_mul_i32 s42, s{S_MB}, {64*6144}")
        a("s_add_u32 s42, s42, s59")
        a(f"s_lshl_b32 s44, s{S_R1}, 11")
        for p in range(3):
            for q in range(2):
                a(f"s_add_u32 m0, s44, {L_SH[p] + q*1024}")
                a(f"s_add_u32 s43, s42, {p*2048 + q*8*6144}")
                a("buffer_load_dwordx4 v3, s[12:15], s43 offen lds")
        a(f"l_nosh{n}:")
    a(f"s_cmp_eq_u32 s{S_L}, 0")
    a("s_cbranch_scc0 l_w1")
    for st in range(3): issue_w(a)
    share_dma()
    a("s_waitcnt lgkmcnt(0)")
    a("s_barrier")
    a("s_branch l_w2")
    a("l_w1:")
    a("s_waitcnt lgkmcnt(0)")
    a("s_barrier")
    for st in range(3): issue_w(a)
    share_dma()
    a("l_w2:")
    a(f"s_cmp_lt_u32 s{S_L}, 2")
    a("s_cbranch_scc0 l_w3")
    a("s_waitcnt vmcnt(0)")
    a("l_w3:")
    a("s_barrier")
    a("l_nowait:")
    stamp(a, 1)
    issue_x(a)
    a(f"s_lshl_b32 s49, s{S_MB}, 7")
    a(f"s_and_b32 s39, s{S_R1}, 1")
    a("s_lshl_b32 s39, s39, 6")
    a("s_add_u32 s49, s49, s39")
    a("s_lshl_b32 s49, s49, 3")
    a(f"s_add_u32 s49, s49, s{S_ST}")
    a(f"v_lshlrev_b32 v5, 3, v{V_LANE}")
    for i in range(16):
        a(f"buffer_load_dwordx2 {v(16+2*i,2)}, v5, s[8:11], s49 offen sc1")
        if i < 15: a("s_add_u32 s49, s49, 16384")
    srd(a, 16, S_AWPHI, 32*32*32*2)
    a(f"s_lshl_b32 s49, s{S_J}, 12")
    a(f"s_lshl_b32 s39, s{S_R1}, 10")
    a("s_add_u32 s49, s49, s39")
    a(f"s_add_u32 m0, s39, {L_WPHI}")
    a("s_nop 0")
    a("buffer_load_dwordx4 v2, s[16:19], s49 offen lds")
    issue_x(a); issue_x(a)
    a("s_waitcnt vmcnt(25)")
    a(f"v_readfirstlane_b32 s76, v218")
    a("s_barrier")
    a(f"s_add_u32 s{S_N}, s76, 1")
    a("s_waitcnt vmcnt(8)")
    for i in range(1, 16):
        a(f"v_add_f32 v16, v16, v{16+2*i}")
        a(f"v_add_f32 v17, v17, v{17+2*i}")
    a(f"s_cmp_lt_u32 s{S_R1}, 2")
    a("s_cbranch_scc0 l_std")
    a(f"v_mul_f32 v16, {f32(1.0/1024)}, v16")
    a(f"v_mul_f32 v17, {f32(1.0/1024)}, v17")
    a("v_fma_f32 v17, -v16, v16, v17")
    a("v_max_f32 v17, 0, v17")
    a(f"v_add_f32 v17, {f32(1e-5)}, v17")
    a("v_rsq_f32 v17, v17")
    a("v_sub_f32 v16, 0, v16")
    a(f"s_lshl_b32 s39, s{S_R1}, 8")
    a(f"v_lshlrev_b32 v5, 2, v{V_LANE}")
    a("v_add_u32 v5, s39, v5")
    a(f"v_add_u32 v5, {L_NM}, v5")
    a("ds_write_b32 v5, v16")
    a("ds_write_b32 v5, v17 offset:512")
    a("l_std:")
    a("s_waitcnt lgkmcnt(0)")
    a("s_waitcnt vmcnt(4)")
    a("s_barrier")
    issue_stage(a, False)
    a(f"s_cmp_lt_u32 s{S_L}, 2")
    a("s_cbranch_scc0 l_nopub")
    a(f"s_cmp_eq_u32 s{S_R1}, 3")
    a("s_cbranch_scc0 l_nopub")
    a(f"v_lshlrev_b32 v5, 3, v{V_LANE}")
    a(f"v_add_u32 v6, {L_SCR}, v5")
    for w in range(4):
        a(f"ds_read_b64 {v(16+4*w,2)}, v6 offset:{w*768}")
        a(f"ds_read_b64 {v(18+4*w,2)}, v6 offset:{w*768+512}")
    a(f"s_and_b32 s39, s{S_L}, 1")
    a(f"s_mul_i32 s39, s39, {16*3072*4}")
    a(f"s_mul_i32 s43, s{S_MB}, {3072*4}")
    a("s_add_u32 s43, s43, s39")
    a(f"s_lshl_b32 s44, s{S_J}, 8")
    a("s_add_u32 s43, s43, s44")
    a(f"s_add_u32 s43, s43, {hex(WS_CSP)}")
    a(f"v_lshrrev_b32 v8, 5, v{V_LANE}")
    a(f"v_and_b32 v9, 31, v{V_LANE}")
    a("v_lshlrev_b32 v9, 3, v9")
    a("v_lshl_add_u32 v8, v8, 12, v9")
    a("v_add_u32 v9, 8192, v9")
    a("s_waitcnt lgkmcnt(0)")
    for w in range(1, 4):
        for k in range(4): a(f"v_add_f32 v{16+k}, v{16+k}, v{16+4*w+k}")
    a("buffer_store_dwordx2 v[16:17], v8, s[8:11], s43 offen sc1")
    a("s_mov_b64 exec, 0xffffffff")
    a("buffer_store_dwordx2 v[18:19], v9, s[8:11], s43 offen sc1")
    a("s_mov_b64 exec, -1")
    a("l_nopub:")
    a("s_mov_b32 s49, 12")
    a("l_loop:")
    a("s_waitcnt vmcnt(10)")
    a("s_barrier")
    a("s_cmp_eq_u32 s49, 11")
    a("s_cbranch_scc0 l_nosig")
    a(f"s_cmp_lt_u32 s{S_L}, 2")
    a("s_cbranch_scc0 l_nosig")
    a(f"s_cmp_eq_u32 s{S_R1}, 3")
    a("s_cbranch_scc0 l_nosig")
    csflag(a)
    signal(a, 38, S_MB)
    a("l_nosig:")
    issue_stage(a, False)
    a("s_sub_u32 s49, s49, 1")
    a("s_cmp_lg_u32 s49, 0")
    a("s_cbranch_scc1 l_loop")
    a(f"s_cmp_ge_u32 s{S_R1}, 2")
    a("s_cbranch_scc1 l_col")
    a("s_waitcnt vmcnt(10)")
    a("s_barrier")
    a("s_waitcnt vmcnt(0)")
    a("s_barrier")
    a("s_branch l_cole")
    a("l_col:")
    csflag(a)
    a(f"v_and_b32 v250, 15, v{V_LANE}")
    a("v_lshlrev_b32 v250, 3, v250")
    a("buffer_load_dwordx2 v[248:249], v250, s[8:11], s38 offen sc1")
    a("s_waitcnt vmcnt(11)")
    a("s_barrier")
    a("s_waitcnt vmcnt(0)")
    a(f"s_not_b32 s71, s{S_N}")
    a(f"v_cmp_eq_u32 vcc, s{S_N}, v248")
    a("v_cmp_eq_u32 s[72:73], s71, v249")
    a("s_nop 0")
    a("s_and_b64 vcc, vcc, s[72:73]")
    a("s_cmp_eq_u64 vcc, exec")
    a("s_cbranch_scc1 l_colok")
    if not os.environ.get("NOCS"): poll(a, 38)
    a("l_colok:")
    a(f"s_sub_u32 s49, s{S_R1}, 2")
    a("s_lshl_b32 s49, s49, 1")
    a(f"v_lshrrev_b32 v5, 5, v{V_LANE}")
    a("v_add_u32 v5, s49, v5")
    a("v_min_u32 v5, 2, v5")
    a(f"v_and_b32 v6, 31, v{V_LANE}")
    a("v_lshlrev_b32 v6, 3, v6")
    a("v_lshl_add_u32 v7, v5, 8, v6")
    a("v_lshl_add_u32 v5, v5, 12, v6")
    a(f"s_and_b32 s39, s{S_L}, 1")
    a(f"s_mul_i32 s39, s39, {16*3072*4}")
    a(f"s_lshl_b32 s49, s{S_J}, 8")
    a("s_add_u32 s49, s49, s39")
    a(f"s_add_u32 s49, s49, {hex(WS_CSP)}")
    for i in range(16):
        a(f"buffer_load_dwordx2 {v(16+2*i,2)}, v5, s[8:11], s49 offen sc1")
        if i < 15: a(f"s_add_u32 s49, s49, {3072*4}")
    a("s_barrier")
    a("s_waitcnt vmcnt(0)")
    for i in range(1, 16):
        a(f"v_add_f32 v16, v16, v{16+2*i}")
        a(f"v_add_f32 v17, v17, v{17+2*i}")
    a(f"v_add_u32 v7, s{S_CS}, v7")
    a("ds_write_b64 v7, v[16:17]")
    a("s_waitcnt lgkmcnt(0)")
    a("l_cole:")
    a("s_barrier")
    a(f"s_bitcmp1_b32 s{S_L}, 0")
    a("s_cbranch_scc1 l_B")
    wsrd(a, S_AWO, S_BWO, D_ * D_ * 2)
    a(f"s_lshl_b32 s41, s{S_R1}, 5")
    wo_voff(a)
    wo_dma(a, 41, 32)
    if True:
        a(f"s_cmp_eq_u32 s{S_L}, 0")
        a("s_cbranch_scc0 l_nowpf")
        a(f"s_and_b32 s41, s{S_MB}, 7")
        a("s_lshl_b32 s41, s41, 7")
        a(f"s_lshl_b32 s42, s{S_R1}, 5")
        a("s_add_u32 s41, s41, s42")
        w_prefetch(a, 41, 32, 16, 8)
        a("l_nowpf:")
    a("s_barrier")
    a("s_barrier")
    handoff(a, "l_hkv", FL_KV, S_J, S_MB)
    a("s_barrier")
    a("s_branch kv_reduce")
    a("l_B:")
    a("s_barrier")
    a("s_branch attention")
    a("m_entry:")
    a(f"s_lshr_b32 s{S_R1}, s{S_WAVE}, 1")
    a(f"s_and_b32 s{S_R2}, s{S_WAVE}, 1")
    a(f"s_mov_b32 s{S_L}, -1")
    layer_setup(a)
    srd(a, 16, 74, S_ * D_ * 2)
    a(f"s_lshl_b32 s50, s{S_MB}, 2")
    a(f"s_add_u32 s50, s50, s{S_WAVE}")
    a("s_lshl_b32 s51, s50, 16")
    a(f"s_lshl_b32 s39, s{S_J}, 12")
    a("s_add_u32 s52, s51, s39")
    a(f"s_lshl_b32 s39, s{S_J}, 7")
    a("s_add_u32 s53, s51, s39")
    a(f"v_and_b32 v144, 31, v{V_LANE}")
    a("v_lshlrev_b32 v144, 11, v144")
    a(f"v_lshrrev_b32 v145, 5, v{V_LANE}")
    a("v_lshl_add_u32 v144, v145, 4, v144")
    for i in range(4):
        a(f"buffer_load_dwordx4 {v(112+4*i,4)}, v144, s[16:19], s53 offen offset:{i*32}")
    a(f"v_mov_b32 v138, {hex(ONES_BF16)}")
    a("s_waitcnt vmcnt(0)")
    a(f"v_readfirstlane_b32 s{S_N}, v218")
    for i in range(4):
        a(f"v_permlane32_swap_b32 v{112+4*i}, v{112+4*i+2}")
        a(f"v_permlane32_swap_b32 v{112+4*i+1}, v{112+4*i+3}")
    a(f"s_add_u32 s{S_N}, s{S_N}, 1")
    a("s_branch p3_tail")
    a("m_layer:")
    if not os.environ.get("NOCS"):
        a(f"s_cmp_lt_u32 s{S_L}, 2")
        a("s_cbranch_scc0 m_nocs")
        L_ = V_LANE
        a(f"v_lshrrev_b32 v140, 5, v{L_}")
        a(f"v_bfe_u32 v141, v{L_}, 2, 2")
        a("v_lshl_add_u32 v140, v140, 2, v141")
        a("v_lshlrev_b32 v140, 7, v140")
        a(f"v_bfe_u32 v141, v{L_}, 4, 1")
        a(f"v_bfe_u32 v142, v{L_}, 1, 1")
        a("v_lshl_add_u32 v141, v141, 1, v142")
        a(f"v_bfe_u32 v142, v{L_}, 3, 1")
        a("v_lshlrev_b32 v142, 2, v142")
        a("v_xor_b32 v141, v141, v142")
        a("v_lshl_add_u32 v140, v141, 4, v140")
        a(f"v_and_b32 v141, 1, v{L_}")
        a("v_lshl_add_u32 v140, v141, 3, v140")
        a(f"s_lshl_b32 s39, s{S_WAVE}, 11")
        a("v_add_u32 v140, s39, v140")
        a("v_xor_b32 v141, 64, v140")
        for p in range(3):
            for hd in range(2):
                a(f"v_add_u32 v142, {L_SH[p]}, v{140+hd}")
                for t in range(2):
                    a(f"ds_read_b64_tr_b16 {v(160+(p*2+hd)*4+2*t,2)}, v142 offset:{t*1024}")
        a(f"v_mov_b32 v143, {hex(ONES_BF16)}")
        for f in range(6): a(f"v_mov_b32 v{150+f}, 0")
        a("s_waitcnt lgkmcnt(0)")
        for q in range(4):
            for f in range(6): a(f"v_dot2c_f32_bf16 v{150+f}, v{160+f*4+q}, v143")
        a("s_nop 2")
        for f in range(6): a(f"v_mov_b32 v{184+f}, v{150+f}")
        a("s_nop 1")
        for f in range(6): a(f"v_permlane32_swap_b32 v{150+f}, v{184+f}")
        a("s_nop 1")
        for f in range(6): a(f"v_add_f32 v{150+f}, v{150+f}, v{184+f}")
        a(f"v_and_b32 v142, 31, v{L_}")
        a("v_lshlrev_b32 v142, 2, v142")
        a(f"s_mul_i32 s39, s{S_WAVE}, 768")
        a(f"s_add_u32 s39, s39, {L_SCR - 0}")
        a("v_add_u32 v142, s39, v142")
        for p in range(3):
            for hd in range(2): a(f"ds_write_b32 v142, v{150+p*2+hd} offset:{p*256+hd*128}")
        a("s_waitcnt lgkmcnt(0)")
        a("m_nocs:")
    a("s_barrier")
    stamp(a, 2)
    p1_reads(a, FA, 0, range(8))
    if PFD:
        a("s_cmp_ge_u32 s42, 3")
        a("s_cbranch_scc0 m_pf0")
        a(f"s_cmp_lt_u32 s42, {PFD}")
        a("s_cbranch_scc0 m_pf0")
        m_w_prefetch(a, 42, "x")
        a("m_pf0:")
    a("m_loop:")
    if PFD:
        a("s_and_b32 s39, s41, 7")
        a("s_cmp_eq_u32 s39, s42")
        a("s_cbranch_scc0 m_pf1")
        a("s_cmp_lt_u32 s41, 16")
        a("s_cbranch_scc0 m_pf1")
        m_w_prefetch(a, 41, "y")
        a("m_pf1:")
        a("s_add_u32 s41, s41, 1")
    p1_sub(a, FA, FB, 1)
    p1_sub(a, FB, FA, 2)
    p1_sub(a, FA, FB, 3)
    p1_sub(a, FB, FA, 0, barrier=True)
    a("s_sub_u32 s49, s49, 1")
    a("s_cmp_lg_u32 s49, 0")
    a("s_cbranch_scc1 m_loop")
    a("s_waitcnt vmcnt(0) lgkmcnt(0)")
    stamp(a, 3)
    a(f"s_bitcmp1_b32 s{S_L}, 0")
    a("s_cbranch_scc1 m_B")
    m_layer_A(a)
    a("kv_reduce:")
    kv_reduce(a)
    a(f"s_cmp_lt_u32 s{S_WAVE}, 4")
    a("s_cbranch_scc0 l_A2")
    m_layer_A2(a)
    stamp(a, 7)
    a("s_barrier")
    handoff(a, "m_ho", FL_O, S_MB, S_J, wave=0)
    a("s_barrier")
    a("s_branch m_p3")
    a("l_A2:")
    a("s_barrier")
    a("s_waitcnt vmcnt(0)")
    a("s_barrier")
    a("s_branch l_p3")
    a("m_B:")
    m_layer_B(a)
    stamp(a, 4)
    a("s_barrier")
    a("attention:")
    attention(a)
    stamp(a, 7)
    a("s_barrier")
    a(f"s_cmp_lt_u32 s{S_WAVE}, 4")
    a("s_cbranch_scc0 at_l")
    handoff(a, "at_ho", FL_O, S_MB, S_J, wave=0)
    a("s_barrier")
    a("s_branch m_p3")
    a("at_l:")
    a(f"s_sub_u32 s41, s{S_WAVE}, 4")
    a("s_lshl_b32 s41, s41, 3")
    a("s_add_u32 s41, s41, 32")
    wo_dma(a, 41, 8, vd=aVG)
    a("s_add_u32 s41, s41, 64")
    wo_dma(a, 41, 8, vd=aVG)
    a("s_barrier")
    a("l_p3:")
    a("s_waitcnt vmcnt(0)")
    a("s_barrier")
    a(f"s_add_u32 s{S_L}, s{S_L}, 1")
    a(f"s_cmp_lt_u32 s{S_L}, 4")
    a("s_cbranch_scc1 l_layer")
    a("s_endpgm")
    a("m_p3:")
    stamp(a, 8)
    m_p3(a)
    kend(a, name)
    return a.text(), kernel_descriptor(name, 256), dict(name=name, grid=256, block=512, lds=MEGA_LDS)
```

```python
import sys
from common import *
import k0, mega
HEADER = """; Kernarg layout (80 bytes): A_x, A_wqkv, A_w_phi, A_wo, B_x, B_wqkv, B_wo, out, debug, ws
"""
KNAME = "interleave_layers__linear_kernel_hedgehog__mha_block__prompt_kernel"
def build(path):
    ks = [mega.gen_mega(KNAME)]
    out = HEADER
    m = ks[0][2]
    out += f"; @launch grid=({m['grid']},1,1) block=({m['block']},1,1) lds={m['lds']}\n"
    out += '.amdgcn_target "amdgcn-amd-amdhsa--gfx950"\n.text\n'
    for k in ks:
        pr = check_hazards(k[0])
        if pr:
            print(f"=== hazards in {k[2]['name']}: {len(pr)}")
            for p in pr[:40]: print(p)
        out += k[0]
    out += '.section .rodata,"a"\n'
    for k in ks: out += k[1]
    open(path, "w").write(out)
    print("wrote", path, len(out), "bytes")
if __name__ == "__main__":
    build(sys.argv[1])
```

```python
from common import *

S_MB, S_J, S_WAVE, S_R1, S_R2, S_L = 20, 21, 22, 23, 24, 25
S_AWQKV, S_BWQKV, S_AWO, S_BWO, S_AWPHI, S_OUT = 26, 28, 30, 32, 34, 36
S_XF, S_XFN, S_OF, S_KV, S_ST, S_STN, S_FL, S_ZP = 60, 61, 62, 63, 64, 65, 66, 67
S_L2E = 68
S_N, S_CS = 69, 70
V_LANE, V_L16 = 255, 254
STAGE = 40960
NST = 3
L_SCR0 = 131072
L_NM = L_SCR0
L_RS = L_NM + 512
L_CS = L_NM + 1024
L_WPHI = L_SCR0 + 3072
L_SCR = L_WPHI + 4096
L_SH = [L_SCR, L_SCR + 8192, L_SCR + 16384 + 1024]
MEGA_LDS = 163840
assert L_SH[2] + 8192 <= MEGA_LDS
SPIN = 1 << 16

class Ctx:
    pass

def stamp(a, k):
    if not STAMP: return
    a("s_memrealtime s[96:97]")
    a(f"s_lshl_b32 s91, s{S_L}, 4")
    a(f"s_add_u32 s91, s91, {k}")
    a("s_lshl_b32 s91, s91, 14")
    a("s_add_u32 s91, s91, s90")
    a("s_waitcnt lgkmcnt(0)")
    a("s_mov_b64 s[98:99], exec")
    a("s_mov_b64 exec, 1")
    a("v_mov_b32 v253, s96")
    a("v_mov_b32 v252, 0")
    a("buffer_store_dword v253, v252, s[8:11], s91 offen")
    a("s_mov_b64 exec, s[98:99]")

def layer_setup(a):
    a(f"s_lshl_b32 s38, s{S_L}, 22")
    a(f"s_add_u32 s{S_XF}, s38, {hex(WS_XF)}" if WS_XF else f"s_mov_b32 s{S_XF}, s38")
    a(f"s_add_u32 s{S_XFN}, s{S_XF}, 0x400000")
    a(f"s_add_u32 s{S_OF}, s38, {hex(WS_OF)}")
    a(f"s_lshl_b32 s38, s{S_L}, 18")
    a(f"s_add_u32 s{S_ST}, s38, {hex(WS_STATS)}")
    a(f"s_add_u32 s{S_STN}, s{S_ST}, 0x40000")
    a(f"s_mul_i32 s38, s{S_L}, 0x1800")
    a(f"s_add_u32 s{S_FL}, s38, {hex(WS_FLAGS + 0x1800)}")
    a(f"s_and_b32 s38, s{S_L}, 1")
    a("s_mul_i32 s38, s38, 768")
    a(f"s_add_u32 s{S_CS}, s38, {L_CS}")
    a(f"s_lshr_b32 s39, s{S_L}, 1")
    a(f"s_lshl_b32 s38, s39, 17")
    a(f"s_add_u32 s{S_ZP}, s38, {hex(WS_ZP)}")
    a(f"s_lshl_b32 s38, s39, 21")
    a(f"s_add_u32 s38, s38, {hex(WS_KVP)}")
    a(f"s_lshl_b32 s39, s39, 23")
    a(f"s_add_u32 s39, s39, {hex(WS_KVF)}")
    a(f"s_bitcmp1_b32 s{S_L}, 0")
    a(f"s_cselect_b32 s{S_KV}, s39, s38")

def wsrd(a, pa, pb, nbytes):
    a(f"s_bitcmp1_b32 s{S_L}, 0")
    a(f"s_cselect_b32 s12, s{pb}, s{pa}")
    a(f"s_cselect_b32 s13, s{pb+1}, s{pa+1}")
    a("s_and_b32 s13, s13, 0xffff")
    a(f"s_mov_b32 s14, {hex(nbytes)}")
    a("s_mov_b32 s15, 0x20000")

def signal(a, sflag, sidx):
    a(f"s_lshl_b32 s39, s{sidx}, 3")
    a("v_mov_b32 v250, s39")
    a(f"v_mov_b32 v248, s{S_N}")
    a(f"v_not_b32 v249, v248")
    a("s_mov_b64 exec, 1")
    a(f"buffer_store_dwordx2 v[248:249], v250, s[8:11], s{sflag} offen sc1")
    a("s_mov_b64 exec, -1")

_poll_n = [0]
NPOLL = int(os.environ.get('NPOLL', '3'))
def poll(a, sflag):
    n = _poll_n[0]; _poll_n[0] += 1
    a(f"v_and_b32 v250, 15, v{V_LANE}")
    a("v_lshlrev_b32 v250, 3, v250")
    a(f"s_mov_b32 s39, {SPIN}")
    a(f"s_not_b32 s37x, s{S_N}".replace("s37x", "s71"))
    regs = [248, 246, 244][:NPOLL]
    for i, r in enumerate(regs):
        a(f"buffer_load_dwordx2 {v(r,2)}, v250, s[8:11], s{sflag} offen sc1")
        if i < NPOLL - 1: a("s_sleep 3")
    a(f"poll{n}:")
    for r in regs:
        a(f"s_waitcnt vmcnt({NPOLL-1})")
        a(f"v_cmp_eq_u32 vcc, s{S_N}, v{r}")
        a(f"v_cmp_eq_u32 s[72:73], s71, v{r+1}")
        a("s_nop 0")
        a("s_and_b64 vcc, vcc, s[72:73]")
        a("s_cmp_eq_u64 vcc, exec")
        a(f"s_cbranch_scc1 poll{n}_done")
        a(f"buffer_load_dwordx2 {v(r,2)}, v250, s[8:11], s{sflag} offen sc1")
    a("s_sub_u32 s39, s39, 1")
    a("s_cmp_lg_u32 s39, 0")
    a(f"s_cbranch_scc1 poll{n}")
    a(f"poll{n}_done:")

def handoff(a, lbl, ftype, sgroup, sidx, layer_delta=0, wave=4, do_signal=True, do_poll=True):
    a(f"s_cmp_eq_u32 s{S_WAVE}, {wave}")
    a(f"s_cbranch_scc0 {lbl}")
    a(f"s_lshl_b32 s38, s{sgroup}, 7")
    a(f"s_add_u32 s38, s38, s{S_FL}")
    off = ftype + layer_delta * 0x1800
    if off > 0: a(f"s_add_u32 s38, s38, {off}")
    if off < 0: a(f"s_sub_u32 s38, s38, {-off}")
    if do_signal: signal(a, 38, sidx)
    if do_poll: poll(a, 38)
    a(f"{lbl}:")

ACC = 0
FA, FB = 96, 116
VX, VW, VX0, VW0 = 136, 137, 138, 139
def acc(p, mi): return ACC + (p * 2 + mi) * 16

VXN, VXN0 = 140, 144
def p1_reads(a, fs, ks, which, nat=False):
    def rd(n):
        if nat:
            if n == 0: return f"ds_read_b128 {v(fs,4)}, v{VXN+ks}"
            if n == 3: return f"ds_read_b128 {v(fs+4,4)}, v{VXN+ks} offset:4096"
        if n == 0: return f"ds_read_b128 {v(fs,4)}, v{VX} offset:{ks*1024}"
        if n == 3: return f"ds_read_b128 {v(fs+4,4)}, v{VX} offset:{4096+ks*1024}"
        p, t = {1:(0,0),2:(0,1),4:(1,0),5:(1,1),6:(2,0),7:(2,1)}[n]
        return f"ds_read_b64_tr_b16 {v(fs+8+4*p+2*t,2)}, v{VW} offset:{16384+p*8192+ks*2048+t*(512 if nat else 1024)}"
    for n in which: a(rd(n))

def p1_sub(a, cur, nxt, nks, barrier=False, nat=False):
    x0, x1, wq, wk, wv = cur, cur+4, cur+8, cur+12, cur+16
    def mf(d, A, B):
        if os.environ.get("M16EXP"):
            a(f"{M16} {v(d,4)}, {v(A,4)}, {v(B,4)}, {v(d,4)}")
            a(f"{M16} {v(d+8,4)}, {v(A,4)}, {v(B,4)}, {v(d+8,4)}")
        else:
            a(f"{M32} {v(d,16)}, {v(A,4)}, {v(B,4)}, {v(d,16)}")
    if barrier:
        a("s_waitcnt lgkmcnt(0)")
        a("s_barrier")
        a(f"s_add_u32 s40, s40, {STAGE}")
        a(f"s_cmp_eq_u32 s40, {NST*STAGE}")
        a("s_cselect_b32 s40, 0, s40")
        if nat:
            for k in range(4): a(f"v_add_u32 v{VXN+k}, s40, v{VXN0+k}")
        else:
            a(f"v_add_u32 v{VX}, s40, v{VX0}")
        a(f"v_add_u32 v{VW}, s40, v{VW0}")
    else:
        a("s_waitcnt lgkmcnt(5)")
    mf(acc(0,0), wq, x0)
    p1_reads(a, nxt, nks, [0, 1], nat)
    if not barrier: a("s_waitcnt lgkmcnt(6)")
    mf(acc(0,1), wq, x1)
    p1_reads(a, nxt, nks, [2, 3], nat)
    if not barrier: a("s_waitcnt lgkmcnt(6)")
    mf(acc(1,0), wk, x0)
    p1_reads(a, nxt, nks, [4, 5], nat)
    mf(acc(1,1), wk, x1)
    p1_reads(a, nxt, nks, [6, 7], nat)
    if not barrier: a("s_waitcnt lgkmcnt(8)")
    mf(acc(2,0), x0, wv)
    mf(acc(2,1), x1, wv)

ROT = os.environ.get("ROT", "none")
def issue_x(a, fill=None):
    a("s_mul_i32 s41, s56, s82")
    a("s_add_u32 s41, s41, s58")
    a("s_add_u32 s43, s45, s47")
    a("s_add_u32 s56, s56, 1")
    a("s_and_b32 s56, s56, 15")
    for q in range(4):
        a(f"s_add_u32 m0, s43, {q*1024}")
        if q: a("s_add_u32 s41, s41, s81")
        else: a("s_nop 0")
        a(f"buffer_load_dwordx4 v{2 if q % 2 == 0 else 4}, s[84:87], s41 offen sc1 lds")
        if fill: fill()
    a(f"s_add_u32 s45, s45, {STAGE}")
    a(f"s_cmp_eq_u32 s45, {NST*STAGE}")
    a("s_cselect_b32 s45, 0, s45")

def issue_w(a, fill=None):
    a(f"s_mul_i32 s42, s57, {64*6144}")
    a("s_add_u32 s42, s42, s59")
    a("s_add_u32 s57, s57, 1")
    a("s_and_b32 s57, s57, 15")
    a("s_add_u32 s44, s46, s48")
    for p in range(3):
        for q in range(2):
            a(f"s_add_u32 m0, s44, {p*8192+q*1024}")
            a(f"s_add_u32 s43, s42, {p*2048+q*8*6144}")
            a("buffer_load_dwordx4 v3, s[12:15], s43 offen lds")
            if fill: fill()
    a(f"s_add_u32 s46, s46, {STAGE}")
    a(f"s_cmp_eq_u32 s46, {NST*STAGE}")
    a("s_cselect_b32 s46, 0, s46")

WPF = int(os.environ.get("WPF", "0"))
PFD = int(os.environ.get("PFD", "6"))
def m_w_prefetch(a, sstage, lbl):
    a(f"s_mul_i32 s43, s{sstage}, {64*6144}")
    a("s_add_u32 s43, s43, s45")
    n = 0
    for q in range(2):
        for p in range(3):
            a(f"s_add_u32 s44, s43, {q*8*6144 + p*2048}")
            a(f"buffer_load_dwordx4 {v(196+4*n,4)}, v220, s[12:15], s44 offen")
            n += 1
PFMOD = os.environ.get("PFMOD", "")
def w_prefetch(a, srow0, nrows, vdst, vtmp):
    a(f"s_bitcmp1_b32 s{S_L}, 0")
    a(f"s_cselect_b32 s16, s{S_AWQKV}, s{S_BWQKV}")
    a(f"s_cselect_b32 s17, s{S_AWQKV+1}, s{S_BWQKV+1}")
    a("s_and_b32 s17, s17, 0xffff")
    a(f"s_mov_b32 s18, {hex(D_*3*D_*2)}")
    a("s_mov_b32 s19, 0x20000")
    a(f"v_lshrrev_b32 v{vtmp}, 3, v{V_LANE}")
    a(f"v_mul_u32_u24 v{vtmp}, 6144, v{vtmp}")
    a(f"v_and_b32 v{vtmp+1}, 7, v{V_LANE}")
    a(f"v_lshl_add_u32 v{vtmp}, v{vtmp+1}, 4, v{vtmp}")
    a(f"s_mul_i32 s43, s{srow0}, 6144")
    a(f"s_lshl_b32 s44, s{S_J}, 7")
    a("s_add_u32 s43, s43, s44")
    n = 0
    for g in range(nrows // 8):
        for p in range(3):
            a(f"s_add_u32 s44, s43, {g*8*6144 + p*2048}")
            a(f"buffer_load_dwordx4 {v(vdst+4*n,4)}, v{vtmp}, s[16:19], s44 offen {PFMOD}")
            n += 1

def wo_voff(a, vd=5, t0=6, t1=7):
    a(f"v_lshrrev_b32 v{vd}, 3, v{V_LANE}")
    a(f"v_lshlrev_b32 v{t0}, 11, v{vd}")
    a(f"v_and_b32 v{vd}, 7, v{V_LANE}")
    a(f"v_bfe_u32 v{t1}, v{V_LANE}, 4, 1")
    a(f"v_lshlrev_b32 v{t1}, 2, v{t1}")
    a(f"v_xor_b32 v{vd}, v{vd}, v{t1}")
    a(f"v_lshl_add_u32 v{vd}, v{vd}, 4, v{t0}")

def wo_dma(a, first_piece_sgpr, n, vd=5):
    a(f"s_lshl_b32 s43, s{first_piece_sgpr}, 14")
    a(f"s_lshl_b32 s44, s{S_J}, 7")
    a("s_add_u32 s43, s43, s44")
    a(f"s_lshl_b32 s44, s{first_piece_sgpr}, 10")
    for i in range(n):
        a("s_mov_b32 m0, s44")
        a("s_add_u32 s44, s44, 1024")
        a(f"buffer_load_dwordx4 v{vd}, s[12:15], s43 offen lds")
        if i < n - 1: a("s_add_u32 s43, s43, 16384")

CSACC, CSF, CSV0, CSONE = 48, 56, 8, 10
def csflag(a):
    a(f"s_and_b32 s38, s{S_L}, 1")
    a(f"s_mul_i32 s38, s38, {FL_O - FL_KV}")
    a(f"s_lshl_b32 s39, s{S_J}, 7")
    a("s_add_u32 s38, s38, s39")
    a(f"s_add_u32 s38, s38, {hex(WS_FLAGS + FL_KV)}")

def colsum_setup(a):
    L_ = V_LANE
    a(f"v_lshrrev_b32 v11, 5, v{L_}")
    a(f"v_bfe_u32 v12, v{L_}, 2, 2")
    a("v_lshl_add_u32 v11, v11, 2, v12")
    a("v_lshlrev_b32 v11, 7, v11")
    a(f"v_bfe_u32 v12, v{L_}, 4, 1")
    a(f"v_bfe_u32 v13, v{L_}, 1, 1")
    a("v_lshl_add_u32 v12, v12, 1, v13")
    a(f"v_bfe_u32 v13, v{L_}, 3, 1")
    a("v_lshlrev_b32 v13, 2, v13")
    a("v_xor_b32 v12, v12, v13")
    a("v_lshl_add_u32 v11, v12, 4, v11")
    a(f"v_and_b32 v12, 1, v{L_}")
    a("v_lshl_add_u32 v11, v12, 3, v11")
    a(f"s_lshl_b32 s39, s{S_R1}, 11")
    a("s_add_u32 s39, s39, 16384")
    a(f"v_add_u32 v{CSV0}, s39, v11")
    a(f"v_xor_b32 v{CSV0+1}, 64, v{CSV0}")
    a(f"v_mov_b32 v{CSONE}, {hex(ONES_BF16)}")
    for i in range(6): a(f"v_mov_b32 v{CSACC+i}, 0")
    a("s_mov_b32 s51, 0")

def colsum_stage(a, lbl):
    a(f"s_cmp_lt_u32 s{S_L}, 2")
    a(f"s_cbranch_scc0 {lbl}")
    a(f"v_add_u32 v12, s51, v{CSV0}")
    a(f"v_add_u32 v13, s51, v{CSV0+1}")
    for p in range(3):
        for hd in range(2):
            for t in range(2):
                a(f"ds_read_b64_tr_b16 {v(CSF+(p*2+hd)*4+2*t,2)}, v{12+hd} offset:{p*8192+t*1024}")
    a(f"s_add_u32 s51, s51, {STAGE}")
    a(f"s_cmp_eq_u32 s51, {NST*STAGE}")
    a("s_cselect_b32 s51, 0, s51")
    a("s_waitcnt lgkmcnt(0)")
    for q in range(4):
        for f in range(6):
            a(f"v_dot2c_f32_bf16 v{CSACC+f}, v{CSF+f*4+q}, v{CSONE}")
    a(f"{lbl}:")

def colsum_reads(a):
    a(f"v_add_u32 v12, s51, v{CSV0}")
    a(f"v_add_u32 v13, s51, v{CSV0+1}")
    for p in range(3):
        for hd in range(2):
            for t in range(2):
                a(f"ds_read_b64_tr_b16 {v(CSF+(p*2+hd)*4+2*t,2)}, v{12+hd} offset:{p*8192+t*1024}")
    a(f"s_add_u32 s51, s51, {STAGE}")
    a(f"s_cmp_eq_u32 s51, {NST*STAGE}")
    a("s_cselect_b32 s51, 0, s51")

def colsum_filler(a):
    st = {"n": 0, "k": 0}
    ops = [(f, q) for q in range(4) for f in range(6)]
    def fill():
        st["n"] += 1
        if st["n"] < 3: return
        if st["n"] == 3: a("s_waitcnt lgkmcnt(0)")
        for _ in range(3):
            if st["k"] < 24:
                f, q = ops[st["k"]]; st["k"] += 1
                a(f"v_dot2c_f32_bf16 v{CSACC+f}, v{CSF+f*4+q}, v{CSONE}")
    return fill

def issue_stage(a, cs):
    if cs:
        colsum_reads(a)
        f = colsum_filler(a)
        issue_x(a, f); issue_w(a, f)
    else:
        issue_x(a); issue_w(a)

def colsum_finish(a, lbl):
    a(f"s_cmp_lt_u32 s{S_L}, 2")
    a(f"s_cbranch_scc0 {lbl}")
    a("s_nop 2")
    for f in range(6): a(f"v_mov_b32 v{56+f}, v{CSACC+f}")
    a("s_nop 1")
    for f in range(6): a(f"v_permlane32_swap_b32 v{CSACC+f}, v{56+f}")
    a("s_nop 1")
    for f in range(6): a(f"v_add_f32 v{CSACC+f}, v{CSACC+f}, v{56+f}")
    a(f"v_and_b32 v12, 31, v{V_LANE}")
    a("v_lshlrev_b32 v12, 2, v12")
    a(f"v_add_u32 v12, s{S_CS}, v12")
    a("s_mov_b64 exec, 0xffffffff")
    for p in range(3):
        for hd in range(2):
            a(f"ds_add_f32 v12, v{CSACC+p*2+hd} offset:{p*256+hd*128}")
    a("s_mov_b64 exec, -1")
    a("s_waitcnt lgkmcnt(0)")
    a(f"{lbl}:")

T1 = 158
def load_stats_T(a, dst_nm, dst_rs, t=148):
    a(f"v_and_b32 v{t}, 31, v{V_LANE}")
    a(f"s_lshl_b32 s39, s{S_R1}, 8")
    a(f"v_lshlrev_b32 v{t}, 2, v{t}")
    a(f"v_add_u32 v{t}, s39, v{t}")
    a(f"v_add_u32 v{t}, {L_NM}, v{t}")
    for mi in range(2):
        a(f"ds_read_b32 v{dst_nm+2*mi}, v{t} offset:{mi*128}")
        a(f"ds_read_b32 v{dst_rs+2*mi}, v{t} offset:{512+mi*128}")

def load_cs_T(a, p, dst, t=149):
    a(f"v_lshrrev_b32 v{t}, 5, v{V_LANE}")
    a(f"v_lshlrev_b32 v{t}, 4, v{t}")
    a(f"s_lshl_b32 s39, s{S_R2}, 7")
    a(f"s_add_u32 s39, s39, s{S_CS}")
    a(f"v_add_u32 v{t}, s39, v{t}")
    for g in range(4):
        a(f"ds_read_b128 {v(dst+4*g,4)}, v{t} offset:{p*256+g*32}")

def norm_T(a, ac, cs, nm, rs):
    for r in range(8):
        a(f"v_pk_fma_f32 {v(ac+2*r,2)}, {v(cs+2*r,2)}, {v(nm,2)}, {v(ac+2*r,2)} op_sel_hi:[1,0,1]")
    for r in range(8):
        a(f"v_pk_mul_f32 {v(ac+2*r,2)}, {v(ac+2*r,2)}, {v(rs,2)} op_sel_hi:[1,0]")

def pack(a, ac, dst):
    for r in range(8):
        a(f"v_cvt_pk_bf16_f32 v{dst+r}, v{ac+2*r}, v{ac+2*r+1}")

def load_stats_F(a, mi, dst_nm, dst_rs, t=144):
    a(f"v_lshrrev_b32 v{t}, 5, v{V_LANE}")
    a(f"v_lshlrev_b32 v{t}, 4, v{t}")
    a(f"s_lshl_b32 s39, s{S_R1}, 8")
    a(f"v_add_u32 v{t}, s39, v{t}")
    a(f"v_add_u32 v{t}, {L_NM}, v{t}")
    for g in range(4):
        a(f"ds_read_b128 {v(dst_nm+4*g,4)}, v{t} offset:{mi*128+g*32}")
        a(f"ds_read_b128 {v(dst_rs+4*g,4)}, v{t} offset:{512+mi*128+g*32}")

def load_cs_F(a, dst, t=145):
    a(f"v_and_b32 v{t}, 31, v{V_LANE}")
    a(f"v_lshlrev_b32 v{t}, 2, v{t}")
    a(f"s_lshl_b32 s39, s{S_R2}, 7")
    a(f"s_add_u32 s39, s39, s{S_CS}")
    a(f"v_add_u32 v{t}, s39, v{t}")
    a(f"ds_read_b32 v{dst}, v{t} offset:512")

def norm_F(a, ac, cs, nm, rs):
    for r in range(8):
        a(f"v_pk_fma_f32 {v(ac+2*r,2)}, {v(nm+2*r,2)}, {v(cs,2)}, {v(ac+2*r,2)} op_sel_hi:[1,0,1]")
    for r in range(8):
        a(f"v_pk_mul_f32 {v(ac+2*r,2)}, {v(ac+2*r,2)}, {v(rs+2*r,2)}")

def wphi_load(a, dst, t0, t1):
    a(f"v_lshrrev_b32 v{t0}, 5, v{V_LANE}")
    a(f"v_bfe_u32 v{t1}, v{V_LANE}, 2, 2")
    a(f"v_lshl_add_u32 v{t0}, v{t0}, 2, v{t1}")
    a(f"v_lshlrev_b32 v{t0}, 6, v{t0}")
    a(f"v_bfe_u32 v{t1}, v{V_LANE}, 4, 1")
    a(f"v_lshl_add_u32 v{t0}, v{t1}, 5, v{t0}")
    a(f"v_and_b32 v{t1}, 3, v{V_LANE}")
    a(f"v_lshl_add_u32 v{t1}, v{t1}, 3, v{t0}")
    a(f"s_lshl_b32 s39, s{S_R2}, 11")
    a(f"s_add_u32 s39, s39, {L_WPHI}")
    a(f"v_add_u32 v{t1}, s39, v{t1}")
    for t in range(2):
        for tp in range(2):
            a(f"ds_read_b64_tr_b16 {v(dst+4*t+2*tp,2)}, v{t1} offset:{(16*t+8*tp)*64}")

def softmax_pm(a, PD, EN, PT, T):
    sL = S_L2E
    mx, mn, t1, t2, sp, sn = T, T+1, T+2, T+3, T+4, T+6
    a(f"v_max3_f32 v{mx}, v{PD}, v{PD+1}, v{PD+2}")
    a(f"v_min3_f32 v{mn}, v{PD}, v{PD+1}, v{PD+2}")
    for i in range(3, 15, 2):
        a(f"v_max3_f32 v{mx}, v{mx}, v{PD+i}, v{PD+i+1}")
        a(f"v_min3_f32 v{mn}, v{mn}, v{PD+i}, v{PD+i+1}")
    a(f"v_max_f32 v{mx}, v{mx}, v{PD+15}")
    a(f"v_min_f32 v{mn}, v{mn}, v{PD+15}")
    a(f"v_mov_b32 v{t1}, v{mx}")
    a(f"v_mov_b32 v{t2}, v{mn}")
    a("s_nop 1")
    a(f"v_permlane32_swap_b32 v{mx}, v{t1}")
    a(f"v_permlane32_swap_b32 v{mn}, v{t2}")
    a("s_nop 1")
    a(f"v_max_f32 v{mx}, v{mx}, v{t1}")
    a(f"v_min_f32 v{mn}, v{mn}, v{t2}")
    a(f"v_mul_f32 v{mx}, s{sL}, v{mx}")
    a(f"v_mul_f32 v{mn}, s{sL}, v{mn}")
    for r in range(16): a(f"v_fma_f32 v{EN+r}, -v{PD+r}, s{sL}, v{mn}")
    for r in range(16): a(f"v_fma_f32 v{PD+r}, v{PD+r}, s{sL}, -v{mx}")
    for r in range(16): a(f"v_exp_f32 v{EN+r}, v{EN+r}")
    for r in range(16): a(f"v_exp_f32 v{PD+r}, v{PD+r}")
    a(f"v_pk_add_f32 {v(sn,2)}, {v(EN,2)}, {v(EN+2,2)}")
    for r in range(2, 8): a(f"v_pk_add_f32 {v(sn,2)}, {v(sn,2)}, {v(EN+2*r,2)}")
    a(f"v_pk_add_f32 {v(sp,2)}, {v(PD,2)}, {v(PD+2,2)}")
    for r in range(2, 8): a(f"v_pk_add_f32 {v(sp,2)}, {v(sp,2)}, {v(PD+2*r,2)}")
    a(f"v_add_f32 v{sn}, v{sn}, v{sn+1}")
    a(f"v_add_f32 v{sp}, v{sp}, v{sp+1}")
    a(f"v_mov_b32 v{t1}, v{sp}")
    a(f"v_mov_b32 v{t2}, v{sn}")
    a("s_nop 1")
    a(f"v_permlane32_swap_b32 v{sp}, v{t1}")
    a(f"v_permlane32_swap_b32 v{sn}, v{t2}")
    a("s_nop 1")
    a(f"v_add_f32 v{sp}, v{sp}, v{t1}")
    a(f"v_add_f32 v{sn}, v{sn}, v{t2}")
    a(f"v_rcp_f32 v{sp}, v{sp}")
    a(f"v_rcp_f32 v{sn}, v{sn}")
    a("s_nop 0")
    for r in range(8): a(f"v_pk_mul_f32 {v(PD+2*r,2)}, {v(PD+2*r,2)}, {v(sp,2)} op_sel_hi:[1,0]")
    for r in range(8): a(f"v_pk_mul_f32 {v(EN+2*r,2)}, {v(EN+2*r,2)}, {v(sn,2)} op_sel_hi:[1,0]")
    for r in range(8): a(f"v_cvt_pk_bf16_f32 v{PT+r}, v{PD+2*r}, v{PD+2*r+1}")
    for r in range(8): a(f"v_cvt_pk_bf16_f32 v{PT+8+r}, v{EN+2*r}, v{EN+2*r+1}")

NM, RS = 150, 154
CSV, CSQ, CSK, FNM, FRS = 162, 164, 180, 196, 212

def head_tb(a):
    a(f"s_lshl_b32 s50, s{S_J}, 1")
    a(f"s_add_u32 s50, s50, s{S_R2}")
    a(f"s_lshl_b32 s51, s{S_MB}, 2")
    a(f"s_lshl_b32 s39, s{S_R1}, 1")
    a("s_add_u32 s51, s51, s39")

def m_layer_A(a):
    PD, EN = 32, 48
    KVA_, TD, PF = 64, [96, 112], [128, 136]
    ONES = [144, 158]
    PT0, PT1, ZA = 164, 180, 180
    KT, WPH, I0, VF, T = 196, 212, 220, 228, 246
    load_stats_T(a, NM, RS)
    load_cs_T(a, 1, CSK)
    load_cs_F(a, CSV)
    load_stats_F(a, 0, FNM, FRS)
    head_tb(a)
    a("s_waitcnt lgkmcnt(0)")
    norm_F(a, acc(2, 0), CSV, FNM, FRS)
    load_stats_F(a, 1, FNM, FRS)
    pack(a, acc(2, 0), VF)
    for mi in range(2): norm_T(a, acc(1, mi), CSK, NM + 2*mi, RS + 2*mi)
    a("s_waitcnt lgkmcnt(0)")
    norm_F(a, acc(2, 1), CSV, FNM, FRS)
    pack(a, acc(2, 1), VF + 8)
    for mi in range(2): pack(a, acc(1, mi), KT + 8*mi)
    wphi_load(a, WPH, 148, 149)
    n4, hh, jj, val = 144, 145, 146, 147
    a(f"v_bfe_u32 v{n4}, v{V_LANE}, 2, 1")
    a(f"v_lshrrev_b32 v{hh}, 5, v{V_LANE}")
    a(f"v_cmp_eq_u32 vcc, v{n4}, v{hh}")
    a(f"v_bfe_u32 v{jj}, v{V_LANE}, 3, 1")
    a(f"v_lshlrev_b32 v{jj}, 2, v{jj}")
    a(f"v_and_b32 v{n4}, 3, v{V_LANE}")
    a(f"v_add_u32 v{jj}, v{jj}, v{n4}")
    a(f"v_and_b32 v{n4}, 1, v{jj}")
    a(f"v_lshlrev_b32 v{n4}, 4, v{n4}")
    a(f"v_mov_b32 v{val}, 0x3f80")
    a(f"v_lshlrev_b32 v{val}, v{n4}, v{val}")
    a(f"v_cndmask_b32 v{val}, 0, v{val}, vcc")
    a(f"v_lshrrev_b32 v{jj}, 1, v{jj}")
    a(f"v_bfe_u32 v{hh}, v{V_LANE}, 4, 1")
    a(f"v_lshl_add_u32 v{jj}, v{hh}, 2, v{jj}")
    for k in range(8):
        a(f"v_cmp_eq_u32 vcc, {k}, v{jj}")
        a("s_nop 1")
        a(f"v_cndmask_b32 v{I0+k}, 0, v{val}, vcc")
    a(f"v_cmp_eq_u32 vcc, 0, v{hh}")
    a(f"v_mov_b32 v{val}, {hex(ONES_BF16)}")
    a("s_nop 0")
    a(f"v_cndmask_b32 v148, 0, v{val}, vcc")
    a(f"v_sub_u32 v149, v{val}, v148")
    for k in range(4):
        a(f"v_mov_b32 v{ONES[0]+k}, v148")
        a(f"v_mov_b32 v{ONES[1]+k}, v149")
    a("s_waitcnt lgkmcnt(0)")
    for mi in range(2):
        a(f"{M32} {v(PD,16)}, {v(WPH,4)}, {v(KT+8*mi,4)}, 0")
        a(f"{M32} {v(PD,16)}, {v(WPH+4,4)}, {v(KT+8*mi+4,4)}, {v(PD,16)}")
        a("s_nop 11")
        softmax_pm(a, PD, EN, PT0, T)
        a("s_nop 1")
        for fb in range(2):
            a(f"{M32} {v(TD[fb],16)}, {v(PT0+8*fb,4)}, {v(I0,4)}, 0")
            a(f"{M32} {v(TD[fb],16)}, {v(PT0+8*fb+4,4)}, {v(I0+4,4)}, {v(TD[fb],16)}")
        a("s_nop 10")
        pack(a, TD[0], PF[0])
        pack(a, TD[1], PF[1])
        a("s_nop 1")
        for fb in range(2):
            for tt in range(2):
                c = "0" if (mi == 0 and tt == 0) else v(KVA_+16*fb,16)
                a(f"{M32} {v(KVA_+16*fb,16)}, {v(PF[fb]+4*tt,4)}, {v(VF+8*mi+4*tt,4)}, {c}")
        for fb in range(2):
            for tt in range(2):
                c = "0" if (mi == 0 and tt == 0 and fb == 0) else v(ZA,16)
                a(f"{M32} {v(ZA,16)}, {v(PF[fb]+4*tt,4)}, {v(ONES[fb],4)}, {c}")
    a("s_nop 15")
    stamp(a, 4)
    t = 148
    a(f"s_lshl_b32 s39, s{S_R2}, 13")
    a(f"s_add_u32 s39, s39, {L_SCR}")
    a(f"v_add_u32 v{t}, s39, v{V_L16}")
    a(f"v_lshrrev_b32 v149, 4, v{V_LANE}")
    a("v_lshlrev_b32 v149, 6, v149")
    a(f"s_lshl_b32 s39, s{S_R2}, 8")
    a(f"s_add_u32 s39, s39, {L_SCR+16384}")
    a("v_add_u32 v149, s39, v149")
    a(f"s_cmp_eq_u32 s{S_R1}, 0")
    a("s_cbranch_scc1 mA_red0")
    for q in range(8):
        a(f"ds_write_b128 v{t}, {v(KVA_+4*q,4)} offset:{q*1024}")
    a("s_mov_b32 exec_lo, 0x00010001")
    a("s_mov_b32 exec_hi, 0x00010001")
    for q in range(4):
        a(f"ds_write_b128 v149, {v(ZA+4*q,4)} offset:{q*16}")
    a("s_mov_b64 exec, -1")
    a("s_waitcnt lgkmcnt(0)")
    a("s_barrier")
    a("s_branch mA_red1")
    a("mA_red0:")
    a("s_barrier")
    for q in range(8):
        a(f"ds_read_b128 {v(96+4*q,4)}, v{t} offset:{q*1024}")
    for q in range(4):
        a(f"ds_read_b128 {v(128+4*q,4)}, v149 offset:{q*16}")
    a("s_waitcnt lgkmcnt(0)")
    for r in range(16): a(f"v_pk_add_f32 {v(KVA_+2*r,2)}, {v(KVA_+2*r,2)}, {v(96+2*r,2)}")
    for r in range(8): a(f"v_pk_add_f32 {v(ZA+2*r,2)}, {v(ZA+2*r,2)}, {v(128+2*r,2)}")
    for r in range(16): a(f"v_cvt_pk_bf16_f32 v{96+r}, v{KVA_+2*r}, v{KVA_+2*r+1}")
    a("s_lshl_b32 s52, s50, 4")
    a(f"s_add_u32 s52, s52, s{S_MB}")
    a("s_lshl_b32 s53, s52, 12")
    a(f"s_add_u32 s53, s53, s{S_KV}")
    for u in range(4):
        a(f"buffer_store_dwordx4 {v(96+4*u,4)}, v{V_L16}, s[8:11], s53 offen offset:{u*1024} sc1")
    a("s_lshl_b32 s53, s52, 8")
    a(f"s_add_u32 s53, s53, s{S_ZP}")
    a(f"v_bfe_u32 v148, v{V_LANE}, 4, 1")
    a("v_lshlrev_b32 v148, 7, v148")
    a(f"v_lshrrev_b32 v149, 5, v{V_LANE}")
    a("v_lshl_add_u32 v148, v149, 6, v148")
    a("s_mov_b32 exec_lo, 0x00010001")
    a("s_mov_b32 exec_hi, 0x00010001")
    for q in range(4):
        a(f"buffer_store_dwordx4 {v(ZA+4*q,4)}, v148, s[8:11], s53 offen offset:{q*16} sc1")
    a("s_mov_b64 exec, -1")
    a("s_waitcnt vmcnt(0)")
    a("mA_red1:")
    a("s_barrier")
    stamp(a, 5)
    load_cs_T(a, 0, CSQ)
    a("s_waitcnt lgkmcnt(0)")
    for mi in range(2): norm_T(a, acc(0, mi), CSQ, NM + 2*mi, RS + 2*mi)
    for mi in range(2): pack(a, acc(0, mi), KT + 8*mi)
    a("s_nop 1")
    for mi in range(2):
        a(f"{M32} {v(PD,16)}, {v(WPH,4)}, {v(KT+8*mi,4)}, 0")
        a(f"{M32} {v(PD,16)}, {v(WPH+4,4)}, {v(KT+8*mi+4,4)}, {v(PD,16)}")
        a("s_nop 11")
        softmax_pm(a, PD, EN, PT0 if mi == 0 else PT1, T)
    stamp(a, 6)
    a("s_barrier")

def kv_reduce(a):
    stamp(a, 12)
    a("v_lshrrev_b32 v144, 8, v253") if False else None
    a(f"s_lshr_b32 s39, s{S_WAVE}, 2")
    a("s_lshl_b32 s39, s39, 16")
    a(f"s_and_b32 s40, s{S_WAVE}, 3")
    a("s_lshl_b32 s40, s40, 10")
    a("s_add_u32 s39, s39, s40")
    a(f"s_lshl_b32 s41, s{S_J}, 17")
    a("s_add_u32 s39, s39, s41")
    a(f"s_add_u32 s39, s39, s{S_KV}")
    for i in range(16):
        a(f"buffer_load_dwordx4 {v(64+4*i,4)}, v{V_L16}, s[8:11], s39 offen sc1")
        if i < 15: a("s_add_u32 s39, s39, 4096")
    a(f"s_cmp_lt_u32 s{S_WAVE}, 2")
    a("s_cbranch_scc0 kvr_nz")
    a(f"s_lshl_b32 s39, s{S_J}, 1")
    a(f"s_add_u32 s39, s39, s{S_WAVE}")
    a("s_lshl_b32 s39, s39, 12")
    a(f"s_add_u32 s39, s39, s{S_ZP}")
    a(f"v_lshlrev_b32 v143, 2, v{V_LANE}")
    for i in range(16):
        a(f"buffer_load_dword v{144+i}, v143, s[8:11], s39 offen offset:{i*256} sc1")
    a("s_waitcnt vmcnt(0)")
    for i in range(1, 16): a(f"v_add_f32 v144, v144, v{144+i}")
    a("v_cvt_pk_bf16_f32 v144, v144, v144")
    a(f"v_lshrrev_b32 v145, 5, v{V_LANE}")
    a(f"v_bfe_u32 v146, v{V_LANE}, 3, 1")
    a("v_lshl_add_u32 v145, v145, 1, v146")
    a(f"v_bfe_u32 v146, v{V_LANE}, 4, 1")
    a("v_lshl_add_u32 v145, v145, 1, v146")
    a(f"v_and_b32 v146, 7, v{V_LANE}")
    a("v_lshl_add_u32 v145, v145, 3, v146")
    a("v_lshlrev_b32 v145, 1, v145")
    a(f"s_lshl_b32 s39, s{S_WAVE}, 7")
    a(f"s_add_u32 s39, s39, {L_SCR+8192}")
    a("v_add_u32 v145, s39, v145")
    a("ds_write_b16 v145, v144")
    a("kvr_nz:")
    a(f"v_mov_b32 v140, {hex(SEL_LO)}")
    a(f"v_mov_b32 v141, {hex(SEL_HI)}")
    for r in range(8): a(f"v_mov_b32 v{128+r}, 0")
    for i in range(16):
        a(f"s_waitcnt vmcnt({15-i})")
        for d in range(4):
            a(f"v_dot2c_f32_bf16 v{128+2*d}, v{64+4*i+d}, v140")
            a(f"v_dot2c_f32_bf16 v{128+2*d+1}, v{64+4*i+d}, v141")
    stamp(a, 13)
    a("s_nop 2")
    for d in range(4): a(f"v_cvt_pk_bf16_f32 v{136+d}, v{128+2*d}, v{128+2*d+1}")
    a(f"s_lshl_b32 s39, s{S_WAVE}, 10")
    a(f"s_add_u32 s39, s39, {L_SCR}")
    a(f"v_add_u32 v142, s39, v{V_L16}")
    a("ds_write_b128 v142, v[136:139]")
    a("s_waitcnt lgkmcnt(0)")
    a("s_barrier")

def m_layer_A2(a):
    stamp(a, 14)
    PT = [164, 180]
    KVF, ZF, NUM, DEN, T = 64, 80, 96, 112, 246
    a(f"s_lshl_b32 s39, s{S_R2}, 12")
    a(f"s_add_u32 s39, s39, {L_SCR}")
    a(f"v_add_u32 v148, s39, v{V_L16}")
    for u in range(4): a(f"ds_read_b128 {v(KVF+4*u,4)}, v148 offset:{u*1024}")
    a(f"v_lshrrev_b32 v149, 5, v{V_LANE}")
    a("v_lshlrev_b32 v149, 4, v149")
    a(f"s_lshl_b32 s39, s{S_R2}, 7")
    a(f"s_add_u32 s39, s39, {L_SCR+8192}")
    a("v_add_u32 v149, s39, v149")
    for u in range(4): a(f"ds_read_b128 {v(ZF+4*u,4)}, v149 offset:{u*32}")
    head_tb(a)
    a("s_lshl_b32 s52, s51, 16")
    a("s_lshl_b32 s53, s50, 11")
    a("s_add_u32 s52, s52, s53")
    a(f"s_add_u32 s52, s52, s{S_OF}")
    a("s_waitcnt lgkmcnt(0)")
    NUMS, DENS = [96, 128], [112, 144]
    for mi in range(2):
        for u in range(4):
            c = "0" if u == 0 else v(DENS[mi],16)
            a(f"{M32} {v(DENS[mi],16)}, {v(ZF+4*u,4)}, {v(PT[mi]+4*u,4)}, {c}")
        for u in range(4):
            c = "0" if u == 0 else v(NUMS[mi],16)
            a(f"{M32} {v(NUMS[mi],16)}, {v(KVF+4*u,4)}, {v(PT[mi]+4*u,4)}, {c}")
    for mi in range(2):
        a("s_nop 7" if mi == 1 else "s_nop 1")
        a(f"v_add_f32 v{T}, {f32(1e-6)}, v{DENS[mi]}")
        a(f"v_rcp_f32 v{T}, v{T}")
        a("s_nop 0")
        for r in range(8): a(f"v_pk_mul_f32 {v(NUMS[mi]+2*r,2)}, {v(NUMS[mi]+2*r,2)}, {v(T,2)} op_sel_hi:[1,0]")
        pack(a, NUMS[mi], 196 + 8*mi)
        a(f"s_add_u32 s53, s52, {mi*65536}")
        a(f"buffer_store_dwordx4 {v(196+8*mi,4)}, v{V_L16}, s[8:11], s53 offen sc1")
        a(f"buffer_store_dwordx4 {v(196+8*mi+4,4)}, v{V_L16}, s[8:11], s53 offen offset:1024 sc1")
    a("s_waitcnt vmcnt(0)")

def m_layer_B(a):
    RQ, PK = 158, 228
    load_stats_T(a, NM, RS)
    load_cs_T(a, 1, CSK)
    load_cs_F(a, CSV)
    load_stats_F(a, 0, FNM, FRS)
    load_cs_T(a, 0, CSQ)
    head_tb(a)
    a("s_lshl_b32 s52, s50, 6")
    a("s_add_u32 s52, s52, s51")
    a("s_lshl_b32 s52, s52, 12")
    a(f"s_add_u32 s52, s52, s{S_KV}")
    a(f"s_lshl_b32 s39, s{S_R2}, 16")
    a(f"s_lshl_b32 s40, s{S_R1}, 13")
    a("s_add_u32 s39, s39, s40")
    a(f"v_add_u32 v149, s39, v{V_L16}")
    a("s_waitcnt lgkmcnt(0)")
    for mi in range(2):
        norm_T(a, acc(1, mi), CSK, NM + 2*mi, RS + 2*mi)
        pk = PK + 8 * mi
        pack(a, acc(1, mi), pk)
        a(f"s_add_u32 s53, s52, {mi*4096}")
        a(f"buffer_store_dwordx4 {v(pk,4)}, v{V_L16}, s[8:11], s53 offen sc1")
        a(f"buffer_store_dwordx4 {v(pk+4,4)}, v{V_L16}, s[8:11], s53 offen offset:1024 sc1")
        a(f"ds_write_b128 v149, {v(pk,4)} offset:{mi*4096}")
        a(f"ds_write_b128 v149, {v(pk+4,4)} offset:{mi*4096+1024}")
    for mi in range(2):
        if mi == 1:
            load_stats_F(a, 1, FNM, FRS)
            a("s_waitcnt lgkmcnt(0)")
        norm_F(a, acc(2, mi), CSV, FNM, FRS)
        pk = PK + 8 * mi
        pack(a, acc(2, mi), pk)
        a(f"s_add_u32 s53, s52, {mi*4096}")
        a(f"buffer_store_dwordx4 {v(pk,4)}, v{V_L16}, s[8:11], s53 offen offset:2048 sc1")
        a(f"buffer_store_dwordx4 {v(pk+4,4)}, v{V_L16}, s[8:11], s53 offen offset:3072 sc1")
        a(f"ds_write_b128 v149, {v(pk,4)} offset:{mi*4096+2048}")
        a(f"ds_write_b128 v149, {v(pk+4,4)} offset:{mi*4096+3072}")
    c = (32 ** -0.5) * LOG2E
    for mi in range(2): a(f"v_mul_f32 v{RQ+2*mi}, {f32(c)}, v{RS+2*mi}")
    a(f"s_lshl_b32 s39, s{S_R1}, 2")
    a(f"s_add_u32 s39, s39, s{S_R2}")
    a("s_lshl_b32 s39, s39, 11")
    a(f"s_add_u32 s39, s39, {L_SCR}")
    a(f"v_add_u32 v148, s39, v{V_L16}")
    for mi in range(2):
        norm_T(a, acc(0, mi), CSQ, NM + 2*mi, RQ + 2*mi)
        pack(a, acc(0, mi), 196 + 8*mi)
        a(f"ds_write_b128 v148, {v(196+8*mi,4)} offset:{mi*4096}")
        a(f"ds_write_b128 v148, {v(196+8*mi+4,4)} offset:{mi*4096+1024}")
    a("s_waitcnt vmcnt(0) lgkmcnt(0)")

CH = 16384
APRIO = int(os.environ.get('APRIO', '0'))
ANOBAR = int(os.environ.get('ANOBAR', '0'))
aQ, aNEGM, aSA, aSB, aP, aO, aL, aSEL, aKVA, aKVB, aVA, aVG, aT0 = 0, 8, 24, 40, 56, 64, 80, 84, 88, 104, 120, 121, 123

def attention(a):
    Q, NEGM, SA, SB, P, O, L, SEL, KVA, KVB, VA, VG, T0 = aQ, aNEGM, aSA, aSB, aP, aO, aL, aSEL, aKVA, aKVB, aVA, aVG, aT0
    a(f"s_and_b32 s50, s{S_WAVE}, 1")
    a(f"s_lshr_b32 s51, s{S_WAVE}, 1")
    a("s_lshl_b32 s52, s50, 16")
    a(f"v_add_u32 v{VA}, s52, v{V_L16}")
    a(f"s_lshl_b32 s53, s{S_J}, 1")
    a("s_add_u32 s53, s53, s50")
    a("s_lshl_b32 s30, s53, 18") if False else None
    a("s_lshl_b32 s54, s53, 18")
    a(f"s_add_u32 s54, s54, s{S_KV}")
    a("s_lshl_b32 s55, s51, 12")
    a("s_add_u32 s57, s54, s55")
    a("s_add_u32 s55, s55, s52")
    a(f"s_add_u32 s58, s{S_MB}, 1")
    def dma(buf):
        a("s_and_b32 s58, s58, 15")
        a("s_lshl_b32 s56, s58, 14")
        a("s_add_u32 s56, s56, s57")
        a(f"s_add_u32 m0, s55, {buf*CH}")
        a("s_add_u32 s58, s58, 1")
        for i in range(4):
            a(f"buffer_load_dwordx4 v{V_L16}, s[8:11], s56 offen offset:{i*1024} sc1 lds")
    def wo_part(k):
        a(f"s_and_b32 s41, s{S_WAVE}, 3")
        a("s_lshl_b32 s41, s41, 2")
        a(f"s_lshr_b32 s42, s{S_WAVE}, 2")
        a("s_lshl_b32 s42, s42, 6")
        a("s_add_u32 s41, s41, s42")
        if k: a(f"s_add_u32 s41, s41, {16*k}")
        wo_dma(a, 41, 4, vd=VG)
    def rd(kv, off):
        for i in range(4): a(f"ds_read_b128 {v(kv+4*i,4)}, v{VA} offset:{off+i*1024}")
    handoff(a, "at_sig", FL_KV, S_J, S_MB, wave=0, do_poll=False)
    wsrd(a, S_AWO, S_BWO, D_ * D_ * 2)
    wo_voff(a, VG, T0, T0 + 1)
    a(f"s_lshl_b32 s39, s{S_WAVE}, 11")
    a(f"s_add_u32 s39, s39, {L_SCR}")
    a(f"v_add_u32 v{T0}, s39, v{V_L16}")
    a(f"ds_read_b128 {v(Q,4)}, v{T0}")
    a(f"ds_read_b128 {v(Q+4,4)}, v{T0} offset:1024")
    a(f"v_and_b32 v{T0}, 3, v{V_LANE}")
    a(f"v_bfe_u32 v{T0+1}, v{V_LANE}, 2, 1")
    a(f"v_bfe_u32 v{T0+2}, v{V_LANE}, 4, 1")
    a(f"v_xor_b32 v{T0+1}, v{T0+1}, v{T0+2}")
    a(f"v_or_b32 v{T0}, v{T0}, v{T0+1}")
    a(f"v_cmp_eq_u32 vcc, 0, v{T0}")
    a(f"v_mov_b32 v{T0+1}, {hex(ONES_BF16)}")
    a(f"v_mov_b32 v{T0+2}, 0")
    a(f"v_cndmask_b32 v{SEL}, v{T0+2}, v{T0+1}, vcc")
    for i in range(1, 4): a(f"v_mov_b32 v{SEL+i}, v{SEL}")
    for i in range(16): a(f"v_mov_b32 v{O+i}, 0")
    for i in range(4): a(f"v_mov_b32 v{L+i}, 0")
    for i in range(8): a(f"v_mov_b32 v{P+i}, 0")
    rd(KVA, 0)
    a("s_waitcnt lgkmcnt(0)")
    a(f"{M32} {v(SA,16)}, {v(KVA,4)}, {v(Q,4)}, 0")
    a(f"{M32} {v(SA,16)}, {v(KVA+4,4)}, {v(Q+4,4)}, {v(SA,16)}")
    rd(KVB, 4096)
    a("s_nop 7")
    a(f"v_max3_f32 v{T0}, v{SA}, v{SA+1}, v{SA+2}")
    for i in range(3, 15, 2): a(f"v_max3_f32 v{T0}, v{T0}, v{SA+i}, v{SA+i+1}")
    a(f"v_max_f32 v{T0}, v{T0}, v{SA+15}")
    a(f"v_mov_b32 v{T0+1}, v{T0}")
    a("s_nop 1")
    a(f"v_permlane32_swap_b32 v{T0}, v{T0+1}")
    a("s_nop 1")
    a(f"v_max_f32 v{T0}, v{T0}, v{T0+1}")
    a(f"v_sub_f32 v{NEGM}, 0, v{T0}")
    for i in range(1, 16): a(f"v_mov_b32 v{NEGM+i}, v{NEGM}")
    for i in range(16): a(f"v_add_f32 v{SA+i}, v{SA+i}, v{NEGM}")
    handoff(a, "at_pol", FL_KV, S_J, S_MB, wave=0, do_signal=False)
    a("s_barrier")
    stamp(a, 5)
    dma(1); dma(2)
    pn = [0]
    if APRIO == 1:
        a(f"s_cmp_ge_u32 s{S_WAVE}, 4")
        a("s_cbranch_scc0 at_np")
        a("s_setprio 1")
        a("at_np:")
    if APRIO == 3:
        a(f"s_cmp_lt_u32 s{S_WAVE}, 4")
        a("s_cbranch_scc0 at_np")
        a("s_setprio 1")
        a("at_np:")
    if APRIO == 2:
        a(f"s_cmp_ge_u32 s{S_WAVE}, 4")
        a("s_cselect_b64 vcc, -1, 0")
    def rounds(last):
        for r in range(16):
            cur, nxt = (SA, SB) if r % 2 == 0 else (SB, SA)
            kvc, kvn = (KVA, KVB) if r % 2 == 0 else (KVB, KVA)
            tK = (r + 2) % 16; tV = (r + 1) % 16
            doK = not (last and r >= 14)
            doQK = not (last and r == 15)
            e = lambda i: a(f"v_exp_f32 v{cur+i}, v{cur+i}")
            c = lambda i: a(f"v_cvt_pk_bf16_f32 v{P+i}, v{cur+2*i}, v{cur+2*i+1}")
            if APRIO == 2:
                a(f"s_setprio {1 if r % 2 == 0 else 0}") if False else None
                a(f"s_cbranch_vccz at_p{pn[0]}a")
                a(f"s_setprio {r % 2}")
                a(f"s_branch at_p{pn[0]}b")
                a(f"at_p{pn[0]}a:")
                a(f"s_setprio {1 - r % 2}")
                a(f"at_p{pn[0]}b:")
                pn[0] += 1
            a("s_waitcnt lgkmcnt(0)")
            if (r + 2) % 4 == 0 and not (last and r == 14):
                b = (r + 2) // 4
                a("s_waitcnt vmcnt(4)")
                if not ANOBAR: a("s_barrier")
                if last and b == 1 and WPF:
                    a(f"s_cmp_eq_u32 s{S_L}, 3")
                    a("s_cbranch_scc1 at_nopf")
                    a(f"s_and_b32 s41, s{S_MB}, 7")
                    a("s_lshl_b32 s41, s41, 7")
                    a(f"s_lshl_b32 s42, s{S_WAVE}, 4")
                    a("s_add_u32 s41, s41, s42")
                    w_prefetch(a, 41, 16, 128, 152)
                    a("at_nopf:")
                if not (last and b >= 2): dma((b + 2) % 4)
                if last and b == 2: wo_part(0)
                if last and b == 3: wo_part(1)
            if doQK: a(f"{M32} {v(nxt,16)}, {v(kvn,4)}, {v(Q,4)}, {v(NEGM,16)}")
            for i in range(0, 4): e(i)
            if doK:
                a(f"ds_read_b128 {v(kvc,4)}, v{VA} offset:{tK*4096}")
                a(f"ds_read_b128 {v(kvc+4,4)}, v{VA} offset:{tK*4096+1024}")
            if doQK: a(f"{M32} {v(nxt,16)}, {v(kvn+4,4)}, {v(Q+4,4)}, {v(nxt,16)}")
            for i in range(4, 8): e(i)
            a(f"{M32} {v(O,16)}, {v(kvn+12,4)}, {v(P+4,4)}, {v(O,16)}")
            for i in range(0, 4): c(i)
            e(8); e(9)
            if doQK:
                a(f"ds_read_b128 {v(kvn+8,4)}, v{VA} offset:{tV*4096+2048}")
                a(f"ds_read_b128 {v(kvn+12,4)}, v{VA} offset:{tV*4096+3072}")
            a(f"{M16} {v(L,4)}, {v(SEL,4)}, {v(P+4,4)}, {v(L,4)}")
            e(10); e(11)
            a(f"{M32} {v(O,16)}, {v(kvc+8,4)}, {v(P,4)}, {v(O,16)}")
            for i in range(12, 16): e(i)
            a(f"{M16} {v(L,4)}, {v(SEL,4)}, {v(P,4)}, {v(L,4)}")
            for i in range(4, 8): c(i)
    a("s_mov_b32 s40, 3")
    a("at_loop:")
    rounds(False)
    a("s_sub_u32 s40, s40, 1")
    a("s_cmp_lg_u32 s40, 0")
    a("s_cbranch_scc1 at_loop")
    rounds(True)
    a("s_nop 1")
    a(f"{M32} {v(O,16)}, {v(KVB+12,4)}, {v(P+4,4)}, {v(O,16)}")
    a(f"{M16} {v(L,4)}, {v(SEL,4)}, {v(P+4,4)}, {v(L,4)}")
    if APRIO: a("s_setprio 0")
    stamp(a, 6)
    a("s_nop 15")
    a(f"v_mov_b32 v{T0}, 0")
    for i in range(16): a(f"v_fma_f32 v{T0}, v{O+i}, 0, v{T0}")
    a(f"v_cmp_eq_f32 vcc, 0, v{T0}")
    a(f"v_mov_b32 v{T0+1}, {f32(2.0**100)}")
    a(f"v_cmp_lt_f32 s[42:43], v{L}, v{T0+1}")
    a("s_nop 1")
    a("s_and_b64 vcc, vcc, s[42:43]")
    a("s_cmp_eq_u64 vcc, exec")
    a("s_cbranch_scc1 at_fin")
    for i in range(16): a(f"v_mov_b32 v{O+i}, 0")
    for i in range(4): a(f"v_mov_b32 v{L+i}, 0")
    MV = T0 + 2
    a(f"v_mov_b32 v{MV}, {f32(-3.0e38)}")
    a("s_mov_b32 s41, s54")
    a("s_mov_b32 s40, 64")
    a("at_fb:")
    for i in range(4):
        a(f"buffer_load_dwordx4 {v(KVA+4*i,4)}, v{V_L16}, s[8:11], s41 offen offset:{i*1024} sc1")
    a("s_waitcnt vmcnt(0)")
    a(f"{M32} {v(SA,16)}, {v(KVA,4)}, {v(Q,4)}, 0")
    a(f"{M32} {v(SA,16)}, {v(KVA+4,4)}, {v(Q+4,4)}, {v(SA,16)}")
    a("s_nop 15")
    a(f"v_max3_f32 v{T0}, v{SA}, v{SA+1}, v{SA+2}")
    for i in range(3, 15, 2): a(f"v_max3_f32 v{T0}, v{T0}, v{SA+i}, v{SA+i+1}")
    a(f"v_max_f32 v{T0}, v{T0}, v{SA+15}")
    a(f"v_mov_b32 v{T0+1}, v{T0}")
    a("s_nop 1")
    a(f"v_permlane32_swap_b32 v{T0}, v{T0+1}")
    a("s_nop 1")
    a(f"v_max3_f32 v{T0}, v{T0}, v{T0+1}, v{MV}")
    a(f"v_sub_f32 v{T0+1}, v{MV}, v{T0}")
    a(f"v_exp_f32 v{T0+1}, v{T0+1}")
    a(f"v_mov_b32 v{MV}, v{T0}")
    for i in range(16): a(f"v_sub_f32 v{SA+i}, v{SA+i}, v{T0}")
    for i in range(16): a(f"v_exp_f32 v{SA+i}, v{SA+i}")
    for i in range(16): a(f"v_mul_f32 v{O+i}, v{O+i}, v{T0+1}")
    for i in range(4): a(f"v_mul_f32 v{L+i}, v{L+i}, v{T0+1}")
    for i in range(8): a(f"v_cvt_pk_bf16_f32 v{P+i}, v{SA+2*i}, v{SA+2*i+1}")
    a("s_nop 1")
    a(f"{M32} {v(O,16)}, {v(KVA+8,4)}, {v(P,4)}, {v(O,16)}")
    a(f"{M16} {v(L,4)}, {v(SEL,4)}, {v(P,4)}, {v(L,4)}")
    a(f"{M32} {v(O,16)}, {v(KVA+12,4)}, {v(P+4,4)}, {v(O,16)}")
    a(f"{M16} {v(L,4)}, {v(SEL,4)}, {v(P+4,4)}, {v(L,4)}")
    a("s_nop 15")
    a("s_add_u32 s41, s41, 4096")
    a("s_sub_u32 s40, s40, 1")
    a("s_cmp_lg_u32 s40, 0")
    a("s_cbranch_scc1 at_fb")
    a("at_fin:")
    a(f"v_rcp_f32 v{T0}, v{L}")
    a("s_nop 0")
    for i in range(16): a(f"v_mul_f32 v{O+i}, v{O+i}, v{T0}")
    for i in range(8): a(f"v_cvt_pk_bf16_f32 v{P+i}, v{O+2*i}, v{O+2*i+1}")
    a(f"s_lshl_b32 s39, s{S_MB}, 2")
    a("s_add_u32 s39, s39, s51")
    a("s_lshl_b32 s39, s39, 16")
    a("s_lshl_b32 s40, s53, 11")
    a("s_add_u32 s39, s39, s40")
    a(f"s_add_u32 s39, s39, s{S_OF}")
    a(f"buffer_store_dwordx4 {v(P,4)}, v{V_L16}, s[8:11], s39 offen sc1")
    a(f"buffer_store_dwordx4 {v(P+4,4)}, v{V_L16}, s[8:11], s39 offen offset:1024 sc1")
    a("s_waitcnt vmcnt(0)")

def m_setup(a):
    layer_setup(a)
    a(f"s_lshl_b32 s39, s{S_R1}, 13")
    a(f"v_add_u32 v{VX0}, s39, v{V_L16}")
    L_ = V_LANE
    a(f"v_lshrrev_b32 v5, 5, v{L_}")
    a(f"v_bfe_u32 v6, v{L_}, 2, 2")
    a("v_lshl_add_u32 v5, v5, 2, v6")
    a("v_lshlrev_b32 v5, 7, v5")
    a(f"v_bfe_u32 v6, v{L_}, 4, 1")
    a(f"v_bfe_u32 v7, v{L_}, 1, 1")
    a("v_lshl_add_u32 v6, v6, 1, v7")
    a(f"s_lshl_b32 s39, s{S_R2}, 2")
    a("v_add_u32 v6, s39, v6")
    a(f"v_bfe_u32 v7, v{L_}, 3, 1")
    a("v_lshlrev_b32 v7, 2, v7")
    a("v_xor_b32 v6, v6, v7")
    a("v_lshl_add_u32 v5, v6, 4, v5")
    a(f"v_and_b32 v6, 1, v{L_}")
    a(f"v_lshl_add_u32 v{VW0}, v6, 3, v5")
    a(f"v_mov_b32 v{VX}, v{VX0}")
    a(f"v_mov_b32 v{VW}, v{VW0}")
    if PFD:
        wsrd(a, S_AWQKV, S_BWQKV, D_ * 3 * D_ * 2)
        a(f"v_lshrrev_b32 v220, 3, v{V_LANE}")
        a("v_mul_u32_u24 v220, 6144, v220")
        a(f"v_and_b32 v221, 7, v{V_LANE}")
        a("v_lshl_add_u32 v220, v221, 4, v220")
        a(f"s_mul_i32 s45, s{S_WAVE}, {16*6144}")
        a(f"s_lshl_b32 s39, s{S_J}, 7")
        a("s_add_u32 s45, s45, s39")
        a(f"s_and_b32 s42, s{S_MB}, 7")
        a(f"s_mov_b32 s41, {PFD}")
    for i in range(96): a(f"v_mov_b32 v{ACC+i}, 0")
    a("s_mov_b32 s40, 0")
    a("s_mov_b32 s49, 16")

def emit_xstore(a, PK, ONE, S1, VA, sx, sst):
    for i in range(4):
        a(f"buffer_store_dwordx4 {v(PK+4*i,4)}, v{V_L16}, s[8:11], s{sx} offen offset:{i*1024} sc1")
    S2, S3, S4 = S1 + 1, S1 + 2, S1 + 3
    a(f"v_mov_b32 v{S1}, 0")
    a(f"v_mov_b32 v{S2}, 0")
    for r in range(16):
        a(f"v_dot2c_f32_bf16 v{S1}, v{PK+r}, v{ONE}")
        a(f"v_dot2c_f32_bf16 v{S2}, v{PK+r}, v{PK+r}")
    a("s_nop 2")
    a(f"v_mov_b32 v{S3}, v{S1}")
    a(f"v_mov_b32 v{S4}, v{S2}")
    a("s_nop 1")
    a(f"v_permlane32_swap_b32 v{S1}, v{S3}")
    a(f"v_permlane32_swap_b32 v{S2}, v{S4}")
    a("s_nop 1")
    a(f"v_add_f32 v{S1}, v{S1}, v{S3}")
    a(f"v_add_f32 v{S2}, v{S2}, v{S4}")
    a(f"v_and_b32 v{VA}, 31, v{V_LANE}")
    a(f"v_lshlrev_b32 v{VA}, 3, v{VA}")
    a("s_mov_b64 exec, 0xffffffff")
    a(f"buffer_store_dwordx2 {v(S1,2)}, v{VA}, s[8:11], s{sst} offen sc1")
    a("s_mov_b64 exec, -1")

def m_p3(a):
    a("m_f1:")
    a("s_barrier")
    handoff(a, "m_ho_s", FL_O, S_MB, S_J, wave=0, do_poll=False)
    ACC3, AR, WF, RES = 0, 32, [96, 104], 112
    VWA = [128, 129, 130, 131]
    L_ = V_LANE
    a(f"s_lshl_b32 s50, s{S_MB}, 2")
    a(f"s_add_u32 s50, s50, s{S_WAVE}")
    a("s_lshl_b32 s51, s50, 16")
    a(f"s_lshl_b32 s39, s{S_J}, 12")
    a("s_add_u32 s52, s51, s39")
    a(f"s_add_u32 s53, s52, s{S_XF}")
    for i in range(4):
        a(f"buffer_load_dwordx4 {v(RES+4*i,4)}, v{V_L16}, s[8:11], s53 offen offset:{i*1024} sc1")
    a(f"s_add_u32 s54, s51, s{S_OF}")
    seq = list(range(0, 16)) + list(range(32, 48)) + list(range(16, 32)) + list(range(48, 64))
    def aload(idx):
        ks = seq[idx]; slot = idx % 16
        if ks % 4 == 0: a(f"s_add_u32 s55, s54, {(ks//4)*4096}")
        a(f"buffer_load_dwordx4 {v(AR+4*slot,4)}, v{V_L16}, s[8:11], s55 offen offset:{(ks%4)*1024} sc1 {os.environ.get('ANT','')}")
    a(f"v_lshrrev_b32 v132, 5, v{L_}")
    a(f"v_bfe_u32 v133, v{L_}, 2, 2")
    a("v_lshl_add_u32 v132, v132, 2, v133")
    a("v_lshlrev_b32 v132, 7, v132")
    a(f"v_bfe_u32 v133, v{L_}, 4, 1")
    a(f"v_bfe_u32 v134, v{L_}, 1, 1")
    a("v_lshl_add_u32 v133, v133, 1, v134")
    a(f"v_bfe_u32 v134, v{L_}, 3, 1")
    a("v_lshlrev_b32 v134, 2, v134")
    a("v_xor_b32 v133, v133, v134")
    a("v_lshl_add_u32 v132, v133, 4, v132")
    a(f"v_and_b32 v133, 1, v{L_}")
    a(f"v_lshl_add_u32 v{VWA[0]}, v133, 3, v132")
    a(f"v_xor_b32 v{VWA[1]}, 64, v{VWA[0]}")
    a(f"v_add_u32 v{VWA[2]}, 0x10000, v{VWA[0]}")
    a(f"v_add_u32 v{VWA[3]}, 0x10000, v{VWA[1]}")
    for i in range(32): a(f"v_mov_b32 v{ACC3+i}, 0")
    def wreads(idx, cb):
        fs = WF[idx % 2]; ks = seq[idx]
        half, kk = ks // 32, ks % 32
        for t in range(2):
            a(f"ds_read_b64_tr_b16 {v(fs+4*cb+2*t,2)}, v{VWA[half*2+cb]} offset:{kk*2048+t*1024}")
    handoff(a, "m_ho_p", FL_O, S_MB, S_J, wave=0, do_signal=False)
    a("s_barrier")
    stamp(a, 8)
    for idx in range(16): aload(idx)
    wreads(0, 0); wreads(0, 1)
    stamp(a, 9)
    for ks in range(64):
        fs = WF[ks % 2]; A = AR + 4 * (ks % 16)
        vm = min(15, 63 - ks)
        a(f"s_waitcnt vmcnt({vm}) lgkmcnt(2)")
        a(f"{M32} {v(ACC3,16)}, {v(fs,4)}, {v(A,4)}, {v(ACC3,16)}")
        if ks == 31: a("s_barrier")
        if ks < 63:
            wreads(ks + 1, 0)
            a("s_waitcnt lgkmcnt(2)")
        else:
            a("s_waitcnt lgkmcnt(0)")
        a(f"{M32} {v(ACC3+16,16)}, {v(fs+4,4)}, {v(A,4)}, {v(ACC3+16,16)}")
        if ks < 63: wreads(ks + 1, 1)
        if ks + 16 < 64: aload(ks + 16)
    stamp(a, 10)
    T = 136
    a(f"v_mov_b32 v{T}, {hex(SEL_LO)}")
    a(f"v_mov_b32 v{T+1}, {hex(SEL_HI)}")
    a(f"v_mov_b32 v{T+2}, {hex(ONES_BF16)}")
    a("s_nop 7")
    for cb in range(2):
        for r in range(8):
            a(f"v_dot2c_f32_bf16 v{ACC3+16*cb+2*r}, v{RES+8*cb+r}, v{T}")
            a(f"v_dot2c_f32_bf16 v{ACC3+16*cb+2*r+1}, v{RES+8*cb+r}, v{T+1}")
    a("s_nop 2")
    PK = RES
    for cb in range(2):
        for r in range(8):
            a(f"v_cvt_pk_bf16_f32 v{PK+8*cb+r}, v{ACC3+16*cb+2*r}, v{ACC3+16*cb+2*r+1}")
    a(f"s_cmp_eq_u32 s{S_L}, 3")
    a("s_cbranch_scc1 p3_final")
    a(f"s_add_u32 s53, s52, s{S_XFN}")
    a(f"s_lshl_b32 s39, s{S_J}, 14")
    a("s_lshl_b32 s40, s50, 8")
    a("s_add_u32 s39, s39, s40")
    a(f"s_add_u32 s54, s39, s{S_STN}")
    emit_xstore(a, PK, T + 2, 140, 144, 53, 54)
    a(f"s_add_u32 s{S_L}, s{S_L}, 1")
    m_setup(a)
    a("s_waitcnt vmcnt(0)")
    a("s_barrier")
    if STAMP: a(f"s_sub_u32 s{S_L}, s{S_L}, 1")
    stamp(a, 11)
    if STAMP: a(f"s_add_u32 s{S_L}, s{S_L}, 1")
    handoff(a, "m_hx", FL_X, S_MB, S_J, layer_delta=-1, wave=0)
    a("s_barrier")
    a("s_branch m_layer")
    a("p3_final:")
    for i in range(4):
        a(f"v_permlane32_swap_b32 v{PK+4*i}, v{PK+4*i+2}")
        a(f"v_permlane32_swap_b32 v{PK+4*i+1}, v{PK+4*i+3}")
    a(f"v_and_b32 v144, 31, v{L_}")
    a("v_lshlrev_b32 v144, 11, v144")
    a(f"v_lshrrev_b32 v145, 5, v{L_}")
    a("v_lshl_add_u32 v144, v145, 4, v144")
    a(f"s_lshl_b32 s39, s{S_J}, 7")
    a("s_add_u32 s39, s39, s51")
    srd(a, 16, S_OUT, S_ * D_ * 2)
    for i in range(4):
        a(f"buffer_store_dwordx4 {v(PK+4*i,4)}, v144, s[16:19], s39 offen offset:{i*32}")
    a("s_waitcnt vmcnt(0)")
    stamp(a, 11)
    a("s_endpgm")

def gen_mega(name="mega_kernel"):
    a = Asm()
    kstart(a, name, 256)
    a(f"s_load_dwordx2 s[4:5], s[0:1], {KA_WS}")
    a(f"s_load_dwordx2 s[{S_AWQKV}:{S_AWQKV+1}], s[0:1], {KA_AWQKV}")
    a(f"s_load_dwordx2 s[{S_BWQKV}:{S_BWQKV+1}], s[0:1], {KA_BWQKV}")
    a(f"s_load_dwordx2 s[{S_AWO}:{S_AWO+1}], s[0:1], {KA_AWO}")
    a(f"s_load_dwordx2 s[{S_BWO}:{S_BWO+1}], s[0:1], {KA_BWO}")
    a(f"s_load_dwordx2 s[{S_AWPHI}:{S_AWPHI+1}], s[0:1], {KA_AWPHI}")
    a(f"s_load_dwordx2 s[{S_OUT}:{S_OUT+1}], s[0:1], {KA_OUT}")
    a("v_lshrrev_b32 v1, 6, v0")
    a(f"v_and_b32 v{V_LANE}, 63, v0")
    a(f"v_lshlrev_b32 v{V_L16}, 4, v{V_LANE}")
    a("s_and_b32 s38, s2, 7")
    a("s_lshr_b32 s39, s2, 3")
    a(f"v_readfirstlane_b32 s{S_WAVE}, v1")
    a(f"s_and_b32 s{S_MB}, s38, 1")
    a(f"s_lshl_b32 s{S_MB}, s{S_MB}, 3")
    a("s_and_b32 s40, s39, 7")
    a(f"s_add_u32 s{S_MB}, s{S_MB}, s40")
    a(f"s_lshr_b32 s{S_J}, s38, 1")
    a(f"s_lshl_b32 s{S_J}, s{S_J}, 2")
    a("s_lshr_b32 s40, s39, 3")
    a(f"s_add_u32 s{S_J}, s{S_J}, s40")
    a(f"s_mov_b32 s{S_L}, 0")
    a(f"s_mov_b32 s{S_L2E}, {f32(LOG2E)}")
    a(f"s_load_dwordx2 s[74:75], s[0:1], {KA_AX}")
    if STAMP:
        a("s_lshl_b32 s90, s2, 6")
        a(f"s_lshl_b32 s91, s{S_WAVE}, 2")
        a("s_add_u32 s90, s90, s91")
        a(f"s_add_u32 s90, s90, {hex(WS_STAMP)}")
    a("s_waitcnt lgkmcnt(0)")
    srd(a, 8, 4, WS_SIZE)
    stamp(a, 0)
    a("v_mov_b32 v217, 0")
    a(f"s_mov_b32 s39, {hex(WS_FLAGS + 4*0x1800 + FL_O)}")
    a("buffer_load_dword v218, v217, s[8:11], s39 offen sc1")
    a(f"s_cmp_lt_u32 s{S_WAVE}, 4")
    a("s_cbranch_scc1 m_entry")
    a(f"s_sub_u32 s{S_R1}, s{S_WAVE}, 4")
    a("l_layer:")
    layer_setup(a)
    wsrd(a, S_AWQKV, S_BWQKV, D_ * 3 * D_ * 2)
    a(f"v_mov_b32 v2, v{V_L16}")
    a(f"v_lshrrev_b32 v5, 3, v{V_LANE}")
    a("v_mul_u32_u24 v3, 6144, v5")
    a(f"v_and_b32 v6, 7, v{V_LANE}")
    a(f"v_bfe_u32 v7, v{V_LANE}, 4, 1")
    a("v_lshlrev_b32 v7, 2, v7")
    a("v_xor_b32 v6, v6, v7")
    a("v_lshl_add_u32 v3, v6, 4, v3")
    a(f"s_mul_i32 s59, s{S_R1}, {16*6144}")
    a(f"s_lshl_b32 s39, s{S_J}, 7")
    a("s_add_u32 s59, s59, s39")
    if ROT == "mb":
        a(f"s_mov_b32 s56, s{S_MB}")
    elif ROT == "mb2":
        a(f"s_lshl_b32 s56, s{S_MB}, 1")
        a("s_and_b32 s56, s56, 15")
    elif ROT == "mbj":
        a(f"s_add_u32 s56, s{S_MB}, s{S_J}")
        a("s_and_b32 s56, s56, 15")
    else:
        a("s_mov_b32 s56, 0")
    a("s_mov_b32 s57, s56")
    a(f"s_lshl_b32 s47, s{S_R1}, 12")
    a(f"s_lshl_b32 s48, s{S_R1}, 11")
    a("s_add_u32 s48, s48, 16384")
    a("s_mov_b32 s45, 0")
    a("s_mov_b32 s46, 0")
    a(f"s_lshl_b32 s58, s{S_MB}, 2")
    a(f"s_add_u32 s58, s58, s{S_R1}")
    a("s_lshl_b32 s58, s58, 16")
    a(f"s_cmp_eq_u32 s{S_L}, 0")
    a("s_cbranch_scc1 l_xrow")
    a(f"s_add_u32 s58, s58, s{S_XF}")
    srd(a, 84, 4, WS_SIZE)
    a("s_mov_b32 s81, 1024")
    a("s_mov_b32 s82, 4096")
    a(f"v_mov_b32 v4, v{V_L16}")
    a("s_branch l_xdone")
    a("l_xrow:")
    srd(a, 84, 74, S_ * D_ * 2)
    a("s_mov_b32 s81, 16384")
    a("s_mov_b32 s82, 128")
    a(f"v_lshrrev_b32 v5, 3, v{V_LANE}")
    a("v_lshlrev_b32 v5, 11, v5")
    a(f"v_and_b32 v6, 7, v{V_LANE}")
    a(f"v_lshrrev_b32 v7, 4, v{V_LANE}")
    a("v_xor_b32 v6, v6, v7")
    a("v_lshl_add_u32 v2, v6, 4, v5")
    a("v_xor_b32 v4, 64, v2")
    a("l_xdone:")
    def share_dma():
        if os.environ.get("NOSHDMA"): return
        a(f"s_cmp_lt_u32 s{S_L}, 2")
        n = _poll_n[0]; _poll_n[0] += 1
        a(f"s_cbranch_scc0 l_nosh{n}")
        a(f"s_mul_i32 s42, s{S_MB}, {64*6144}")
        a("s_add_u32 s42, s42, s59")
        a(f"s_lshl_b32 s44, s{S_R1}, 11")
        for p in range(3):
            for q in range(2):
                a(f"s_add_u32 m0, s44, {L_SH[p] + q*1024}")
                a(f"s_add_u32 s43, s42, {p*2048 + q*8*6144}")
                a("buffer_load_dwordx4 v3, s[12:15], s43 offen lds")
        a(f"l_nosh{n}:")
    def wphi_dma():
        srd(a, 16, S_AWPHI, 32*32*32*2)
        a(f"s_lshl_b32 s49, s{S_J}, 12")
        a(f"s_lshl_b32 s39, s{S_R1}, 10")
        a("s_add_u32 s49, s49, s39")
        a(f"s_add_u32 m0, s39, {L_WPHI}")
        a("s_nop 0")
        a(f"buffer_load_dwordx4 v{V_L16}, s[16:19], s49 offen lds")
    a(f"s_cmp_eq_u32 s{S_L}, 0")
    a("s_cbranch_scc0 l_w1")
    share_dma()
    for st in range(3): issue_w(a)
    issue_x(a); wphi_dma(); issue_x(a); issue_x(a)
    a("s_waitcnt vmcnt(31)")
    a("s_barrier")
    a("s_branch l_w2")
    a("l_w1:")
    share_dma()
    a("s_barrier")
    for st in range(3): issue_w(a)
    a("s_waitcnt vmcnt(18)")
    a("s_barrier")
    stamp(a, 1)
    issue_x(a); wphi_dma(); issue_x(a); issue_x(a)
    a("l_w2:")
    a("s_waitcnt vmcnt(9)")
    a(f"v_readfirstlane_b32 s80, v218")
    a("s_barrier")
    a(f"s_add_u32 s{S_N}, s80, 1")
    a("s_waitcnt vmcnt(4)")
    a("s_barrier")
    issue_stage(a, False)
    a(f"s_cmp_lt_u32 s{S_L}, 2")
    a("s_cbranch_scc0 l_nopub")
    a(f"s_cmp_eq_u32 s{S_R1}, 3")
    a("s_cbranch_scc0 l_nopub")
    a(f"v_lshlrev_b32 v5, 3, v{V_LANE}")
    a(f"v_add_u32 v6, {L_SH[0]}, v5")
    for w in range(4):
        a(f"ds_read_b64 {v(16+4*w,2)}, v6 offset:{w*2048}")
        a(f"ds_read_b64 {v(18+4*w,2)}, v6 offset:{w*2048+512}")
    a(f"s_and_b32 s39, s{S_L}, 1")
    a(f"s_mul_i32 s39, s39, {16*3072*4}")
    a(f"s_mul_i32 s43, s{S_MB}, {3072*4}")
    a("s_add_u32 s43, s43, s39")
    a(f"s_lshl_b32 s44, s{S_J}, 8")
    a("s_add_u32 s43, s43, s44")
    a(f"s_add_u32 s43, s43, {hex(WS_CSP)}")
    a(f"v_lshrrev_b32 v8, 5, v{V_LANE}")
    a(f"v_and_b32 v9, 31, v{V_LANE}")
    a("v_lshlrev_b32 v9, 3, v9")
    a("v_lshl_add_u32 v8, v8, 12, v9")
    a("v_add_u32 v9, 8192, v9")
    a("s_waitcnt lgkmcnt(0)")
    for w in range(1, 4):
        for k in range(4): a(f"v_add_f32 v{16+k}, v{16+k}, v{16+4*w+k}")
    a("buffer_store_dwordx2 v[16:17], v8, s[8:11], s43 offen sc1")
    a("s_mov_b64 exec, 0xffffffff")
    a("buffer_store_dwordx2 v[18:19], v9, s[8:11], s43 offen sc1")
    a("s_mov_b64 exec, -1")
    a("l_nopub:")
    a("s_mov_b32 s49, 12")
    a("l_loop:")
    a("s_waitcnt vmcnt(10)")
    a("s_barrier")
    a("s_cmp_eq_u32 s49, 11")
    a("s_cbranch_scc0 l_nosig")
    a(f"s_cmp_lt_u32 s{S_L}, 2")
    a("s_cbranch_scc0 l_nosig")
    a(f"s_cmp_eq_u32 s{S_R1}, 3")
    a("s_cbranch_scc0 l_nosig")
    csflag(a)
    signal(a, 38, S_MB)
    a("l_nosig:")
    issue_stage(a, False)
    a("s_sub_u32 s49, s49, 1")
    a("s_cmp_lg_u32 s49, 0")
    a("s_cbranch_scc1 l_loop")
    a(f"s_cmp_ge_u32 s{S_R1}, 2")
    a("s_cbranch_scc1 l_colf")
    a(f"s_lshl_b32 s38, s{S_MB}, 7")
    a(f"s_add_u32 s38, s38, s{S_FL}")
    a(f"s_sub_u32 s38, s38, {0x1800 - FL_X}")
    a("s_branch l_stf")
    a("l_colf:")
    csflag(a)
    a("l_stf:")
    a(f"v_and_b32 v250, 15, v{V_LANE}")
    a("v_lshlrev_b32 v250, 3, v250")
    a("buffer_load_dwordx2 v[248:249], v250, s[8:11], s38 offen sc1")
    a("s_waitcnt vmcnt(11)")
    a("s_barrier")
    a("s_waitcnt vmcnt(0)")
    a(f"s_not_b32 s71, s{S_N}")
    a(f"v_cmp_eq_u32 vcc, s{S_N}, v248")
    a("v_cmp_eq_u32 s[72:73], s71, v249")
    a("s_nop 0")
    a("s_and_b64 vcc, vcc, s[72:73]")
    a("s_cmp_eq_u64 vcc, exec")
    a("s_cbranch_scc1 l_colok")
    if not os.environ.get("NOCS"): poll(a, 38)
    a("l_colok:")
    a(f"s_cmp_ge_u32 s{S_R1}, 2")
    a("s_cbranch_scc1 l_cola")
    a(f"s_lshl_b32 s49, s{S_MB}, 7")
    a(f"s_lshl_b32 s39, s{S_R1}, 6")
    a("s_add_u32 s49, s49, s39")
    a("s_lshl_b32 s49, s49, 3")
    a(f"s_add_u32 s49, s49, s{S_ST}")
    a("s_mov_b32 s50, 16384")
    a(f"v_lshlrev_b32 v5, 3, v{V_LANE}")
    a("s_branch l_stl")
    a("l_cola:")
    a(f"s_sub_u32 s49, s{S_R1}, 2")
    a("s_lshl_b32 s49, s49, 1")
    a(f"v_lshrrev_b32 v5, 5, v{V_LANE}")
    a("v_add_u32 v5, s49, v5")
    a("v_min_u32 v5, 2, v5")
    a(f"v_and_b32 v6, 31, v{V_LANE}")
    a("v_lshlrev_b32 v6, 3, v6")
    a("v_lshl_add_u32 v7, v5, 8, v6")
    a("v_lshl_add_u32 v5, v5, 12, v6")
    a(f"s_and_b32 s39, s{S_L}, 1")
    a(f"s_mul_i32 s39, s39, {16*3072*4}")
    a(f"s_lshl_b32 s49, s{S_J}, 8")
    a("s_add_u32 s49, s49, s39")
    a(f"s_add_u32 s49, s49, {hex(WS_CSP)}")
    a(f"s_mov_b32 s50, {3072*4}")
    a("l_stl:")
    for i in range(16):
        a(f"buffer_load_dwordx2 {v(16+2*i,2)}, v5, s[8:11], s49 offen sc1")
        if i < 15: a("s_add_u32 s49, s49, s50")
    a("s_barrier")
    a("s_waitcnt vmcnt(0)")
    for i in range(1, 16):
        a(f"v_add_f32 v16, v16, v{16+2*i}")
        a(f"v_add_f32 v17, v17, v{17+2*i}")
    a(f"s_cmp_ge_u32 s{S_R1}, 2")
    a("s_cbranch_scc1 l_colw")
    a(f"v_mul_f32 v16, {f32(1.0/1024)}, v16")
    a(f"v_mul_f32 v17, {f32(1.0/1024)}, v17")
    a("v_fma_f32 v17, -v16, v16, v17")
    a("v_max_f32 v17, 0, v17")
    a(f"v_add_f32 v17, {f32(1e-5)}, v17")
    a("v_rsq_f32 v17, v17")
    a("v_sub_f32 v16, 0, v16")
    a(f"s_lshl_b32 s39, s{S_R1}, 8")
    a(f"v_lshlrev_b32 v5, 2, v{V_LANE}")
    a("v_add_u32 v5, s39, v5")
    a(f"v_add_u32 v5, {L_NM}, v5")
    a("ds_write_b32 v5, v16")
    a("ds_write_b32 v5, v17 offset:512")
    a("s_branch l_stw")
    a("l_colw:")
    a(f"v_add_u32 v7, s{S_CS}, v7")
    a("ds_write_b64 v7, v[16:17]")
    a("l_stw:")
    a("s_waitcnt lgkmcnt(0)")
    a("l_cole:")
    a("s_barrier")
    a(f"s_bitcmp1_b32 s{S_L}, 0")
    a("s_cbranch_scc1 l_B")
    wsrd(a, S_AWO, S_BWO, D_ * D_ * 2)
    a(f"s_lshl_b32 s41, s{S_R1}, 5")
    wo_voff(a)
    wo_dma(a, 41, 32)
    if True:
        a(f"s_cmp_eq_u32 s{S_L}, 0")
        a("s_cbranch_scc0 l_nowpf")
        a(f"s_and_b32 s41, s{S_MB}, 7")
        a("s_lshl_b32 s41, s41, 7")
        a(f"s_lshl_b32 s42, s{S_R1}, 5")
        a("s_add_u32 s41, s41, s42")
        w_prefetch(a, 41, 32, 16, 8)
        a("l_nowpf:")
    a("s_barrier")
    a("s_barrier")
    handoff(a, "l_hkv", FL_KV, S_J, S_MB)
    a("s_barrier")
    a("s_branch kv_reduce")
    a("l_B:")
    a("s_barrier")
    a("s_branch attention")
    a("m_entry:")
    a(f"s_lshr_b32 s{S_R1}, s{S_WAVE}, 1")
    a(f"s_and_b32 s{S_R2}, s{S_WAVE}, 1")
    srd(a, 16, 74, S_ * D_ * 2)
    a(f"s_lshl_b32 s50, s{S_MB}, 2")
    a(f"s_add_u32 s50, s50, s{S_WAVE}")
    a("s_lshl_b32 s51, s50, 16")
    a(f"s_lshl_b32 s39, s{S_J}, 7")
    a("s_add_u32 s53, s51, s39")
    a(f"v_and_b32 v156, 31, v{V_LANE}")
    a("v_lshlrev_b32 v156, 11, v156")
    a(f"v_lshrrev_b32 v157, 5, v{V_LANE}")
    a("v_lshl_add_u32 v156, v157, 4, v156")
    for i in range(4):
        a(f"buffer_load_dwordx4 {v(112+4*i,4)}, v156, s[16:19], s53 offen offset:{i*32}")
    m_setup(a)
    a(f"s_lshl_b32 s39, s{S_J}, 12")
    a("s_add_u32 s77, s51, s39")
    a(f"s_add_u32 s77, s77, s{S_XF}")
    a(f"s_lshl_b32 s39, s{S_J}, 14")
    a("s_lshl_b32 s78, s50, 8")
    a("s_add_u32 s78, s78, s39")
    a(f"s_add_u32 s78, s78, s{S_ST}")
    a("s_barrier")
    a("m_layer:")
    if not os.environ.get("NOCS"):
        a(f"s_cmp_lt_u32 s{S_L}, 2")
        a("s_cbranch_scc0 m_nocs")
        L_ = V_LANE
        a(f"v_lshrrev_b32 v140, 5, v{L_}")
        a(f"v_bfe_u32 v141, v{L_}, 2, 2")
        a("v_lshl_add_u32 v140, v140, 2, v141")
        a("v_lshlrev_b32 v140, 7, v140")
        a(f"v_bfe_u32 v141, v{L_}, 4, 1")
        a(f"v_bfe_u32 v142, v{L_}, 1, 1")
        a("v_lshl_add_u32 v141, v141, 1, v142")
        a(f"v_bfe_u32 v142, v{L_}, 3, 1")
        a("v_lshlrev_b32 v142, 2, v142")
        a("v_xor_b32 v141, v141, v142")
        a("v_lshl_add_u32 v140, v141, 4, v140")
        a(f"v_and_b32 v141, 1, v{L_}")
        a("v_lshl_add_u32 v140, v141, 3, v140")
        a(f"s_lshl_b32 s39, s{S_WAVE}, 11")
        a("v_add_u32 v140, s39, v140")
        a("v_xor_b32 v141, 64, v140")
        for p in range(3):
            for hd in range(2):
                a(f"v_add_u32 v142, {L_SH[p]}, v{140+hd}")
                for t in range(2):
                    a(f"ds_read_b64_tr_b16 {v(160+(p*2+hd)*4+2*t,2)}, v142 offset:{t*1024}")
        a(f"v_mov_b32 v143, {hex(ONES_BF16)}")
        for f in range(6): a(f"v_mov_b32 v{150+f}, 0")
        a("s_waitcnt lgkmcnt(0)")
        for q in range(4):
            for f in range(6): a(f"v_dot2c_f32_bf16 v{150+f}, v{160+f*4+q}, v143")
        a("s_nop 2")
        for f in range(6): a(f"v_mov_b32 v{184+f}, v{150+f}")
        a("s_nop 1")
        for f in range(6): a(f"v_permlane32_swap_b32 v{150+f}, v{184+f}")
        a("s_nop 1")
        for f in range(6): a(f"v_add_f32 v{150+f}, v{150+f}, v{184+f}")
        a(f"v_and_b32 v142, 31, v{L_}")
        a("v_lshlrev_b32 v142, 2, v142")
        a(f"s_lshl_b32 s39, s{S_WAVE}, 11")
        a(f"s_add_u32 s39, s39, {L_SH[0]}")
        a("v_add_u32 v142, s39, v142")
        for p in range(3):
            for hd in range(2): a(f"ds_write_b32 v142, v{150+p*2+hd} offset:{p*256+hd*128}")
        a("s_waitcnt lgkmcnt(0)")
        a("m_nocs:")
    def m_main(nat):
        t = "n" if nat else ""
        a("s_barrier")
        stamp(a, 2)
        p1_reads(a, FA, 0, range(8), nat)
        if nat:
            p1_sub(a, FA, FB, 1, nat=nat)
            p1_sub(a, FB, FA, 2, nat=nat)
            p1_sub(a, FA, FB, 3, nat=nat)
            a("s_waitcnt vmcnt(0)")
            p1_sub(a, FB, FA, 0, barrier=True, nat=nat)
            handoff(a, "m_sx0", FL_X, S_MB, S_J, layer_delta=-1, wave=0, do_poll=False)
            a("s_sub_u32 s49, s49, 1")
            if PFD: a("s_add_u32 s41, s41, 1")
        if PFD:
            a("s_cmp_ge_u32 s42, 3")
            a(f"s_cbranch_scc0 m_pf0{t}")
            a(f"s_cmp_lt_u32 s42, {PFD + (1 if nat else 0)}")
            a(f"s_cbranch_scc0 m_pf0{t}")
            m_w_prefetch(a, 42, "x")
            a(f"m_pf0{t}:")
        a(f"m_loop{t}:")
        if PFD:
            a("s_and_b32 s39, s41, 7")
            a("s_cmp_eq_u32 s39, s42")
            a(f"s_cbranch_scc0 m_pf1{t}")
            a("s_cmp_lt_u32 s41, 16")
            a(f"s_cbranch_scc0 m_pf1{t}")
            m_w_prefetch(a, 41, "y")
            a(f"m_pf1{t}:")
            a("s_add_u32 s41, s41, 1")
        p1_sub(a, FA, FB, 1, nat=nat)
        p1_sub(a, FB, FA, 2, nat=nat)
        p1_sub(a, FA, FB, 3, nat=nat)
        p1_sub(a, FB, FA, 0, barrier=True, nat=nat)
        a("s_sub_u32 s49, s49, 1")
        a("s_cmp_lg_u32 s49, 0")
        a(f"s_cbranch_scc1 m_loop{t}")
    a(f"s_cmp_eq_u32 s{S_L}, 0")
    a("s_cbranch_scc0 m_std")
    L_ = V_LANE
    a(f"v_and_b32 v5, 31, v{L_}")
    a("v_lshlrev_b32 v6, 7, v5")
    a(f"s_lshl_b32 s39, s{S_R1}, 13")
    a("v_add_u32 v6, s39, v6")
    a("v_bfe_u32 v5, v5, 1, 3")
    a(f"v_lshrrev_b32 v7, 5, v{L_}")
    for k in range(4):
        a(f"v_add_u32 v8, {2*k}, v7")
        a("v_xor_b32 v8, v8, v5")
        a(f"v_lshl_add_u32 v{VXN0+k}, v8, 4, v6")
        a(f"v_mov_b32 v{VXN+k}, v{VXN0+k}")
    a(f"v_lshrrev_b32 v5, 5, v{L_}")
    a("v_lshlrev_b32 v5, 9, v5")
    a(f"v_add_u32 v{VW0}, v{VW0}, v5")
    a(f"v_mov_b32 v{VW}, v{VW0}")
    for r in (5, 6, 7, 8): a(f"v_mov_b32 v{r}, 0")
    a(f"v_mov_b32 v150, {hex(ONES_BF16)}")
    a("s_waitcnt vmcnt(0)")
    a(f"v_readfirstlane_b32 s{S_N}, v218")
    for i in range(4):
        a(f"v_permlane32_swap_b32 v{112+4*i}, v{112+4*i+2}")
        a(f"v_permlane32_swap_b32 v{112+4*i+1}, v{112+4*i+3}")
    a(f"s_add_u32 s{S_N}, s{S_N}, 1")
    emit_xstore(a, 112, 150, 152, 156, 77, 78)
    m_main(True)
    a("s_branch m_done")
    a("m_std:")
    m_main(False)
    a("m_done:")
    a("s_waitcnt vmcnt(0) lgkmcnt(0)")
    stamp(a, 3)
    a(f"s_bitcmp1_b32 s{S_L}, 0")
    a("s_cbranch_scc1 m_B")
    m_layer_A(a)
    a("kv_reduce:")
    kv_reduce(a)
    a(f"s_cmp_lt_u32 s{S_WAVE}, 4")
    a("s_cbranch_scc0 l_A2")
    m_layer_A2(a)
    stamp(a, 7)
    a("s_branch m_f1")
    a("l_A2:")
    a("s_barrier")
    a("s_waitcnt vmcnt(0)")
    a("s_barrier")
    a("s_branch l_p3")
    a("m_B:")
    m_layer_B(a)
    stamp(a, 4)
    a("s_barrier")
    a("attention:")
    attention(a)
    stamp(a, 7)
    a(f"s_cmp_lt_u32 s{S_WAVE}, 4")
    a("s_cbranch_scc1 m_f1")
    a("s_barrier")
    a(f"s_sub_u32 s41, s{S_WAVE}, 4")
    a("s_lshl_b32 s41, s41, 3")
    a("s_add_u32 s41, s41, 32")
    wo_dma(a, 41, 8, vd=aVG)
    a("s_add_u32 s41, s41, 64")
    wo_dma(a, 41, 8, vd=aVG)
    a("s_barrier")
    a("l_p3:")
    a("s_waitcnt vmcnt(0)")
    a("s_barrier")
    a(f"s_add_u32 s{S_L}, s{S_L}, 1")
    a(f"s_cmp_lt_u32 s{S_L}, 4")
    a("s_cbranch_scc1 l_layer")
    a("s_endpgm")
    m_p3(a)
    kend(a, name)
    return a.text(), kernel_descriptor(name, 256), dict(name=name, grid=256, block=512, lds=MEGA_LDS)
```

```python
from asmlib import *
import os, struct

KA_AX, KA_AWQKV, KA_AWPHI, KA_AWO, KA_BX, KA_BWQKV, KA_BWO, KA_OUT, KA_DBG, KA_WS = 0, 8, 16, 24, 32, 40, 48, 56, 64, 72
S_, D_, H_ = 2048, 1024, 32

INPLACE = os.environ.get("INPLACE", "0") == "1"
if INPLACE:
    WS_XF, WS_OF, WS_KVF, WS_KVP = 0x0000000, 0x0400000, 0x0800000, 0x1000000
    WS_ZP, WS_STATS, WS_CSP, WS_FLAGS = 0x1200000, 0x1220000, 0x1260000, 0x12C0000
else:
    WS_XF    = 0x0000000
    WS_OF    = 0x1000000
    WS_KVF   = 0x2000000
    WS_KVP   = 0x3000000
    WS_ZP    = 0x3400000
    WS_STATS = 0x3500000
    WS_CSP   = 0x3600000
    WS_FLAGS = 0x3700000
WS_STAMP = 0x4000000
WS_SIZE  = 0x10000000
FL_KV, FL_O, FL_X = 0, 2048, 4096

def f32(x): return hex(struct.unpack("<I", struct.pack("<f", x))[0])
LOG2E = 1.4426950408889634
M32 = "v_mfma_f32_32x32x16_bf16"
M16 = "v_mfma_f32_16x16x32_bf16"
ONES_BF16 = 0x3F803F80
SEL_LO = 0x00003F80
SEL_HI = 0x3F800000

def srd(a, dst, base, nbytes):
    a(f"s_mov_b32 s{dst}, s{base}")
    a(f"s_and_b32 s{dst+1}, s{base+1}, 0xffff")
    a(f"s_mov_b32 s{dst+2}, {hex(nbytes)}")
    a(f"s_mov_b32 s{dst+3}, 0x20000")

STAMP = os.environ.get("STAMP", "0") == "1"

def kstart(a, name, nwg):
    a(f".globl {name}")
    a(".p2align 8")
    a(f".type {name},@function")
    a(f"{name}:")
    a(f"s_cmp_ge_u32 s2, {nwg}")
    a(f"s_cbranch_scc1 {name}_exit")

def kend(a, name):
    a(f"{name}_exit:")
    a("s_endpgm")
```

```python
from common import *

S_MB, S_J, S_WAVE, S_R1, S_R2, S_L = 20, 21, 22, 23, 24, 25
S_AWQKV, S_BWQKV, S_AWO, S_BWO, S_AWPHI, S_OUT = 26, 28, 30, 32, 34, 36
S_XF, S_XFN, S_OF, S_KV, S_ST, S_STN, S_FL, S_ZP = 60, 61, 62, 63, 64, 65, 66, 67
S_L2E = 68
S_N, S_CS = 69, 70
V_LANE, V_L16 = 255, 254
STAGE = 40960
NST = 3
L_SCR0 = 131072
L_NM = L_SCR0
L_RS = L_NM + 512
L_CS = L_NM + 1024
L_WPHI = L_SCR0 + 3072
L_SCR = L_WPHI + 4096
L_SH = [L_SCR, L_SCR + 8192, L_SCR + 16384 + 1024]
MEGA_LDS = 163840
assert L_SH[2] + 8192 <= MEGA_LDS
SPIN = 1 << 16

class Ctx:
    pass

DBGST = os.environ.get("DBGST")
_dbg_n = [0]
def stamp(a, k):
    if DBGST:
        m = {2: 0, 3: 1, 7: 2, 11: 3}
        if k not in m and k != 0: return
        n = _dbg_n[0]; _dbg_n[0] += 1
        a("s_memrealtime s[96:97]")
        a("s_waitcnt lgkmcnt(0)")
        if k == 0:
            a("s_mov_b32 s95, s96")
            return
        a("s_cmp_eq_u32 s2, 0")
        a(f"s_cbranch_scc0 dbg{n}")
        a(f"s_cmp_eq_u32 s{S_WAVE}, 0")
        a(f"s_cbranch_scc0 dbg{n}")
        a("s_sub_u32 s96, s96, s95")
        a(f"s_lshl_b32 s97, s{S_L}, 4")
        a(f"s_add_u32 s97, s97, {m[k]*4}")
        a("s_and_b32 s97, s97, 63")
        a("s_mov_b64 s[98:99], exec")
        a("s_mov_b64 exec, 1")
        a("v_mov_b32 v253, s96")
        a("v_mov_b32 v252, s97")
        a("buffer_store_dword v253, v252, s[100:103]".replace("s[100:103]", "s[92:95]").replace("s[92:95]", "s[88:91]") + ", 0 offen")
        a("s_mov_b64 exec, s[98:99]")
        a(f"dbg{n}:")
        return
    if not STAMP: return
    a("s_memrealtime s[96:97]")
    a(f"s_lshl_b32 s91, s{S_L}, 4")
    a(f"s_add_u32 s91, s91, {k}")
    a("s_lshl_b32 s91, s91, 14")
    a("s_add_u32 s91, s91, s90")
    a("s_waitcnt lgkmcnt(0)")
    a("s_mov_b64 s[98:99], exec")
    a("s_mov_b64 exec, 1")
    a("v_mov_b32 v253, s96")
    a("v_mov_b32 v252, 0")
    a("buffer_store_dword v253, v252, s[8:11], s91 offen")
    a("s_mov_b64 exec, s[98:99]")

def layer_setup(a):
    if INPLACE:
        a(f"s_mov_b32 s{S_XF}, {hex(WS_XF)}")
        a(f"s_mov_b32 s{S_XFN}, {hex(WS_XF)}")
        a(f"s_mov_b32 s{S_OF}, {hex(WS_OF)}")
        a(f"s_mov_b32 s{S_ST}, {hex(WS_STATS)}")
        a(f"s_mov_b32 s{S_STN}, {hex(WS_STATS)}")
        a(f"s_mov_b32 s{S_ZP}, {hex(WS_ZP)}")
        a(f"s_bitcmp1_b32 s{S_L}, 0")
        a(f"s_cselect_b32 s{S_KV}, {hex(WS_KVF)}, {hex(WS_KVP)}".replace(f"{hex(WS_KVF)}, {hex(WS_KVP)}", "s38, s39")) if False else None
        a(f"s_mov_b32 s38, {hex(WS_KVF)}")
        a(f"s_mov_b32 s39, {hex(WS_KVP)}")
        a(f"s_bitcmp1_b32 s{S_L}, 0")
        a(f"s_cselect_b32 s{S_KV}, s38, s39")
    else:
        a(f"s_lshl_b32 s38, s{S_L}, 22")
        a(f"s_add_u32 s{S_XF}, s38, {hex(WS_XF)}" if WS_XF else f"s_mov_b32 s{S_XF}, s38")
        a(f"s_add_u32 s{S_XFN}, s{S_XF}, 0x400000")
        a(f"s_add_u32 s{S_OF}, s38, {hex(WS_OF)}")
        a(f"s_lshl_b32 s38, s{S_L}, 18")
        a(f"s_add_u32 s{S_ST}, s38, {hex(WS_STATS)}")
        a(f"s_add_u32 s{S_STN}, s{S_ST}, 0x40000")
        a(f"s_lshr_b32 s39, s{S_L}, 1")
        a(f"s_lshl_b32 s38, s39, 17")
        a(f"s_add_u32 s{S_ZP}, s38, {hex(WS_ZP)}")
        a(f"s_lshl_b32 s38, s39, 21")
        a(f"s_add_u32 s38, s38, {hex(WS_KVP)}")
        a(f"s_lshl_b32 s39, s39, 23")
        a(f"s_add_u32 s39, s39, {hex(WS_KVF)}")
        a(f"s_bitcmp1_b32 s{S_L}, 0")
        a(f"s_cselect_b32 s{S_KV}, s39, s38")
    a(f"s_mul_i32 s38, s{S_L}, 0x1800")
    a(f"s_add_u32 s{S_FL}, s38, {hex(WS_FLAGS + 0x1800)}")
    a(f"s_and_b32 s38, s{S_L}, 1")
    a("s_mul_i32 s38, s38, 768")
    a(f"s_add_u32 s{S_CS}, s38, {L_CS}")

def wsrd(a, pa, pb, nbytes):
    a(f"s_bitcmp1_b32 s{S_L}, 0")
    a(f"s_cselect_b32 s12, s{pb}, s{pa}")
    a(f"s_cselect_b32 s13, s{pb+1}, s{pa+1}")
    a("s_and_b32 s13, s13, 0xffff")
    a(f"s_mov_b32 s14, {hex(nbytes)}")
    a("s_mov_b32 s15, 0x20000")

def signal(a, sflag, sidx):
    a(f"s_lshl_b32 s39, s{sidx}, 3")
    a("v_mov_b32 v250, s39")
    a(f"v_mov_b32 v248, s{S_N}")
    a(f"v_not_b32 v249, v248")
    a("s_mov_b64 exec, 1")
    a(f"buffer_store_dwordx2 v[248:249], v250, s[8:11], s{sflag} offen sc1")
    a("s_mov_b64 exec, -1")

_poll_n = [0]
NPOLL = int(os.environ.get('NPOLL', '3'))
def poll(a, sflag):
    n = _poll_n[0]; _poll_n[0] += 1
    a(f"v_and_b32 v250, 15, v{V_LANE}")
    a("v_lshlrev_b32 v250, 3, v250")
    a(f"s_mov_b32 s39, {SPIN}")
    a(f"s_not_b32 s37x, s{S_N}".replace("s37x", "s71"))
    regs = [248, 246, 244][:NPOLL]
    for i, r in enumerate(regs):
        a(f"buffer_load_dwordx2 {v(r,2)}, v250, s[8:11], s{sflag} offen sc1")
        if i < NPOLL - 1: a("s_sleep 3")
    a(f"poll{n}:")
    for r in regs:
        a(f"s_waitcnt vmcnt({NPOLL-1})")
        a(f"v_cmp_eq_u32 vcc, s{S_N}, v{r}")
        a(f"v_cmp_eq_u32 s[72:73], s71, v{r+1}")
        a("s_nop 0")
        a("s_and_b64 vcc, vcc, s[72:73]")
        a("s_cmp_eq_u64 vcc, exec")
        a(f"s_cbranch_scc1 poll{n}_done")
        a(f"buffer_load_dwordx2 {v(r,2)}, v250, s[8:11], s{sflag} offen sc1")
    a("s_sub_u32 s39, s39, 1")
    a("s_cmp_lg_u32 s39, 0")
    a(f"s_cbranch_scc1 poll{n}")
    a(f"poll{n}_done:")

def handoff(a, lbl, ftype, sgroup, sidx, layer_delta=0, wave=4, do_signal=True, do_poll=True):
    a(f"s_cmp_eq_u32 s{S_WAVE}, {wave}")
    a(f"s_cbranch_scc0 {lbl}")
    a(f"s_lshl_b32 s38, s{sgroup}, 7")
    a(f"s_add_u32 s38, s38, s{S_FL}")
    off = ftype + layer_delta * 0x1800
    if off > 0: a(f"s_add_u32 s38, s38, {off}")
    if off < 0: a(f"s_sub_u32 s38, s38, {-off}")
    if do_signal: signal(a, 38, sidx)
    if do_poll: poll(a, 38)
    a(f"{lbl}:")

ACC = 0
FA, FB = 96, 116
VX, VW, VX0, VW0 = 136, 137, 138, 139
def acc(p, mi): return ACC + (p * 2 + mi) * 16

VXN, VXN0 = 140, 144
def p1_reads(a, fs, ks, which, nat=False):
    def rd(n):
        if nat:
            if n == 0: return f"ds_read_b128 {v(fs,4)}, v{VXN+ks}"
            if n == 3: return f"ds_read_b128 {v(fs+4,4)}, v{VXN+ks} offset:4096"
        if n == 0: return f"ds_read_b128 {v(fs,4)}, v{VX} offset:{ks*1024}"
        if n == 3: return f"ds_read_b128 {v(fs+4,4)}, v{VX} offset:{4096+ks*1024}"
        p, t = {1:(0,0),2:(0,1),4:(1,0),5:(1,1),6:(2,0),7:(2,1)}[n]
        return f"ds_read_b64_tr_b16 {v(fs+8+4*p+2*t,2)}, v{VW} offset:{16384+p*8192+ks*2048+t*(512 if nat else 1024)}"
    for n in which: a(rd(n))

def p1_sub(a, cur, nxt, nks, barrier=False, nat=False):
    x0, x1, wq, wk, wv = cur, cur+4, cur+8, cur+12, cur+16
    def mf(d, A, B):
        if os.environ.get("M16EXP"):
            a(f"{M16} {v(d,4)}, {v(A,4)}, {v(B,4)}, {v(d,4)}")
            a(f"{M16} {v(d+8,4)}, {v(A,4)}, {v(B,4)}, {v(d+8,4)}")
        else:
            a(f"{M32} {v(d,16)}, {v(A,4)}, {v(B,4)}, {v(d,16)}")
    if barrier:
        a("s_waitcnt lgkmcnt(0)")
        a("s_barrier")
        a(f"s_add_u32 s40, s40, {STAGE}")
        a(f"s_cmp_eq_u32 s40, {NST*STAGE}")
        a("s_cselect_b32 s40, 0, s40")
        if nat:
            for k in range(4): a(f"v_add_u32 v{VXN+k}, s40, v{VXN0+k}")
        else:
            a(f"v_add_u32 v{VX}, s40, v{VX0}")
        a(f"v_add_u32 v{VW}, s40, v{VW0}")
    else:
        a("s_waitcnt lgkmcnt(5)")
    mf(acc(0,0), wq, x0)
    p1_reads(a, nxt, nks, [0, 1], nat)
    if not barrier: a("s_waitcnt lgkmcnt(6)")
    mf(acc(0,1), wq, x1)
    p1_reads(a, nxt, nks, [2, 3], nat)
    if not barrier: a("s_waitcnt lgkmcnt(6)")
    mf(acc(1,0), wk, x0)
    p1_reads(a, nxt, nks, [4, 5], nat)
    mf(acc(1,1), wk, x1)
    p1_reads(a, nxt, nks, [6, 7], nat)
    if not barrier: a("s_waitcnt lgkmcnt(8)")
    mf(acc(2,0), x0, wv)
    mf(acc(2,1), x1, wv)

ROT = os.environ.get("ROT", "none")
def issue_x(a, fill=None):
    a("s_mul_i32 s41, s56, s82")
    a("s_add_u32 s41, s41, s58")
    a("s_add_u32 s43, s45, s47")
    a("s_add_u32 s56, s56, 1")
    a("s_and_b32 s56, s56, 15")
    for q in range(4):
        a(f"s_add_u32 m0, s43, {q*1024}")
        if q: a("s_add_u32 s41, s41, s81")
        else: a("s_nop 0")
        a(f"buffer_load_dwordx4 v{2 if q % 2 == 0 else 4}, s[84:87], s41 offen sc1 lds")
        if fill: fill()
    a(f"s_add_u32 s45, s45, {STAGE}")
    a(f"s_cmp_eq_u32 s45, {NST*STAGE}")
    a("s_cselect_b32 s45, 0, s45")

def issue_w(a, fill=None):
    a(f"s_mul_i32 s42, s57, {64*6144}")
    a("s_add_u32 s42, s42, s59")
    a("s_add_u32 s57, s57, 1")
    a("s_and_b32 s57, s57, 15")
    a("s_add_u32 s44, s46, s48")
    for p in range(3):
        for q in range(2):
            a(f"s_add_u32 m0, s44, {p*8192+q*1024}")
            a(f"s_add_u32 s43, s42, {p*2048+q*8*6144}")
            a("buffer_load_dwordx4 v3, s[12:15], s43 offen lds")
            if fill: fill()
    a(f"s_add_u32 s46, s46, {STAGE}")
    a(f"s_cmp_eq_u32 s46, {NST*STAGE}")
    a("s_cselect_b32 s46, 0, s46")

WPF = int(os.environ.get("WPF", "0"))
PFD = int(os.environ.get("PFD", "6"))
def m_w_prefetch(a, sstage, lbl):
    a(f"s_mul_i32 s43, s{sstage}, {64*6144}")
    a("s_add_u32 s43, s43, s45")
    n = 0
    for q in range(2):
        for p in range(3):
            a(f"s_add_u32 s44, s43, {q*8*6144 + p*2048}")
            a(f"buffer_load_dwordx4 {v(196+4*n,4)}, v220, s[12:15], s44 offen")
            n += 1
PFMOD = os.environ.get("PFMOD", "")
def w_prefetch(a, srow0, nrows, vdst, vtmp):
    a(f"s_bitcmp1_b32 s{S_L}, 0")
    a(f"s_cselect_b32 s16, s{S_AWQKV}, s{S_BWQKV}")
    a(f"s_cselect_b32 s17, s{S_AWQKV+1}, s{S_BWQKV+1}")
    a("s_and_b32 s17, s17, 0xffff")
    a(f"s_mov_b32 s18, {hex(D_*3*D_*2)}")
    a("s_mov_b32 s19, 0x20000")
    a(f"v_lshrrev_b32 v{vtmp}, 3, v{V_LANE}")
    a(f"v_mul_u32_u24 v{vtmp}, 6144, v{vtmp}")
    a(f"v_and_b32 v{vtmp+1}, 7, v{V_LANE}")
    a(f"v_lshl_add_u32 v{vtmp}, v{vtmp+1}, 4, v{vtmp}")
    a(f"s_mul_i32 s43, s{srow0}, 6144")
    a(f"s_lshl_b32 s44, s{S_J}, 7")
    a("s_add_u32 s43, s43, s44")
    n = 0
    for g in range(nrows // 8):
        for p in range(3):
            a(f"s_add_u32 s44, s43, {g*8*6144 + p*2048}")
            a(f"buffer_load_dwordx4 {v(vdst+4*n,4)}, v{vtmp}, s[16:19], s44 offen {PFMOD}")
            n += 1

def wo_voff(a, vd=5, t0=6, t1=7):
    a(f"v_lshrrev_b32 v{vd}, 3, v{V_LANE}")
    a(f"v_lshlrev_b32 v{t0}, 11, v{vd}")
    a(f"v_and_b32 v{vd}, 7, v{V_LANE}")
    a(f"v_bfe_u32 v{t1}, v{V_LANE}, 4, 1")
    a(f"v_lshlrev_b32 v{t1}, 2, v{t1}")
    a(f"v_xor_b32 v{vd}, v{vd}, v{t1}")
    a(f"v_lshl_add_u32 v{vd}, v{vd}, 4, v{t0}")

def wo_dma(a, first_piece_sgpr, n, vd=5):
    a(f"s_lshl_b32 s43, s{first_piece_sgpr}, 14")
    a(f"s_lshl_b32 s44, s{S_J}, 7")
    a("s_add_u32 s43, s43, s44")
    a(f"s_lshl_b32 s44, s{first_piece_sgpr}, 10")
    for i in range(n):
        a("s_mov_b32 m0, s44")
        a("s_add_u32 s44, s44, 1024")
        a(f"buffer_load_dwordx4 v{vd}, s[12:15], s43 offen lds")
        if i < n - 1: a("s_add_u32 s43, s43, 16384")

CSACC, CSF, CSV0, CSONE = 48, 56, 8, 10
def csflag(a):
    a(f"s_and_b32 s38, s{S_L}, 1")
    a(f"s_mul_i32 s38, s38, {FL_O - FL_KV}")
    a(f"s_lshl_b32 s39, s{S_J}, 7")
    a("s_add_u32 s38, s38, s39")
    a(f"s_add_u32 s38, s38, {hex(WS_FLAGS + FL_KV)}")

def colsum_setup(a):
    L_ = V_LANE
    a(f"v_lshrrev_b32 v11, 5, v{L_}")
    a(f"v_bfe_u32 v12, v{L_}, 2, 2")
    a("v_lshl_add_u32 v11, v11, 2, v12")
    a("v_lshlrev_b32 v11, 7, v11")
    a(f"v_bfe_u32 v12, v{L_}, 4, 1")
    a(f"v_bfe_u32 v13, v{L_}, 1, 1")
    a("v_lshl_add_u32 v12, v12, 1, v13")
    a(f"v_bfe_u32 v13, v{L_}, 3, 1")
    a("v_lshlrev_b32 v13, 2, v13")
    a("v_xor_b32 v12, v12, v13")
    a("v_lshl_add_u32 v11, v12, 4, v11")
    a(f"v_and_b32 v12, 1, v{L_}")
    a("v_lshl_add_u32 v11, v12, 3, v11")
    a(f"s_lshl_b32 s39, s{S_R1}, 11")
    a("s_add_u32 s39, s39, 16384")
    a(f"v_add_u32 v{CSV0}, s39, v11")
    a(f"v_xor_b32 v{CSV0+1}, 64, v{CSV0}")
    a(f"v_mov_b32 v{CSONE}, {hex(ONES_BF16)}")
    for i in range(6): a(f"v_mov_b32 v{CSACC+i}, 0")
    a("s_mov_b32 s51, 0")

def colsum_stage(a, lbl):
    a(f"s_cmp_lt_u32 s{S_L}, 2")
    a(f"s_cbranch_scc0 {lbl}")
    a(f"v_add_u32 v12, s51, v{CSV0}")
    a(f"v_add_u32 v13, s51, v{CSV0+1}")
    for p in range(3):
        for hd in range(2):
            for t in range(2):
                a(f"ds_read_b64_tr_b16 {v(CSF+(p*2+hd)*4+2*t,2)}, v{12+hd} offset:{p*8192+t*1024}")
    a(f"s_add_u32 s51, s51, {STAGE}")
    a(f"s_cmp_eq_u32 s51, {NST*STAGE}")
    a("s_cselect_b32 s51, 0, s51")
    a("s_waitcnt lgkmcnt(0)")
    for q in range(4):
        for f in range(6):
            a(f"v_dot2c_f32_bf16 v{CSACC+f}, v{CSF+f*4+q}, v{CSONE}")
    a(f"{lbl}:")

def colsum_reads(a):
    a(f"v_add_u32 v12, s51, v{CSV0}")
    a(f"v_add_u32 v13, s51, v{CSV0+1}")
    for p in range(3):
        for hd in range(2):
            for t in range(2):
                a(f"ds_read_b64_tr_b16 {v(CSF+(p*2+hd)*4+2*t,2)}, v{12+hd} offset:{p*8192+t*1024}")
    a(f"s_add_u32 s51, s51, {STAGE}")
    a(f"s_cmp_eq_u32 s51, {NST*STAGE}")
    a("s_cselect_b32 s51, 0, s51")

def colsum_filler(a):
    st = {"n": 0, "k": 0}
    ops = [(f, q) for q in range(4) for f in range(6)]
    def fill():
        st["n"] += 1
        if st["n"] < 3: return
        if st["n"] == 3: a("s_waitcnt lgkmcnt(0)")
        for _ in range(3):
            if st["k"] < 24:
                f, q = ops[st["k"]]; st["k"] += 1
                a(f"v_dot2c_f32_bf16 v{CSACC+f}, v{CSF+f*4+q}, v{CSONE}")
    return fill

def issue_stage(a, cs):
    if cs:
        colsum_reads(a)
        f = colsum_filler(a)
        issue_x(a, f); issue_w(a, f)
    else:
        issue_x(a); issue_w(a)

def colsum_finish(a, lbl):
    a(f"s_cmp_lt_u32 s{S_L}, 2")
    a(f"s_cbranch_scc0 {lbl}")
    a("s_nop 2")
    for f in range(6): a(f"v_mov_b32 v{56+f}, v{CSACC+f}")
    a("s_nop 1")
    for f in range(6): a(f"v_permlane32_swap_b32 v{CSACC+f}, v{56+f}")
    a("s_nop 1")
    for f in range(6): a(f"v_add_f32 v{CSACC+f}, v{CSACC+f}, v{56+f}")
    a(f"v_and_b32 v12, 31, v{V_LANE}")
    a("v_lshlrev_b32 v12, 2, v12")
    a(f"v_add_u32 v12, s{S_CS}, v12")
    a("s_mov_b64 exec, 0xffffffff")
    for p in range(3):
        for hd in range(2):
            a(f"ds_add_f32 v12, v{CSACC+p*2+hd} offset:{p*256+hd*128}")
    a("s_mov_b64 exec, -1")
    a("s_waitcnt lgkmcnt(0)")
    a(f"{lbl}:")

T1 = 158
def load_stats_T(a, dst_nm, dst_rs, t=148):
    a(f"v_and_b32 v{t}, 31, v{V_LANE}")
    a(f"s_lshl_b32 s39, s{S_R1}, 8")
    a(f"v_lshlrev_b32 v{t}, 2, v{t}")
    a(f"v_add_u32 v{t}, s39, v{t}")
    a(f"v_add_u32 v{t}, {L_NM}, v{t}")
    for mi in range(2):
        a(f"ds_read_b32 v{dst_nm+2*mi}, v{t} offset:{mi*128}")
        a(f"ds_read_b32 v{dst_rs+2*mi}, v{t} offset:{512+mi*128}")

def load_cs_T(a, p, dst, t=149):
    a(f"v_lshrrev_b32 v{t}, 5, v{V_LANE}")
    a(f"v_lshlrev_b32 v{t}, 4, v{t}")
    a(f"s_lshl_b32 s39, s{S_R2}, 7")
    a(f"s_add_u32 s39, s39, s{S_CS}")
    a(f"v_add_u32 v{t}, s39, v{t}")
    for g in range(4):
        a(f"ds_read_b128 {v(dst+4*g,4)}, v{t} offset:{p*256+g*32}")

def norm_T(a, ac, cs, nm, rs):
    for r in range(8):
        a(f"v_pk_fma_f32 {v(ac+2*r,2)}, {v(cs+2*r,2)}, {v(nm,2)}, {v(ac+2*r,2)} op_sel_hi:[1,0,1]")
    for r in range(8):
        a(f"v_pk_mul_f32 {v(ac+2*r,2)}, {v(ac+2*r,2)}, {v(rs,2)} op_sel_hi:[1,0]")

def pack(a, ac, dst):
    for r in range(8):
        a(f"v_cvt_pk_bf16_f32 v{dst+r}, v{ac+2*r}, v{ac+2*r+1}")

def load_stats_F(a, mi, dst_nm, dst_rs, t=144):
    a(f"v_lshrrev_b32 v{t}, 5, v{V_LANE}")
    a(f"v_lshlrev_b32 v{t}, 4, v{t}")
    a(f"s_lshl_b32 s39, s{S_R1}, 8")
    a(f"v_add_u32 v{t}, s39, v{t}")
    a(f"v_add_u32 v{t}, {L_NM}, v{t}")
    for g in range(4):
        a(f"ds_read_b128 {v(dst_nm+4*g,4)}, v{t} offset:{mi*128+g*32}")
        a(f"ds_read_b128 {v(dst_rs+4*g,4)}, v{t} offset:{512+mi*128+g*32}")

def load_cs_F(a, dst, t=145):
    a(f"v_and_b32 v{t}, 31, v{V_LANE}")
    a(f"v_lshlrev_b32 v{t}, 2, v{t}")
    a(f"s_lshl_b32 s39, s{S_R2}, 7")
    a(f"s_add_u32 s39, s39, s{S_CS}")
    a(f"v_add_u32 v{t}, s39, v{t}")
    a(f"ds_read_b32 v{dst}, v{t} offset:512")

def norm_F(a, ac, cs, nm, rs):
    for r in range(8):
        a(f"v_pk_fma_f32 {v(ac+2*r,2)}, {v(nm+2*r,2)}, {v(cs,2)}, {v(ac+2*r,2)} op_sel_hi:[1,0,1]")
    for r in range(8):
        a(f"v_pk_mul_f32 {v(ac+2*r,2)}, {v(ac+2*r,2)}, {v(rs+2*r,2)}")

def wphi_load(a, dst, t0, t1):
    a(f"v_lshrrev_b32 v{t0}, 5, v{V_LANE}")
    a(f"v_bfe_u32 v{t1}, v{V_LANE}, 2, 2")
    a(f"v_lshl_add_u32 v{t0}, v{t0}, 2, v{t1}")
    a(f"v_lshlrev_b32 v{t0}, 6, v{t0}")
    a(f"v_bfe_u32 v{t1}, v{V_LANE}, 4, 1")
    a(f"v_lshl_add_u32 v{t0}, v{t1}, 5, v{t0}")
    a(f"v_and_b32 v{t1}, 3, v{V_LANE}")
    a(f"v_lshl_add_u32 v{t1}, v{t1}, 3, v{t0}")
    a(f"s_lshl_b32 s39, s{S_R2}, 11")
    a(f"s_add_u32 s39, s39, {L_WPHI}")
    a(f"v_add_u32 v{t1}, s39, v{t1}")
    for t in range(2):
        for tp in range(2):
            a(f"ds_read_b64_tr_b16 {v(dst+4*t+2*tp,2)}, v{t1} offset:{(16*t+8*tp)*64}")

def softmax_pm(a, PD, EN, PT, T):
    sL = S_L2E
    mx, mn, t1, t2, sp, sn = T, T+1, T+2, T+3, T+4, T+6
    a(f"v_max3_f32 v{mx}, v{PD}, v{PD+1}, v{PD+2}")
    a(f"v_min3_f32 v{mn}, v{PD}, v{PD+1}, v{PD+2}")
    for i in range(3, 15, 2):
        a(f"v_max3_f32 v{mx}, v{mx}, v{PD+i}, v{PD+i+1}")
        a(f"v_min3_f32 v{mn}, v{mn}, v{PD+i}, v{PD+i+1}")
    a(f"v_max_f32 v{mx}, v{mx}, v{PD+15}")
    a(f"v_min_f32 v{mn}, v{mn}, v{PD+15}")
    a(f"v_mov_b32 v{t1}, v{mx}")
    a(f"v_mov_b32 v{t2}, v{mn}")
    a("s_nop 1")
    a(f"v_permlane32_swap_b32 v{mx}, v{t1}")
    a(f"v_permlane32_swap_b32 v{mn}, v{t2}")
    a("s_nop 1")
    a(f"v_max_f32 v{mx}, v{mx}, v{t1}")
    a(f"v_min_f32 v{mn}, v{mn}, v{t2}")
    a(f"v_mul_f32 v{mx}, s{sL}, v{mx}")
    a(f"v_mul_f32 v{mn}, s{sL}, v{mn}")
    for r in range(16): a(f"v_fma_f32 v{EN+r}, -v{PD+r}, s{sL}, v{mn}")
    for r in range(16): a(f"v_fma_f32 v{PD+r}, v{PD+r}, s{sL}, -v{mx}")
    for r in range(16): a(f"v_exp_f32 v{EN+r}, v{EN+r}")
    for r in range(16): a(f"v_exp_f32 v{PD+r}, v{PD+r}")
    a(f"v_pk_add_f32 {v(sn,2)}, {v(EN,2)}, {v(EN+2,2)}")
    for r in range(2, 8): a(f"v_pk_add_f32 {v(sn,2)}, {v(sn,2)}, {v(EN+2*r,2)}")
    a(f"v_pk_add_f32 {v(sp,2)}, {v(PD,2)}, {v(PD+2,2)}")
    for r in range(2, 8): a(f"v_pk_add_f32 {v(sp,2)}, {v(sp,2)}, {v(PD+2*r,2)}")
    a(f"v_add_f32 v{sn}, v{sn}, v{sn+1}")
    a(f"v_add_f32 v{sp}, v{sp}, v{sp+1}")
    a(f"v_mov_b32 v{t1}, v{sp}")
    a(f"v_mov_b32 v{t2}, v{sn}")
    a("s_nop 1")
    a(f"v_permlane32_swap_b32 v{sp}, v{t1}")
    a(f"v_permlane32_swap_b32 v{sn}, v{t2}")
    a("s_nop 1")
    a(f"v_add_f32 v{sp}, v{sp}, v{t1}")
    a(f"v_add_f32 v{sn}, v{sn}, v{t2}")
    a(f"v_rcp_f32 v{sp}, v{sp}")
    a(f"v_rcp_f32 v{sn}, v{sn}")
    a("s_nop 0")
    for r in range(8): a(f"v_pk_mul_f32 {v(PD+2*r,2)}, {v(PD+2*r,2)}, {v(sp,2)} op_sel_hi:[1,0]")
    for r in range(8): a(f"v_pk_mul_f32 {v(EN+2*r,2)}, {v(EN+2*r,2)}, {v(sn,2)} op_sel_hi:[1,0]")
    for r in range(8): a(f"v_cvt_pk_bf16_f32 v{PT+r}, v{PD+2*r}, v{PD+2*r+1}")
    for r in range(8): a(f"v_cvt_pk_bf16_f32 v{PT+8+r}, v{EN+2*r}, v{EN+2*r+1}")

NM, RS = 150, 154
CSV, CSQ, CSK, FNM, FRS = 162, 164, 180, 196, 212

def head_tb(a):
    a(f"s_lshl_b32 s50, s{S_J}, 1")
    a(f"s_add_u32 s50, s50, s{S_R2}")
    a(f"s_lshl_b32 s51, s{S_MB}, 2")
    a(f"s_lshl_b32 s39, s{S_R1}, 1")
    a("s_add_u32 s51, s51, s39")

def m_layer_A(a):
    PD, EN = 32, 48
    KVA_, TD, PF = 64, [96, 112], [128, 136]
    ONES = [144, 158]
    PT0, PT1, ZA = 164, 180, 180
    KT, WPH, I0, VF, T = 196, 212, 220, 228, 246
    load_stats_T(a, NM, RS)
    load_cs_T(a, 1, CSK)
    load_cs_F(a, CSV)
    load_stats_F(a, 0, FNM, FRS)
    head_tb(a)
    a("s_waitcnt lgkmcnt(0)")
    norm_F(a, acc(2, 0), CSV, FNM, FRS)
    load_stats_F(a, 1, FNM, FRS)
    pack(a, acc(2, 0), VF)
    for mi in range(2): norm_T(a, acc(1, mi), CSK, NM + 2*mi, RS + 2*mi)
    a("s_waitcnt lgkmcnt(0)")
    norm_F(a, acc(2, 1), CSV, FNM, FRS)
    pack(a, acc(2, 1), VF + 8)
    for mi in range(2): pack(a, acc(1, mi), KT + 8*mi)
    wphi_load(a, WPH, 148, 149)
    n4, hh, jj, val = 144, 145, 146, 147
    a(f"v_bfe_u32 v{n4}, v{V_LANE}, 2, 1")
    a(f"v_lshrrev_b32 v{hh}, 5, v{V_LANE}")
    a(f"v_cmp_eq_u32 vcc, v{n4}, v{hh}")
    a(f"v_bfe_u32 v{jj}, v{V_LANE}, 3, 1")
    a(f"v_lshlrev_b32 v{jj}, 2, v{jj}")
    a(f"v_and_b32 v{n4}, 3, v{V_LANE}")
    a(f"v_add_u32 v{jj}, v{jj}, v{n4}")
    a(f"v_and_b32 v{n4}, 1, v{jj}")
    a(f"v_lshlrev_b32 v{n4}, 4, v{n4}")
    a(f"v_mov_b32 v{val}, 0x3f80")
    a(f"v_lshlrev_b32 v{val}, v{n4}, v{val}")
    a(f"v_cndmask_b32 v{val}, 0, v{val}, vcc")
    a(f"v_lshrrev_b32 v{jj}, 1, v{jj}")
    a(f"v_bfe_u32 v{hh}, v{V_LANE}, 4, 1")
    a(f"v_lshl_add_u32 v{jj}, v{hh}, 2, v{jj}")
    for k in range(8):
        a(f"v_cmp_eq_u32 vcc, {k}, v{jj}")
        a("s_nop 1")
        a(f"v_cndmask_b32 v{I0+k}, 0, v{val}, vcc")
    a(f"v_cmp_eq_u32 vcc, 0, v{hh}")
    a(f"v_mov_b32 v{val}, {hex(ONES_BF16)}")
    a("s_nop 0")
    a(f"v_cndmask_b32 v148, 0, v{val}, vcc")
    a(f"v_sub_u32 v149, v{val}, v148")
    for k in range(4):
        a(f"v_mov_b32 v{ONES[0]+k}, v148")
        a(f"v_mov_b32 v{ONES[1]+k}, v149")
    a("s_waitcnt lgkmcnt(0)")
    for mi in range(2):
        a(f"{M32} {v(PD,16)}, {v(WPH,4)}, {v(KT+8*mi,4)}, 0")
        a(f"{M32} {v(PD,16)}, {v(WPH+4,4)}, {v(KT+8*mi+4,4)}, {v(PD,16)}")
        a("s_nop 11")
        softmax_pm(a, PD, EN, PT0, T)
        a("s_nop 1")
        for fb in range(2):
            a(f"{M32} {v(TD[fb],16)}, {v(PT0+8*fb,4)}, {v(I0,4)}, 0")
            a(f"{M32} {v(TD[fb],16)}, {v(PT0+8*fb+4,4)}, {v(I0+4,4)}, {v(TD[fb],16)}")
        a("s_nop 10")
        pack(a, TD[0], PF[0])
        pack(a, TD[1], PF[1])
        a("s_nop 1")
        for fb in range(2):
            for tt in range(2):
                c = "0" if (mi == 0 and tt == 0) else v(KVA_+16*fb,16)
                a(f"{M32} {v(KVA_+16*fb,16)}, {v(PF[fb]+4*tt,4)}, {v(VF+8*mi+4*tt,4)}, {c}")
        for fb in range(2):
            for tt in range(2):
                c = "0" if (mi == 0 and tt == 0 and fb == 0) else v(ZA,16)
                a(f"{M32} {v(ZA,16)}, {v(PF[fb]+4*tt,4)}, {v(ONES[fb],4)}, {c}")
    a("s_nop 15")
    stamp(a, 4)
    t = 148
    a(f"s_lshl_b32 s39, s{S_R2}, 13")
    a(f"s_add_u32 s39, s39, {L_SCR}")
    a(f"v_add_u32 v{t}, s39, v{V_L16}")
    a(f"v_lshrrev_b32 v149, 4, v{V_LANE}")
    a("v_lshlrev_b32 v149, 6, v149")
    a(f"s_lshl_b32 s39, s{S_R2}, 8")
    a(f"s_add_u32 s39, s39, {L_SCR+16384}")
    a("v_add_u32 v149, s39, v149")
    a(f"s_cmp_eq_u32 s{S_R1}, 0")
    a("s_cbranch_scc1 mA_red0")
    for q in range(8):
        a(f"ds_write_b128 v{t}, {v(KVA_+4*q,4)} offset:{q*1024}")
    a("s_mov_b32 exec_lo, 0x00010001")
    a("s_mov_b32 exec_hi, 0x00010001")
    for q in range(4):
        a(f"ds_write_b128 v149, {v(ZA+4*q,4)} offset:{q*16}")
    a("s_mov_b64 exec, -1")
    a("s_waitcnt lgkmcnt(0)")
    a("s_barrier")
    a("s_branch mA_red1")
    a("mA_red0:")
    a("s_barrier")
    for q in range(8):
        a(f"ds_read_b128 {v(96+4*q,4)}, v{t} offset:{q*1024}")
    for q in range(4):
        a(f"ds_read_b128 {v(128+4*q,4)}, v149 offset:{q*16}")
    a("s_waitcnt lgkmcnt(0)")
    for r in range(16): a(f"v_pk_add_f32 {v(KVA_+2*r,2)}, {v(KVA_+2*r,2)}, {v(96+2*r,2)}")
    for r in range(8): a(f"v_pk_add_f32 {v(ZA+2*r,2)}, {v(ZA+2*r,2)}, {v(128+2*r,2)}")
    for r in range(16): a(f"v_cvt_pk_bf16_f32 v{96+r}, v{KVA_+2*r}, v{KVA_+2*r+1}")
    a("s_lshl_b32 s52, s50, 4")
    a(f"s_add_u32 s52, s52, s{S_MB}")
    a("s_lshl_b32 s53, s52, 12")
    a(f"s_add_u32 s53, s53, s{S_KV}")
    for u in range(4):
        a(f"buffer_store_dwordx4 {v(96+4*u,4)}, v{V_L16}, s[8:11], s53 offen offset:{u*1024} sc1")
    a("s_lshl_b32 s53, s52, 8")
    a(f"s_add_u32 s53, s53, s{S_ZP}")
    a(f"v_bfe_u32 v148, v{V_LANE}, 4, 1")
    a("v_lshlrev_b32 v148, 7, v148")
    a(f"v_lshrrev_b32 v149, 5, v{V_LANE}")
    a("v_lshl_add_u32 v148, v149, 6, v148")
    a("s_mov_b32 exec_lo, 0x00010001")
    a("s_mov_b32 exec_hi, 0x00010001")
    for q in range(4):
        a(f"buffer_store_dwordx4 {v(ZA+4*q,4)}, v148, s[8:11], s53 offen offset:{q*16} sc1")
    a("s_mov_b64 exec, -1")
    a("s_waitcnt vmcnt(0)")
    a("mA_red1:")
    a("s_barrier")
    stamp(a, 5)
    load_cs_T(a, 0, CSQ)
    a("s_waitcnt lgkmcnt(0)")
    for mi in range(2): norm_T(a, acc(0, mi), CSQ, NM + 2*mi, RS + 2*mi)
    for mi in range(2): pack(a, acc(0, mi), KT + 8*mi)
    a("s_nop 1")
    for mi in range(2):
        a(f"{M32} {v(PD,16)}, {v(WPH,4)}, {v(KT+8*mi,4)}, 0")
        a(f"{M32} {v(PD,16)}, {v(WPH+4,4)}, {v(KT+8*mi+4,4)}, {v(PD,16)}")
        a("s_nop 11")
        softmax_pm(a, PD, EN, PT0 if mi == 0 else PT1, T)
    stamp(a, 6)
    a("s_barrier")

def kv_reduce(a):
    stamp(a, 12)
    a("v_lshrrev_b32 v144, 8, v253") if False else None
    a(f"s_lshr_b32 s39, s{S_WAVE}, 2")
    a("s_lshl_b32 s39, s39, 16")
    a(f"s_and_b32 s40, s{S_WAVE}, 3")
    a("s_lshl_b32 s40, s40, 10")
    a("s_add_u32 s39, s39, s40")
    a(f"s_lshl_b32 s41, s{S_J}, 17")
    a("s_add_u32 s39, s39, s41")
    a(f"s_add_u32 s39, s39, s{S_KV}")
    for i in range(16):
        a(f"buffer_load_dwordx4 {v(64+4*i,4)}, v{V_L16}, s[8:11], s39 offen sc1")
        if i < 15: a("s_add_u32 s39, s39, 4096")
    a(f"s_cmp_lt_u32 s{S_WAVE}, 2")
    a("s_cbranch_scc0 kvr_nz")
    a(f"s_lshl_b32 s39, s{S_J}, 1")
    a(f"s_add_u32 s39, s39, s{S_WAVE}")
    a("s_lshl_b32 s39, s39, 12")
    a(f"s_add_u32 s39, s39, s{S_ZP}")
    a(f"v_lshlrev_b32 v143, 2, v{V_LANE}")
    for i in range(16):
        a(f"buffer_load_dword v{144+i}, v143, s[8:11], s39 offen offset:{i*256} sc1")
    a("s_waitcnt vmcnt(0)")
    for i in range(1, 16): a(f"v_add_f32 v144, v144, v{144+i}")
    a("v_cvt_pk_bf16_f32 v144, v144, v144")
    a(f"v_lshrrev_b32 v145, 5, v{V_LANE}")
    a(f"v_bfe_u32 v146, v{V_LANE}, 3, 1")
    a("v_lshl_add_u32 v145, v145, 1, v146")
    a(f"v_bfe_u32 v146, v{V_LANE}, 4, 1")
    a("v_lshl_add_u32 v145, v145, 1, v146")
    a(f"v_and_b32 v146, 7, v{V_LANE}")
    a("v_lshl_add_u32 v145, v145, 3, v146")
    a("v_lshlrev_b32 v145, 1, v145")
    a(f"s_lshl_b32 s39, s{S_WAVE}, 7")
    a(f"s_add_u32 s39, s39, {L_SCR+8192}")
    a("v_add_u32 v145, s39, v145")
    a("ds_write_b16 v145, v144")
    a("kvr_nz:")
    a(f"v_mov_b32 v140, {hex(SEL_LO)}")
    a(f"v_mov_b32 v141, {hex(SEL_HI)}")
    for r in range(8): a(f"v_mov_b32 v{128+r}, 0")
    for i in range(16):
        a(f"s_waitcnt vmcnt({15-i})")
        for d in range(4):
            a(f"v_dot2c_f32_bf16 v{128+2*d}, v{64+4*i+d}, v140")
            a(f"v_dot2c_f32_bf16 v{128+2*d+1}, v{64+4*i+d}, v141")
    stamp(a, 13)
    a("s_nop 2")
    for d in range(4): a(f"v_cvt_pk_bf16_f32 v{136+d}, v{128+2*d}, v{128+2*d+1}")
    a(f"s_lshl_b32 s39, s{S_WAVE}, 10")
    a(f"s_add_u32 s39, s39, {L_SCR}")
    a(f"v_add_u32 v142, s39, v{V_L16}")
    a("ds_write_b128 v142, v[136:139]")
    a("s_waitcnt lgkmcnt(0)")
    a("s_barrier")

def m_layer_A2(a):
    stamp(a, 14)
    PT = [164, 180]
    KVF, ZF, NUM, DEN, T = 64, 80, 96, 112, 246
    a(f"s_lshl_b32 s39, s{S_R2}, 12")
    a(f"s_add_u32 s39, s39, {L_SCR}")
    a(f"v_add_u32 v148, s39, v{V_L16}")
    for u in range(4): a(f"ds_read_b128 {v(KVF+4*u,4)}, v148 offset:{u*1024}")
    a(f"v_lshrrev_b32 v149, 5, v{V_LANE}")
    a("v_lshlrev_b32 v149, 4, v149")
    a(f"s_lshl_b32 s39, s{S_R2}, 7")
    a(f"s_add_u32 s39, s39, {L_SCR+8192}")
    a("v_add_u32 v149, s39, v149")
    for u in range(4): a(f"ds_read_b128 {v(ZF+4*u,4)}, v149 offset:{u*32}")
    head_tb(a)
    a("s_lshl_b32 s52, s51, 16")
    a("s_lshl_b32 s53, s50, 11")
    a("s_add_u32 s52, s52, s53")
    a(f"s_add_u32 s52, s52, s{S_OF}")
    a("s_waitcnt lgkmcnt(0)")
    NUMS, DENS = [96, 128], [112, 144]
    for mi in range(2):
        for u in range(4):
            c = "0" if u == 0 else v(DENS[mi],16)
            a(f"{M32} {v(DENS[mi],16)}, {v(ZF+4*u,4)}, {v(PT[mi]+4*u,4)}, {c}")
        for u in range(4):
            c = "0" if u == 0 else v(NUMS[mi],16)
            a(f"{M32} {v(NUMS[mi],16)}, {v(KVF+4*u,4)}, {v(PT[mi]+4*u,4)}, {c}")
    for mi in range(2):
        a("s_nop 7" if mi == 1 else "s_nop 1")
        a(f"v_add_f32 v{T}, {f32(1e-6)}, v{DENS[mi]}")
        a(f"v_rcp_f32 v{T}, v{T}")
        a("s_nop 0")
        for r in range(8): a(f"v_pk_mul_f32 {v(NUMS[mi]+2*r,2)}, {v(NUMS[mi]+2*r,2)}, {v(T,2)} op_sel_hi:[1,0]")
        pack(a, NUMS[mi], 196 + 8*mi)
        a(f"s_add_u32 s53, s52, {mi*65536}")
        a(f"buffer_store_dwordx4 {v(196+8*mi,4)}, v{V_L16}, s[8:11], s53 offen sc1")
        a(f"buffer_store_dwordx4 {v(196+8*mi+4,4)}, v{V_L16}, s[8:11], s53 offen offset:1024 sc1")
    a("s_waitcnt vmcnt(0)")

def m_layer_B(a):
    RQ, PK = 158, 228
    load_stats_T(a, NM, RS)
    load_cs_T(a, 1, CSK)
    load_cs_F(a, CSV)
    load_stats_F(a, 0, FNM, FRS)
    load_cs_T(a, 0, CSQ)
    head_tb(a)
    a("s_lshl_b32 s52, s50, 6")
    a("s_add_u32 s52, s52, s51")
    a("s_lshl_b32 s52, s52, 12")
    a(f"s_add_u32 s52, s52, s{S_KV}")
    a(f"s_lshl_b32 s39, s{S_R2}, 16")
    a(f"s_lshl_b32 s40, s{S_R1}, 13")
    a("s_add_u32 s39, s39, s40")
    a(f"v_add_u32 v149, s39, v{V_L16}")
    a("s_waitcnt lgkmcnt(0)")
    for mi in range(2):
        norm_T(a, acc(1, mi), CSK, NM + 2*mi, RS + 2*mi)
        pk = PK + 8 * mi
        pack(a, acc(1, mi), pk)
        a(f"s_add_u32 s53, s52, {mi*4096}")
        a(f"buffer_store_dwordx4 {v(pk,4)}, v{V_L16}, s[8:11], s53 offen sc1")
        a(f"buffer_store_dwordx4 {v(pk+4,4)}, v{V_L16}, s[8:11], s53 offen offset:1024 sc1")
        a(f"ds_write_b128 v149, {v(pk,4)} offset:{mi*4096}")
        a(f"ds_write_b128 v149, {v(pk+4,4)} offset:{mi*4096+1024}")
    for mi in range(2):
        if mi == 1:
            load_stats_F(a, 1, FNM, FRS)
            a("s_waitcnt lgkmcnt(0)")
        norm_F(a, acc(2, mi), CSV, FNM, FRS)
        pk = PK + 8 * mi
        pack(a, acc(2, mi), pk)
        a(f"s_add_u32 s53, s52, {mi*4096}")
        a(f"buffer_store_dwordx4 {v(pk,4)}, v{V_L16}, s[8:11], s53 offen offset:2048 sc1")
        a(f"buffer_store_dwordx4 {v(pk+4,4)}, v{V_L16}, s[8:11], s53 offen offset:3072 sc1")
        a(f"ds_write_b128 v149, {v(pk,4)} offset:{mi*4096+2048}")
        a(f"ds_write_b128 v149, {v(pk+4,4)} offset:{mi*4096+3072}")
    c = (32 ** -0.5) * LOG2E
    for mi in range(2): a(f"v_mul_f32 v{RQ+2*mi}, {f32(c)}, v{RS+2*mi}")
    a(f"s_lshl_b32 s39, s{S_R1}, 2")
    a(f"s_add_u32 s39, s39, s{S_R2}")
    a("s_lshl_b32 s39, s39, 11")
    a(f"s_add_u32 s39, s39, {L_SCR}")
    a(f"v_add_u32 v148, s39, v{V_L16}")
    for mi in range(2):
        norm_T(a, acc(0, mi), CSQ, NM + 2*mi, RQ + 2*mi)
        pack(a, acc(0, mi), 196 + 8*mi)
        a(f"ds_write_b128 v148, {v(196+8*mi,4)} offset:{mi*4096}")
        a(f"ds_write_b128 v148, {v(196+8*mi+4,4)} offset:{mi*4096+1024}")
    a("s_waitcnt vmcnt(0) lgkmcnt(0)")

CH = 16384
APRIO = int(os.environ.get('APRIO', '0'))
ANOBAR = int(os.environ.get('ANOBAR', '0'))
aQ, aNEGM, aSA, aSB, aP, aO, aL, aSEL, aKVA, aKVB, aVA, aVG, aT0 = 0, 8, 24, 40, 56, 64, 80, 84, 88, 104, 120, 121, 123

def attention(a):
    Q, NEGM, SA, SB, P, O, L, SEL, KVA, KVB, VA, VG, T0 = aQ, aNEGM, aSA, aSB, aP, aO, aL, aSEL, aKVA, aKVB, aVA, aVG, aT0
    a(f"s_and_b32 s50, s{S_WAVE}, 1")
    a(f"s_lshr_b32 s51, s{S_WAVE}, 1")
    a("s_lshl_b32 s52, s50, 16")
    a(f"v_add_u32 v{VA}, s52, v{V_L16}")
    a(f"s_lshl_b32 s53, s{S_J}, 1")
    a("s_add_u32 s53, s53, s50")
    a("s_lshl_b32 s30, s53, 18") if False else None
    a("s_lshl_b32 s54, s53, 18")
    a(f"s_add_u32 s54, s54, s{S_KV}")
    a("s_lshl_b32 s55, s51, 12")
    a("s_add_u32 s57, s54, s55")
    a("s_add_u32 s55, s55, s52")
    a(f"s_add_u32 s58, s{S_MB}, 1")
    def dma(buf):
        a("s_and_b32 s58, s58, 15")
        a("s_lshl_b32 s56, s58, 14")
        a("s_add_u32 s56, s56, s57")
        a(f"s_add_u32 m0, s55, {buf*CH}")
        a("s_add_u32 s58, s58, 1")
        for i in range(4):
            a(f"buffer_load_dwordx4 v{V_L16}, s[8:11], s56 offen offset:{i*1024} sc1 lds")
    def wo_part(k):
        a(f"s_and_b32 s41, s{S_WAVE}, 3")
        a("s_lshl_b32 s41, s41, 2")
        a(f"s_lshr_b32 s42, s{S_WAVE}, 2")
        a("s_lshl_b32 s42, s42, 6")
        a("s_add_u32 s41, s41, s42")
        if k: a(f"s_add_u32 s41, s41, {16*k}")
        wo_dma(a, 41, 4, vd=VG)
    def rd(kv, off):
        for i in range(4): a(f"ds_read_b128 {v(kv+4*i,4)}, v{VA} offset:{off+i*1024}")
    handoff(a, "at_sig", FL_KV, S_J, S_MB, wave=0, do_poll=False)
    wsrd(a, S_AWO, S_BWO, D_ * D_ * 2)
    wo_voff(a, VG, T0, T0 + 1)
    a(f"s_lshl_b32 s39, s{S_WAVE}, 11")
    a(f"s_add_u32 s39, s39, {L_SCR}")
    a(f"v_add_u32 v{T0}, s39, v{V_L16}")
    a(f"ds_read_b128 {v(Q,4)}, v{T0}")
    a(f"ds_read_b128 {v(Q+4,4)}, v{T0} offset:1024")
    a(f"v_and_b32 v{T0}, 3, v{V_LANE}")
    a(f"v_bfe_u32 v{T0+1}, v{V_LANE}, 2, 1")
    a(f"v_bfe_u32 v{T0+2}, v{V_LANE}, 4, 1")
    a(f"v_xor_b32 v{T0+1}, v{T0+1}, v{T0+2}")
    a(f"v_or_b32 v{T0}, v{T0}, v{T0+1}")
    a(f"v_cmp_eq_u32 vcc, 0, v{T0}")
    a(f"v_mov_b32 v{T0+1}, {hex(ONES_BF16)}")
    a(f"v_mov_b32 v{T0+2}, 0")
    a(f"v_cndmask_b32 v{SEL}, v{T0+2}, v{T0+1}, vcc")
    for i in range(1, 4): a(f"v_mov_b32 v{SEL+i}, v{SEL}")
    for i in range(16): a(f"v_mov_b32 v{O+i}, 0")
    for i in range(4): a(f"v_mov_b32 v{L+i}, 0")
    for i in range(8): a(f"v_mov_b32 v{P+i}, 0")
    rd(KVA, 0)
    a("s_waitcnt lgkmcnt(0)")
    a(f"{M32} {v(SA,16)}, {v(KVA,4)}, {v(Q,4)}, 0")
    a(f"{M32} {v(SA,16)}, {v(KVA+4,4)}, {v(Q+4,4)}, {v(SA,16)}")
    rd(KVB, 4096)
    a("s_nop 7")
    a(f"v_max3_f32 v{T0}, v{SA}, v{SA+1}, v{SA+2}")
    for i in range(3, 15, 2): a(f"v_max3_f32 v{T0}, v{T0}, v{SA+i}, v{SA+i+1}")
    a(f"v_max_f32 v{T0}, v{T0}, v{SA+15}")
    a(f"v_mov_b32 v{T0+1}, v{T0}")
    a("s_nop 1")
    a(f"v_permlane32_swap_b32 v{T0}, v{T0+1}")
    a("s_nop 1")
    a(f"v_max_f32 v{T0}, v{T0}, v{T0+1}")
    a(f"v_sub_f32 v{NEGM}, 0, v{T0}")
    for i in range(1, 16): a(f"v_mov_b32 v{NEGM+i}, v{NEGM}")
    for i in range(16): a(f"v_add_f32 v{SA+i}, v{SA+i}, v{NEGM}")
    handoff(a, "at_pol", FL_KV, S_J, S_MB, wave=0, do_signal=False)
    a("s_barrier")
    stamp(a, 5)
    dma(1); dma(2)
    pn = [0]
    if APRIO == 1:
        a(f"s_cmp_ge_u32 s{S_WAVE}, 4")
        a("s_cbranch_scc0 at_np")
        a("s_setprio 1")
        a("at_np:")
    if APRIO == 3:
        a(f"s_cmp_lt_u32 s{S_WAVE}, 4")
        a("s_cbranch_scc0 at_np")
        a("s_setprio 1")
        a("at_np:")
    if APRIO == 2:
        a(f"s_cmp_ge_u32 s{S_WAVE}, 4")
        a("s_cselect_b64 vcc, -1, 0")
    def rounds(last):
        for r in range(16):
            cur, nxt = (SA, SB) if r % 2 == 0 else (SB, SA)
            kvc, kvn = (KVA, KVB) if r % 2 == 0 else (KVB, KVA)
            tK = (r + 2) % 16; tV = (r + 1) % 16
            doK = not (last and r >= 14)
            doQK = not (last and r == 15)
            e = lambda i: a(f"v_exp_f32 v{cur+i}, v{cur+i}")
            c = lambda i: a(f"v_cvt_pk_bf16_f32 v{P+i}, v{cur+2*i}, v{cur+2*i+1}")
            if APRIO == 2:
                a(f"s_setprio {1 if r % 2 == 0 else 0}") if False else None
                a(f"s_cbranch_vccz at_p{pn[0]}a")
                a(f"s_setprio {r % 2}")
                a(f"s_branch at_p{pn[0]}b")
                a(f"at_p{pn[0]}a:")
                a(f"s_setprio {1 - r % 2}")
                a(f"at_p{pn[0]}b:")
                pn[0] += 1
            a("s_waitcnt lgkmcnt(0)")
            if (r + 2) % 4 == 0 and not (last and r == 14):
                b = (r + 2) // 4
                a("s_waitcnt vmcnt(4)")
                if not ANOBAR: a("s_barrier")
                if last and b == 1 and WPF:
                    a(f"s_cmp_eq_u32 s{S_L}, 3")
                    a("s_cbranch_scc1 at_nopf")
                    a(f"s_and_b32 s41, s{S_MB}, 7")
                    a("s_lshl_b32 s41, s41, 7")
                    a(f"s_lshl_b32 s42, s{S_WAVE}, 4")
                    a("s_add_u32 s41, s41, s42")
                    w_prefetch(a, 41, 16, 128, 152)
                    a("at_nopf:")
                if not (last and b >= 2): dma((b + 2) % 4)
                if last and b == 2: wo_part(0)
                if last and b == 3: wo_part(1)
            if doQK: a(f"{M32} {v(nxt,16)}, {v(kvn,4)}, {v(Q,4)}, {v(NEGM,16)}")
            for i in range(0, 4): e(i)
            if doK:
                a(f"ds_read_b128 {v(kvc,4)}, v{VA} offset:{tK*4096}")
                a(f"ds_read_b128 {v(kvc+4,4)}, v{VA} offset:{tK*4096+1024}")
            if doQK: a(f"{M32} {v(nxt,16)}, {v(kvn+4,4)}, {v(Q+4,4)}, {v(nxt,16)}")
            for i in range(4, 8): e(i)
            a(f"{M32} {v(O,16)}, {v(kvn+12,4)}, {v(P+4,4)}, {v(O,16)}")
            for i in range(0, 4): c(i)
            e(8); e(9)
            if doQK:
                a(f"ds_read_b128 {v(kvn+8,4)}, v{VA} offset:{tV*4096+2048}")
                a(f"ds_read_b128 {v(kvn+12,4)}, v{VA} offset:{tV*4096+3072}")
            a(f"{M16} {v(L,4)}, {v(SEL,4)}, {v(P+4,4)}, {v(L,4)}")
            e(10); e(11)
            a(f"{M32} {v(O,16)}, {v(kvc+8,4)}, {v(P,4)}, {v(O,16)}")
            for i in range(12, 16): e(i)
            a(f"{M16} {v(L,4)}, {v(SEL,4)}, {v(P,4)}, {v(L,4)}")
            for i in range(4, 8): c(i)
    a("s_mov_b32 s40, 3")
    a("at_loop:")
    rounds(False)
    a("s_sub_u32 s40, s40, 1")
    a("s_cmp_lg_u32 s40, 0")
    a("s_cbranch_scc1 at_loop")
    rounds(True)
    a("s_nop 1")
    a(f"{M32} {v(O,16)}, {v(KVB+12,4)}, {v(P+4,4)}, {v(O,16)}")
    a(f"{M16} {v(L,4)}, {v(SEL,4)}, {v(P+4,4)}, {v(L,4)}")
    if APRIO: a("s_setprio 0")
    stamp(a, 6)
    a("s_nop 15")
    a(f"v_mov_b32 v{T0}, 0")
    for i in range(16): a(f"v_fma_f32 v{T0}, v{O+i}, 0, v{T0}")
    a(f"v_cmp_eq_f32 vcc, 0, v{T0}")
    a(f"v_mov_b32 v{T0+1}, {f32(2.0**100)}")
    a(f"v_cmp_lt_f32 s[42:43], v{L}, v{T0+1}")
    a("s_nop 1")
    a("s_and_b64 vcc, vcc, s[42:43]")
    a("s_cmp_eq_u64 vcc, exec")
    a("s_cbranch_scc1 at_fin")
    for i in range(16): a(f"v_mov_b32 v{O+i}, 0")
    for i in range(4): a(f"v_mov_b32 v{L+i}, 0")
    MV = T0 + 2
    a(f"v_mov_b32 v{MV}, {f32(-3.0e38)}")
    a("s_mov_b32 s41, s54")
    a("s_mov_b32 s40, 64")
    a("at_fb:")
    for i in range(4):
        a(f"buffer_load_dwordx4 {v(KVA+4*i,4)}, v{V_L16}, s[8:11], s41 offen offset:{i*1024} sc1")
    a("s_waitcnt vmcnt(0)")
    a(f"{M32} {v(SA,16)}, {v(KVA,4)}, {v(Q,4)}, 0")
    a(f"{M32} {v(SA,16)}, {v(KVA+4,4)}, {v(Q+4,4)}, {v(SA,16)}")
    a("s_nop 15")
    a(f"v_max3_f32 v{T0}, v{SA}, v{SA+1}, v{SA+2}")
    for i in range(3, 15, 2): a(f"v_max3_f32 v{T0}, v{T0}, v{SA+i}, v{SA+i+1}")
    a(f"v_max_f32 v{T0}, v{T0}, v{SA+15}")
    a(f"v_mov_b32 v{T0+1}, v{T0}")
    a("s_nop 1")
    a(f"v_permlane32_swap_b32 v{T0}, v{T0+1}")
    a("s_nop 1")
    a(f"v_max3_f32 v{T0}, v{T0}, v{T0+1}, v{MV}")
    a(f"v_sub_f32 v{T0+1}, v{MV}, v{T0}")
    a(f"v_exp_f32 v{T0+1}, v{T0+1}")
    a(f"v_mov_b32 v{MV}, v{T0}")
    for i in range(16): a(f"v_sub_f32 v{SA+i}, v{SA+i}, v{T0}")
    for i in range(16): a(f"v_exp_f32 v{SA+i}, v{SA+i}")
    for i in range(16): a(f"v_mul_f32 v{O+i}, v{O+i}, v{T0+1}")
    for i in range(4): a(f"v_mul_f32 v{L+i}, v{L+i}, v{T0+1}")
    for i in range(8): a(f"v_cvt_pk_bf16_f32 v{P+i}, v{SA+2*i}, v{SA+2*i+1}")
    a("s_nop 1")
    a(f"{M32} {v(O,16)}, {v(KVA+8,4)}, {v(P,4)}, {v(O,16)}")
    a(f"{M16} {v(L,4)}, {v(SEL,4)}, {v(P,4)}, {v(L,4)}")
    a(f"{M32} {v(O,16)}, {v(KVA+12,4)}, {v(P+4,4)}, {v(O,16)}")
    a(f"{M16} {v(L,4)}, {v(SEL,4)}, {v(P+4,4)}, {v(L,4)}")
    a("s_nop 15")
    a("s_add_u32 s41, s41, 4096")
    a("s_sub_u32 s40, s40, 1")
    a("s_cmp_lg_u32 s40, 0")
    a("s_cbranch_scc1 at_fb")
    a("at_fin:")
    a(f"v_rcp_f32 v{T0}, v{L}")
    a("s_nop 0")
    for i in range(16): a(f"v_mul_f32 v{O+i}, v{O+i}, v{T0}")
    for i in range(8): a(f"v_cvt_pk_bf16_f32 v{P+i}, v{O+2*i}, v{O+2*i+1}")
    a(f"s_lshl_b32 s39, s{S_MB}, 2")
    a("s_add_u32 s39, s39, s51")
    a("s_lshl_b32 s39, s39, 16")
    a("s_lshl_b32 s40, s53, 11")
    a("s_add_u32 s39, s39, s40")
    a(f"s_add_u32 s39, s39, s{S_OF}")
    a(f"buffer_store_dwordx4 {v(P,4)}, v{V_L16}, s[8:11], s39 offen sc1")
    a(f"buffer_store_dwordx4 {v(P+4,4)}, v{V_L16}, s[8:11], s39 offen offset:1024 sc1")
    a("s_waitcnt vmcnt(0)")

def m_setup(a):
    layer_setup(a)
    a(f"s_lshl_b32 s39, s{S_R1}, 13")
    a(f"v_add_u32 v{VX0}, s39, v{V_L16}")
    L_ = V_LANE
    a(f"v_lshrrev_b32 v5, 5, v{L_}")
    a(f"v_bfe_u32 v6, v{L_}, 2, 2")
    a("v_lshl_add_u32 v5, v5, 2, v6")
    a("v_lshlrev_b32 v5, 7, v5")
    a(f"v_bfe_u32 v6, v{L_}, 4, 1")
    a(f"v_bfe_u32 v7, v{L_}, 1, 1")
    a("v_lshl_add_u32 v6, v6, 1, v7")
    a(f"s_lshl_b32 s39, s{S_R2}, 2")
    a("v_add_u32 v6, s39, v6")
    a(f"v_bfe_u32 v7, v{L_}, 3, 1")
    a("v_lshlrev_b32 v7, 2, v7")
    a("v_xor_b32 v6, v6, v7")
    a("v_lshl_add_u32 v5, v6, 4, v5")
    a(f"v_and_b32 v6, 1, v{L_}")
    a(f"v_lshl_add_u32 v{VW0}, v6, 3, v5")
    a(f"v_mov_b32 v{VX}, v{VX0}")
    a(f"v_mov_b32 v{VW}, v{VW0}")
    if PFD:
        wsrd(a, S_AWQKV, S_BWQKV, D_ * 3 * D_ * 2)
        a(f"v_lshrrev_b32 v220, 3, v{V_LANE}")
        a("v_mul_u32_u24 v220, 6144, v220")
        a(f"v_and_b32 v221, 7, v{V_LANE}")
        a("v_lshl_add_u32 v220, v221, 4, v220")
        a(f"s_mul_i32 s45, s{S_WAVE}, {16*6144}")
        a(f"s_lshl_b32 s39, s{S_J}, 7")
        a("s_add_u32 s45, s45, s39")
        a(f"s_and_b32 s42, s{S_MB}, 7")
        a(f"s_mov_b32 s41, {PFD}")
    for i in range(96): a(f"v_mov_b32 v{ACC+i}, 0")
    a("s_mov_b32 s40, 0")
    a("s_mov_b32 s49, 16")

def emit_xstore(a, PK, ONE, S1, VA, sx, sst):
    for i in range(4):
        a(f"buffer_store_dwordx4 {v(PK+4*i,4)}, v{V_L16}, s[8:11], s{sx} offen offset:{i*1024} sc1")
    S2, S3, S4 = S1 + 1, S1 + 2, S1 + 3
    a(f"v_mov_b32 v{S1}, 0")
    a(f"v_mov_b32 v{S2}, 0")
    for r in range(16):
        a(f"v_dot2c_f32_bf16 v{S1}, v{PK+r}, v{ONE}")
        a(f"v_dot2c_f32_bf16 v{S2}, v{PK+r}, v{PK+r}")
    a("s_nop 2")
    a(f"v_mov_b32 v{S3}, v{S1}")
    a(f"v_mov_b32 v{S4}, v{S2}")
    a("s_nop 1")
    a(f"v_permlane32_swap_b32 v{S1}, v{S3}")
    a(f"v_permlane32_swap_b32 v{S2}, v{S4}")
    a("s_nop 1")
    a(f"v_add_f32 v{S1}, v{S1}, v{S3}")
    a(f"v_add_f32 v{S2}, v{S2}, v{S4}")
    a(f"v_and_b32 v{VA}, 31, v{V_LANE}")
    a(f"v_lshlrev_b32 v{VA}, 3, v{VA}")
    a("s_mov_b64 exec, 0xffffffff")
    a(f"buffer_store_dwordx2 {v(S1,2)}, v{VA}, s[8:11], s{sst} offen sc1")
    a("s_mov_b64 exec, -1")

def m_p3(a):
    a("m_f1:")
    a("s_barrier")
    handoff(a, "m_ho_s", FL_O, S_MB, S_J, wave=0, do_poll=False)
    ACC3, AR, WF, RES = 0, 32, [96, 104], 112
    VWA = [128, 129, 130, 131]
    L_ = V_LANE
    a(f"s_lshl_b32 s50, s{S_MB}, 2")
    a(f"s_add_u32 s50, s50, s{S_WAVE}")
    a("s_lshl_b32 s51, s50, 16")
    a(f"s_lshl_b32 s39, s{S_J}, 12")
    a("s_add_u32 s52, s51, s39")
    a(f"s_add_u32 s53, s52, s{S_XF}")
    for i in range(4):
        a(f"buffer_load_dwordx4 {v(RES+4*i,4)}, v{V_L16}, s[8:11], s53 offen offset:{i*1024} sc1")
    a(f"s_add_u32 s54, s51, s{S_OF}")
    seq = list(range(0, 16)) + list(range(32, 48)) + list(range(16, 32)) + list(range(48, 64))
    def aload(idx):
        ks = seq[idx]; slot = idx % 16
        if ks % 4 == 0: a(f"s_add_u32 s55, s54, {(ks//4)*4096}")
        a(f"buffer_load_dwordx4 {v(AR+4*slot,4)}, v{V_L16}, s[8:11], s55 offen offset:{(ks%4)*1024} sc1 {os.environ.get('ANT','')}")
    a(f"v_lshrrev_b32 v132, 5, v{L_}")
    a(f"v_bfe_u32 v133, v{L_}, 2, 2")
    a("v_lshl_add_u32 v132, v132, 2, v133")
    a("v_lshlrev_b32 v132, 7, v132")
    a(f"v_bfe_u32 v133, v{L_}, 4, 1")
    a(f"v_bfe_u32 v134, v{L_}, 1, 1")
    a("v_lshl_add_u32 v133, v133, 1, v134")
    a(f"v_bfe_u32 v134, v{L_}, 3, 1")
    a("v_lshlrev_b32 v134, 2, v134")
    a("v_xor_b32 v133, v133, v134")
    a("v_lshl_add_u32 v132, v133, 4, v132")
    a(f"v_and_b32 v133, 1, v{L_}")
    a(f"v_lshl_add_u32 v{VWA[0]}, v133, 3, v132")
    a(f"v_xor_b32 v{VWA[1]}, 64, v{VWA[0]}")
    a(f"v_add_u32 v{VWA[2]}, 0x10000, v{VWA[0]}")
    a(f"v_add_u32 v{VWA[3]}, 0x10000, v{VWA[1]}")
    for i in range(32): a(f"v_mov_b32 v{ACC3+i}, 0")
    def wreads(idx, cb):
        fs = WF[idx % 2]; ks = seq[idx]
        half, kk = ks // 32, ks % 32
        for t in range(2):
            a(f"ds_read_b64_tr_b16 {v(fs+4*cb+2*t,2)}, v{VWA[half*2+cb]} offset:{kk*2048+t*1024}")
    handoff(a, "m_ho_p", FL_O, S_MB, S_J, wave=0, do_signal=False)
    a("s_barrier")
    stamp(a, 8)
    for idx in range(16): aload(idx)
    wreads(0, 0); wreads(0, 1)
    stamp(a, 9)
    for ks in range(64):
        fs = WF[ks % 2]; A = AR + 4 * (ks % 16)
        vm = min(15, 63 - ks)
        a(f"s_waitcnt vmcnt({vm}) lgkmcnt(2)")
        a(f"{M32} {v(ACC3,16)}, {v(fs,4)}, {v(A,4)}, {v(ACC3,16)}")
        if ks == 31: a("s_barrier")
        if ks < 63:
            wreads(ks + 1, 0)
            a("s_waitcnt lgkmcnt(2)")
        else:
            a("s_waitcnt lgkmcnt(0)")
        a(f"{M32} {v(ACC3+16,16)}, {v(fs+4,4)}, {v(A,4)}, {v(ACC3+16,16)}")
        if ks < 63: wreads(ks + 1, 1)
        if ks + 16 < 64: aload(ks + 16)
    stamp(a, 10)
    T = 136
    a(f"v_mov_b32 v{T}, {hex(SEL_LO)}")
    a(f"v_mov_b32 v{T+1}, {hex(SEL_HI)}")
    a(f"v_mov_b32 v{T+2}, {hex(ONES_BF16)}")
    a("s_nop 7")
    for cb in range(2):
        for r in range(8):
            a(f"v_dot2c_f32_bf16 v{ACC3+16*cb+2*r}, v{RES+8*cb+r}, v{T}")
            a(f"v_dot2c_f32_bf16 v{ACC3+16*cb+2*r+1}, v{RES+8*cb+r}, v{T+1}")
    a("s_nop 2")
    PK = RES
    for cb in range(2):
        for r in range(8):
            a(f"v_cvt_pk_bf16_f32 v{PK+8*cb+r}, v{ACC3+16*cb+2*r}, v{ACC3+16*cb+2*r+1}")
    a(f"s_cmp_eq_u32 s{S_L}, 3")
    a("s_cbranch_scc1 p3_final")
    a(f"s_add_u32 s53, s52, s{S_XFN}")
    a(f"s_lshl_b32 s39, s{S_J}, 14")
    a("s_lshl_b32 s40, s50, 8")
    a("s_add_u32 s39, s39, s40")
    a(f"s_add_u32 s54, s39, s{S_STN}")
    emit_xstore(a, PK, T + 2, 140, 144, 53, 54)
    a(f"s_add_u32 s{S_L}, s{S_L}, 1")
    m_setup(a)
    a("s_waitcnt vmcnt(0)")
    a("s_barrier")
    if STAMP: a(f"s_sub_u32 s{S_L}, s{S_L}, 1")
    stamp(a, 11)
    if STAMP: a(f"s_add_u32 s{S_L}, s{S_L}, 1")
    handoff(a, "m_hx", FL_X, S_MB, S_J, layer_delta=-1, wave=0)
    a("s_barrier")
    a("s_branch m_layer")
    a("p3_final:")
    for i in range(4):
        a(f"v_permlane32_swap_b32 v{PK+4*i}, v{PK+4*i+2}")
        a(f"v_permlane32_swap_b32 v{PK+4*i+1}, v{PK+4*i+3}")
    a(f"v_and_b32 v144, 31, v{L_}")
    a("v_lshlrev_b32 v144, 11, v144")
    a(f"v_lshrrev_b32 v145, 5, v{L_}")
    a("v_lshl_add_u32 v144, v145, 4, v144")
    a(f"s_lshl_b32 s39, s{S_J}, 7")
    a("s_add_u32 s39, s39, s51")
    srd(a, 16, S_OUT, S_ * D_ * 2)
    for i in range(4):
        a(f"buffer_store_dwordx4 {v(PK+4*i,4)}, v144, s[16:19], s39 offen offset:{i*32}")
    a("s_waitcnt vmcnt(0)")
    stamp(a, 11)
    a("s_endpgm")

def gen_mega(name="mega_kernel"):
    a = Asm()
    kstart(a, name, 256)
    a(f"s_load_dwordx2 s[4:5], s[0:1], {KA_WS}")
    a(f"s_load_dwordx2 s[{S_AWQKV}:{S_AWQKV+1}], s[0:1], {KA_AWQKV}")
    a(f"s_load_dwordx2 s[{S_BWQKV}:{S_BWQKV+1}], s[0:1], {KA_BWQKV}")
    a(f"s_load_dwordx2 s[{S_AWO}:{S_AWO+1}], s[0:1], {KA_AWO}")
    a(f"s_load_dwordx2 s[{S_BWO}:{S_BWO+1}], s[0:1], {KA_BWO}")
    a(f"s_load_dwordx2 s[{S_AWPHI}:{S_AWPHI+1}], s[0:1], {KA_AWPHI}")
    a(f"s_load_dwordx2 s[{S_OUT}:{S_OUT+1}], s[0:1], {KA_OUT}")
    a("v_lshrrev_b32 v1, 6, v0")
    a(f"v_and_b32 v{V_LANE}, 63, v0")
    a(f"v_lshlrev_b32 v{V_L16}, 4, v{V_LANE}")
    a("s_and_b32 s38, s2, 7")
    a("s_lshr_b32 s39, s2, 3")
    a(f"v_readfirstlane_b32 s{S_WAVE}, v1")
    a(f"s_and_b32 s{S_MB}, s38, 1")
    a(f"s_lshl_b32 s{S_MB}, s{S_MB}, 3")
    a("s_and_b32 s40, s39, 7")
    a(f"s_add_u32 s{S_MB}, s{S_MB}, s40")
    a(f"s_lshr_b32 s{S_J}, s38, 1")
    a(f"s_lshl_b32 s{S_J}, s{S_J}, 2")
    a("s_lshr_b32 s40, s39, 3")
    a(f"s_add_u32 s{S_J}, s{S_J}, s40")
    a(f"s_mov_b32 s{S_L}, 0")
    a(f"s_mov_b32 s{S_L2E}, {f32(LOG2E)}")
    a(f"s_load_dwordx2 s[74:75], s[0:1], {KA_AX}")
    if STAMP:
        a("s_lshl_b32 s90, s2, 6")
        a(f"s_lshl_b32 s91, s{S_WAVE}, 2")
        a("s_add_u32 s90, s90, s91")
        a(f"s_add_u32 s90, s90, {hex(WS_STAMP)}")
    a("s_waitcnt lgkmcnt(0)")
    srd(a, 8, 4, WS_SIZE)
    if DBGST:
        a(f"s_load_dwordx2 s[92:93], s[0:1], {KA_DBG}")
        a("s_waitcnt lgkmcnt(0)")
        srd(a, 88, 92, 256)
    stamp(a, 0)
    if os.environ.get("CODEPF"):
        a("s_getpc_b64 s[76:77]")
        a("cpf_here:")
        a("s_add_u32 s76, s76, 0")
        a("s_and_b32 s76, s76, 0xffffff00")
        a("s_and_b32 s77, s77, 0xffff")
        a("s_mov_b32 s78, 0x9000")
        a("s_mov_b32 s79, 0x20000")
        a("s_lshr_b32 s39, s2, 3")
        a("s_lshl_b32 s39, s39, 11")
        a(f"buffer_load_dwordx4 v[200:203], v{V_L16}, s[76:79], s39 offen")
        a(f"buffer_load_dwordx4 v[204:207], v{V_L16}, s[76:79], s39 offen offset:1024")
    a("v_mov_b32 v217, 0")
    a(f"s_mov_b32 s39, {hex(WS_FLAGS + 4*0x1800 + FL_O)}")
    a("buffer_load_dword v218, v217, s[8:11], s39 offen sc1")
    a(f"s_cmp_lt_u32 s{S_WAVE}, 4")
    a("s_cbranch_scc1 m_entry")
    a(f"s_sub_u32 s{S_R1}, s{S_WAVE}, 4")
    a("l_layer:")
    layer_setup(a)
    wsrd(a, S_AWQKV, S_BWQKV, D_ * 3 * D_ * 2)
    a(f"v_mov_b32 v2, v{V_L16}")
    a(f"v_lshrrev_b32 v5, 3, v{V_LANE}")
    a("v_mul_u32_u24 v3, 6144, v5")
    a(f"v_and_b32 v6, 7, v{V_LANE}")
    a(f"v_bfe_u32 v7, v{V_LANE}, 4, 1")
    a("v_lshlrev_b32 v7, 2, v7")
    a("v_xor_b32 v6, v6, v7")
    a("v_lshl_add_u32 v3, v6, 4, v3")
    a(f"s_mul_i32 s59, s{S_R1}, {16*6144}")
    a(f"s_lshl_b32 s39, s{S_J}, 7")
    a("s_add_u32 s59, s59, s39")
    if ROT == "mb":
        a(f"s_mov_b32 s56, s{S_MB}")
    elif ROT == "mb2":
        a(f"s_lshl_b32 s56, s{S_MB}, 1")
        a("s_and_b32 s56, s56, 15")
    elif ROT == "mbj":
        a(f"s_add_u32 s56, s{S_MB}, s{S_J}")
        a("s_and_b32 s56, s56, 15")
    else:
        a("s_mov_b32 s56, 0")
    a("s_mov_b32 s57, s56")
    a(f"s_lshl_b32 s47, s{S_R1}, 12")
    a(f"s_lshl_b32 s48, s{S_R1}, 11")
    a("s_add_u32 s48, s48, 16384")
    a("s_mov_b32 s45, 0")
    a("s_mov_b32 s46, 0")
    a(f"s_lshl_b32 s58, s{S_MB}, 2")
    a(f"s_add_u32 s58, s58, s{S_R1}")
    a("s_lshl_b32 s58, s58, 16")
    a(f"s_cmp_eq_u32 s{S_L}, 0")
    a("s_cbranch_scc1 l_xrow")
    a(f"s_add_u32 s58, s58, s{S_XF}")
    srd(a, 84, 4, WS_SIZE)
    a("s_mov_b32 s81, 1024")
    a("s_mov_b32 s82, 4096")
    a(f"v_mov_b32 v4, v{V_L16}")
    a("s_branch l_xdone")
    a("l_xrow:")
    srd(a, 84, 74, S_ * D_ * 2)
    a("s_mov_b32 s81, 16384")
    a("s_mov_b32 s82, 128")
    a(f"v_lshrrev_b32 v5, 3, v{V_LANE}")
    a("v_lshlrev_b32 v5, 11, v5")
    a(f"v_and_b32 v6, 7, v{V_LANE}")
    a(f"v_lshrrev_b32 v7, 4, v{V_LANE}")
    a("v_xor_b32 v6, v6, v7")
    a("v_lshl_add_u32 v2, v6, 4, v5")
    a("v_xor_b32 v4, 64, v2")
    a("l_xdone:")
    def share_dma():
        if os.environ.get("NOSHDMA"): return
        a(f"s_cmp_lt_u32 s{S_L}, 2")
        n = _poll_n[0]; _poll_n[0] += 1
        a(f"s_cbranch_scc0 l_nosh{n}")
        a(f"s_mul_i32 s42, s{S_MB}, {64*6144}")
        a("s_add_u32 s42, s42, s59")
        a(f"s_lshl_b32 s44, s{S_R1}, 11")
        for p in range(3):
            for q in range(2):
                a(f"s_add_u32 m0, s44, {L_SH[p] + q*1024}")
                a(f"s_add_u32 s43, s42, {p*2048 + q*8*6144}")
                a("buffer_load_dwordx4 v3, s[12:15], s43 offen lds")
        a(f"l_nosh{n}:")
    def wphi_dma():
        srd(a, 16, S_AWPHI, 32*32*32*2)
        a(f"s_lshl_b32 s49, s{S_J}, 12")
        a(f"s_lshl_b32 s39, s{S_R1}, 10")
        a("s_add_u32 s49, s49, s39")
        a(f"s_add_u32 m0, s39, {L_WPHI}")
        a("s_nop 0")
        a(f"buffer_load_dwordx4 v{V_L16}, s[16:19], s49 offen lds")
    a(f"s_cmp_eq_u32 s{S_L}, 0")
    a("s_cbranch_scc0 l_w1")
    share_dma()
    for st in range(3): issue_w(a)
    issue_x(a); wphi_dma(); issue_x(a); issue_x(a)
    a("s_waitcnt vmcnt(31)")
    a("s_barrier")
    a("s_branch l_w2")
    a("l_w1:")
    share_dma()
    a("s_barrier")
    for st in range(3): issue_w(a)
    a("s_waitcnt vmcnt(18)")
    a("s_barrier")
    stamp(a, 1)
    issue_x(a); wphi_dma(); issue_x(a); issue_x(a)
    a("l_w2:")
    a("s_waitcnt vmcnt(9)")
    a(f"v_readfirstlane_b32 s80, v218")
    a("s_barrier")
    a(f"s_add_u32 s{S_N}, s80, 1")
    a("s_waitcnt vmcnt(4)")
    a("s_barrier")
    issue_stage(a, False)
    a(f"s_cmp_lt_u32 s{S_L}, 2")
    a("s_cbranch_scc0 l_nopub")
    a(f"s_cmp_eq_u32 s{S_R1}, 3")
    a("s_cbranch_scc0 l_nopub")
    a(f"v_lshlrev_b32 v5, 3, v{V_LANE}")
    a(f"v_add_u32 v6, {L_SH[0]}, v5")
    for w in range(4):
        a(f"ds_read_b64 {v(16+4*w,2)}, v6 offset:{w*2048}")
        a(f"ds_read_b64 {v(18+4*w,2)}, v6 offset:{w*2048+512}")
    a(f"s_and_b32 s39, s{S_L}, 1")
    a(f"s_mul_i32 s39, s39, {16*3072*4}")
    a(f"s_mul_i32 s43, s{S_MB}, {3072*4}")
    a("s_add_u32 s43, s43, s39")
    a(f"s_lshl_b32 s44, s{S_J}, 8")
    a("s_add_u32 s43, s43, s44")
    a(f"s_add_u32 s43, s43, {hex(WS_CSP)}")
    a(f"v_lshrrev_b32 v8, 5, v{V_LANE}")
    a(f"v_and_b32 v9, 31, v{V_LANE}")
    a("v_lshlrev_b32 v9, 3, v9")
    a("v_lshl_add_u32 v8, v8, 12, v9")
    a("v_add_u32 v9, 8192, v9")
    a("s_waitcnt lgkmcnt(0)")
    for w in range(1, 4):
        for k in range(4): a(f"v_add_f32 v{16+k}, v{16+k}, v{16+4*w+k}")
    a("buffer_store_dwordx2 v[16:17], v8, s[8:11], s43 offen sc1")
    a("s_mov_b64 exec, 0xffffffff")
    a("buffer_store_dwordx2 v[18:19], v9, s[8:11], s43 offen sc1")
    a("s_mov_b64 exec, -1")
    a("l_nopub:")
    a("s_mov_b32 s49, 12")
    a("l_loop:")
    a("s_waitcnt vmcnt(10)")
    a("s_barrier")
    a("s_cmp_eq_u32 s49, 11")
    a("s_cbranch_scc0 l_nosig")
    a(f"s_cmp_lt_u32 s{S_L}, 2")
    a("s_cbranch_scc0 l_nosig")
    a(f"s_cmp_eq_u32 s{S_R1}, 3")
    a("s_cbranch_scc0 l_nosig")
    csflag(a)
    signal(a, 38, S_MB)
    a("l_nosig:")
    issue_stage(a, False)
    a("s_sub_u32 s49, s49, 1")
    a("s_cmp_lg_u32 s49, 0")
    a("s_cbranch_scc1 l_loop")
    a(f"s_cmp_ge_u32 s{S_R1}, 2")
    a("s_cbranch_scc1 l_colf")
    a(f"s_lshl_b32 s38, s{S_MB}, 7")
    a(f"s_add_u32 s38, s38, s{S_FL}")
    a(f"s_sub_u32 s38, s38, {0x1800 - FL_X}")
    a("s_branch l_stf")
    a("l_colf:")
    csflag(a)
    a("l_stf:")
    a(f"v_and_b32 v250, 15, v{V_LANE}")
    a("v_lshlrev_b32 v250, 3, v250")
    a("buffer_load_dwordx2 v[248:249], v250, s[8:11], s38 offen sc1")
    a("s_waitcnt vmcnt(11)")
    a("s_barrier")
    a("s_waitcnt vmcnt(0)")
    a(f"s_not_b32 s71, s{S_N}")
    a(f"v_cmp_eq_u32 vcc, s{S_N}, v248")
    a("v_cmp_eq_u32 s[72:73], s71, v249")
    a("s_nop 0")
    a("s_and_b64 vcc, vcc, s[72:73]")
    a("s_cmp_eq_u64 vcc, exec")
    a("s_cbranch_scc1 l_colok")
    if not os.environ.get("NOCS"): poll(a, 38)
    a("l_colok:")
    a(f"s_cmp_ge_u32 s{S_R1}, 2")
    a("s_cbranch_scc1 l_cola")
    a(f"s_lshl_b32 s49, s{S_MB}, 7")
    a(f"s_lshl_b32 s39, s{S_R1}, 6")
    a("s_add_u32 s49, s49, s39")
    a("s_lshl_b32 s49, s49, 3")
    a(f"s_add_u32 s49, s49, s{S_ST}")
    a("s_mov_b32 s50, 16384")
    a(f"v_lshlrev_b32 v5, 3, v{V_LANE}")
    a("s_branch l_stl")
    a("l_cola:")
    a(f"s_sub_u32 s49, s{S_R1}, 2")
    a("s_lshl_b32 s49, s49, 1")
    a(f"v_lshrrev_b32 v5, 5, v{V_LANE}")
    a("v_add_u32 v5, s49, v5")
    a("v_min_u32 v5, 2, v5")
    a(f"v_and_b32 v6, 31, v{V_LANE}")
    a("v_lshlrev_b32 v6, 3, v6")
    a("v_lshl_add_u32 v7, v5, 8, v6")
    a("v_lshl_add_u32 v5, v5, 12, v6")
    a(f"s_and_b32 s39, s{S_L}, 1")
    a(f"s_mul_i32 s39, s39, {16*3072*4}")
    a(f"s_lshl_b32 s49, s{S_J}, 8")
    a("s_add_u32 s49, s49, s39")
    a(f"s_add_u32 s49, s49, {hex(WS_CSP)}")
    a(f"s_mov_b32 s50, {3072*4}")
    a("l_stl:")
    for i in range(16):
        a(f"buffer_load_dwordx2 {v(16+2*i,2)}, v5, s[8:11], s49 offen sc1")
        if i < 15: a("s_add_u32 s49, s49, s50")
    a("s_barrier")
    a("s_waitcnt vmcnt(0)")
    for i in range(1, 16):
        a(f"v_add_f32 v16, v16, v{16+2*i}")
        a(f"v_add_f32 v17, v17, v{17+2*i}")
    a(f"s_cmp_ge_u32 s{S_R1}, 2")
    a("s_cbranch_scc1 l_colw")
    a(f"v_mul_f32 v16, {f32(1.0/1024)}, v16")
    a(f"v_mul_f32 v17, {f32(1.0/1024)}, v17")
    a("v_fma_f32 v17, -v16, v16, v17")
    a("v_max_f32 v17, 0, v17")
    a(f"v_add_f32 v17, {f32(1e-5)}, v17")
    a("v_rsq_f32 v17, v17")
    a("v_sub_f32 v16, 0, v16")
    a(f"s_lshl_b32 s39, s{S_R1}, 8")
    a(f"v_lshlrev_b32 v5, 2, v{V_LANE}")
    a("v_add_u32 v5, s39, v5")
    a(f"v_add_u32 v5, {L_NM}, v5")
    a("ds_write_b32 v5, v16")
    a("ds_write_b32 v5, v17 offset:512")
    a("s_branch l_stw")
    a("l_colw:")
    a(f"v_add_u32 v7, s{S_CS}, v7")
    a("ds_write_b64 v7, v[16:17]")
    a("l_stw:")
    a("s_waitcnt lgkmcnt(0)")
    a("l_cole:")
    a("s_barrier")
    a(f"s_bitcmp1_b32 s{S_L}, 0")
    a("s_cbranch_scc1 l_B")
    wsrd(a, S_AWO, S_BWO, D_ * D_ * 2)
    a(f"s_lshl_b32 s41, s{S_R1}, 5")
    wo_voff(a)
    wo_dma(a, 41, 32)
    if True:
        a(f"s_cmp_eq_u32 s{S_L}, 0")
        a("s_cbranch_scc0 l_nowpf")
        a(f"s_and_b32 s41, s{S_MB}, 7")
        a("s_lshl_b32 s41, s41, 7")
        a(f"s_lshl_b32 s42, s{S_R1}, 5")
        a("s_add_u32 s41, s41, s42")
        w_prefetch(a, 41, 32, 16, 8)
        a("l_nowpf:")
    a("s_barrier")
    a("s_barrier")
    handoff(a, "l_hkv", FL_KV, S_J, S_MB)
    a("s_barrier")
    a("s_branch kv_reduce")
    a("l_B:")
    a("s_barrier")
    a("s_branch attention")
    a("m_entry:")
    a(f"s_lshr_b32 s{S_R1}, s{S_WAVE}, 1")
    a(f"s_and_b32 s{S_R2}, s{S_WAVE}, 1")
    srd(a, 16, 74, S_ * D_ * 2)
    a(f"s_lshl_b32 s50, s{S_MB}, 2")
    a(f"s_add_u32 s50, s50, s{S_WAVE}")
    a("s_lshl_b32 s51, s50, 16")
    a(f"s_lshl_b32 s39, s{S_J}, 7")
    a("s_add_u32 s53, s51, s39")
    a(f"v_and_b32 v156, 31, v{V_LANE}")
    a("v_lshlrev_b32 v156, 11, v156")
    a(f"v_lshrrev_b32 v157, 5, v{V_LANE}")
    a("v_lshl_add_u32 v156, v157, 4, v156")
    for i in range(4):
        a(f"buffer_load_dwordx4 {v(112+4*i,4)}, v156, s[16:19], s53 offen offset:{i*32}")
    m_setup(a)
    a(f"s_lshl_b32 s39, s{S_J}, 12")
    a("s_add_u32 s77, s51, s39")
    a(f"s_add_u32 s77, s77, s{S_XF}")
    a(f"s_lshl_b32 s39, s{S_J}, 14")
    a("s_lshl_b32 s78, s50, 8")
    a("s_add_u32 s78, s78, s39")
    a(f"s_add_u32 s78, s78, s{S_ST}")
    a("s_barrier")
    a("m_layer:")
    if not os.environ.get("NOCS"):
        a(f"s_cmp_lt_u32 s{S_L}, 2")
        a("s_cbranch_scc0 m_nocs")
        L_ = V_LANE
        a(f"v_lshrrev_b32 v140, 5, v{L_}")
        a(f"v_bfe_u32 v141, v{L_}, 2, 2")
        a("v_lshl_add_u32 v140, v140, 2, v141")
        a("v_lshlrev_b32 v140, 7, v140")
        a(f"v_bfe_u32 v141, v{L_}, 4, 1")
        a(f"v_bfe_u32 v142, v{L_}, 1, 1")
        a("v_lshl_add_u32 v141, v141, 1, v142")
        a(f"v_bfe_u32 v142, v{L_}, 3, 1")
        a("v_lshlrev_b32 v142, 2, v142")
        a("v_xor_b32 v141, v141, v142")
        a("v_lshl_add_u32 v140, v141, 4, v140")
        a(f"v_and_b32 v141, 1, v{L_}")
        a("v_lshl_add_u32 v140, v141, 3, v140")
        a(f"s_lshl_b32 s39, s{S_WAVE}, 11")
        a("v_add_u32 v140, s39, v140")
        a("v_xor_b32 v141, 64, v140")
        for p in range(3):
            for hd in range(2):
                a(f"v_add_u32 v142, {L_SH[p]}, v{140+hd}")
                for t in range(2):
                    a(f"ds_read_b64_tr_b16 {v(160+(p*2+hd)*4+2*t,2)}, v142 offset:{t*1024}")
        a(f"v_mov_b32 v143, {hex(ONES_BF16)}")
        for f in range(6): a(f"v_mov_b32 v{150+f}, 0")
        a("s_waitcnt lgkmcnt(0)")
        for q in range(4):
            for f in range(6): a(f"v_dot2c_f32_bf16 v{150+f}, v{160+f*4+q}, v143")
        a("s_nop 2")
        for f in range(6): a(f"v_mov_b32 v{184+f}, v{150+f}")
        a("s_nop 1")
        for f in range(6): a(f"v_permlane32_swap_b32 v{150+f}, v{184+f}")
        a("s_nop 1")
        for f in range(6): a(f"v_add_f32 v{150+f}, v{150+f}, v{184+f}")
        a(f"v_and_b32 v142, 31, v{L_}")
        a("v_lshlrev_b32 v142, 2, v142")
        a(f"s_lshl_b32 s39, s{S_WAVE}, 11")
        a(f"s_add_u32 s39, s39, {L_SH[0]}")
        a("v_add_u32 v142, s39, v142")
        for p in range(3):
            for hd in range(2): a(f"ds_write_b32 v142, v{150+p*2+hd} offset:{p*256+hd*128}")
        a("s_waitcnt lgkmcnt(0)")
        a("m_nocs:")
    def m_main(nat):
        t = "n" if nat else ""
        a("s_barrier")
        stamp(a, 2)
        p1_reads(a, FA, 0, range(8), nat)
        if nat:
            p1_sub(a, FA, FB, 1, nat=nat)
            p1_sub(a, FB, FA, 2, nat=nat)
            p1_sub(a, FA, FB, 3, nat=nat)
            a("s_waitcnt vmcnt(0)")
            p1_sub(a, FB, FA, 0, barrier=True, nat=nat)
            handoff(a, "m_sx0", FL_X, S_MB, S_J, layer_delta=-1, wave=0, do_poll=False)
            a("s_sub_u32 s49, s49, 1")
            if PFD: a("s_add_u32 s41, s41, 1")
        if PFD:
            a("s_cmp_ge_u32 s42, 3")
            a(f"s_cbranch_scc0 m_pf0{t}")
            a(f"s_cmp_lt_u32 s42, {PFD + (1 if nat else 0)}")
            a(f"s_cbranch_scc0 m_pf0{t}")
            m_w_prefetch(a, 42, "x")
            a(f"m_pf0{t}:")
        a(f"m_loop{t}:")
        if PFD:
            a("s_and_b32 s39, s41, 7")
            a("s_cmp_eq_u32 s39, s42")
            a(f"s_cbranch_scc0 m_pf1{t}")
            a("s_cmp_lt_u32 s41, 16")
            a(f"s_cbranch_scc0 m_pf1{t}")
            m_w_prefetch(a, 41, "y")
            a(f"m_pf1{t}:")
            a("s_add_u32 s41, s41, 1")
        p1_sub(a, FA, FB, 1, nat=nat)
        p1_sub(a, FB, FA, 2, nat=nat)
        p1_sub(a, FA, FB, 3, nat=nat)
        p1_sub(a, FB, FA, 0, barrier=True, nat=nat)
        a("s_sub_u32 s49, s49, 1")
        a("s_cmp_lg_u32 s49, 0")
        a(f"s_cbranch_scc1 m_loop{t}")
    a(f"s_cmp_eq_u32 s{S_L}, 0")
    a("s_cbranch_scc0 m_std")
    L_ = V_LANE
    a(f"v_and_b32 v5, 31, v{L_}")
    a("v_lshlrev_b32 v6, 7, v5")
    a(f"s_lshl_b32 s39, s{S_R1}, 13")
    a("v_add_u32 v6, s39, v6")
    a("v_bfe_u32 v5, v5, 1, 3")
    a(f"v_lshrrev_b32 v7, 5, v{L_}")
    for k in range(4):
        a(f"v_add_u32 v8, {2*k}, v7")
        a("v_xor_b32 v8, v8, v5")
        a(f"v_lshl_add_u32 v{VXN0+k}, v8, 4, v6")
        a(f"v_mov_b32 v{VXN+k}, v{VXN0+k}")
    a(f"v_lshrrev_b32 v5, 5, v{L_}")
    a("v_lshlrev_b32 v5, 9, v5")
    a(f"v_add_u32 v{VW0}, v{VW0}, v5")
    a(f"v_mov_b32 v{VW}, v{VW0}")
    for r in (5, 6, 7, 8): a(f"v_mov_b32 v{r}, 0")
    a(f"v_mov_b32 v150, {hex(ONES_BF16)}")
    a("s_waitcnt vmcnt(0)")
    a(f"v_readfirstlane_b32 s{S_N}, v218")
    for i in range(4):
        a(f"v_permlane32_swap_b32 v{112+4*i}, v{112+4*i+2}")
        a(f"v_permlane32_swap_b32 v{112+4*i+1}, v{112+4*i+3}")
    a(f"s_add_u32 s{S_N}, s{S_N}, 1")
    emit_xstore(a, 112, 150, 152, 156, 77, 78)
    m_main(True)
    a("s_branch m_done")
    a("m_std:")
    m_main(False)
    a("m_done:")
    a("s_waitcnt vmcnt(0) lgkmcnt(0)")
    stamp(a, 3)
    a(f"s_bitcmp1_b32 s{S_L}, 0")
    a("s_cbranch_scc1 m_B")
    m_layer_A(a)
    a("kv_reduce:")
    kv_reduce(a)
    a(f"s_cmp_lt_u32 s{S_WAVE}, 4")
    a("s_cbranch_scc0 l_A2")
    m_layer_A2(a)
    stamp(a, 7)
    a("s_branch m_f1")
    a("l_A2:")
    a("s_barrier")
    a("s_waitcnt vmcnt(0)")
    a("s_barrier")
    a("s_branch l_p3")
    a("m_B:")
    m_layer_B(a)
    stamp(a, 4)
    a("s_barrier")
    a("attention:")
    attention(a)
    stamp(a, 7)
    a(f"s_cmp_lt_u32 s{S_WAVE}, 4")
    a("s_cbranch_scc1 m_f1")
    a("s_barrier")
    a(f"s_sub_u32 s41, s{S_WAVE}, 4")
    a("s_lshl_b32 s41, s41, 3")
    a("s_add_u32 s41, s41, 32")
    wo_dma(a, 41, 8, vd=aVG)
    a("s_add_u32 s41, s41, 64")
    wo_dma(a, 41, 8, vd=aVG)
    a("s_barrier")
    a("l_p3:")
    a("s_waitcnt vmcnt(0)")
    a("s_barrier")
    a(f"s_add_u32 s{S_L}, s{S_L}, 1")
    a(f"s_cmp_lt_u32 s{S_L}, 4")
    a("s_cbranch_scc1 l_layer")
    a("s_endpgm")
    m_p3(a)
    kend(a, name)
    return a.text(), kernel_descriptor(name, 256), dict(name=name, grid=256, block=512, lds=MEGA_LDS)
```

```python
from common import *

S_MB, S_J, S_WAVE, S_R1, S_R2, S_L = 20, 21, 22, 23, 24, 25
S_AWQKV, S_BWQKV, S_AWO, S_BWO, S_AWPHI, S_OUT = 26, 28, 30, 32, 34, 36
S_XF, S_XFN, S_OF, S_KV, S_ST, S_STN, S_FL, S_ZP = 60, 61, 62, 63, 64, 65, 66, 67
S_L2E = 68
S_N, S_CS = 69, 70
V_LANE, V_L16 = 255, 254
STAGE = 40960
NST = 3
L_SCR0 = 131072
L_NM = L_SCR0
L_RS = L_NM + 512
L_CS = L_NM + 1024
L_WPHI = L_SCR0 + 3072
L_SCR = L_WPHI + 4096
L_SH = [L_SCR, L_SCR + 8192, L_SCR + 16384 + 1024]
MEGA_LDS = 163840
assert L_SH[2] + 8192 <= MEGA_LDS
SPIN = 1 << 16

class Ctx:
    pass

DBGST = os.environ.get("DBGST")
_dbg_n = [0]
def stamp(a, k):
    if DBGST:
        m = {2: 0, 3: 1, 7: 2, 11: 3}
        if k not in m and k != 0: return
        n = _dbg_n[0]; _dbg_n[0] += 1
        a("s_memrealtime s[96:97]")
        a("s_waitcnt lgkmcnt(0)")
        if k == 0:
            a("s_mov_b32 s95, s96")
            return
        a("s_cmp_eq_u32 s2, 0")
        a(f"s_cbranch_scc0 dbg{n}")
        a(f"s_cmp_eq_u32 s{S_WAVE}, 0")
        a(f"s_cbranch_scc0 dbg{n}")
        a("s_sub_u32 s96, s96, s95")
        a(f"s_lshl_b32 s97, s{S_L}, 4")
        a(f"s_add_u32 s97, s97, {m[k]*4}")
        a("s_and_b32 s97, s97, 63")
        a("s_mov_b64 s[98:99], exec")
        a("s_mov_b64 exec, 1")
        a("v_mov_b32 v253, s96")
        a("v_mov_b32 v252, s97")
        a("buffer_store_dword v253, v252, s[100:103]".replace("s[100:103]", "s[92:95]").replace("s[92:95]", "s[88:91]") + ", 0 offen")
        a("s_mov_b64 exec, s[98:99]")
        a(f"dbg{n}:")
        return
    if not STAMP: return
    a("s_memrealtime s[96:97]")
    a(f"s_lshl_b32 s91, s{S_L}, 4")
    a(f"s_add_u32 s91, s91, {k}")
    a("s_lshl_b32 s91, s91, 14")
    a("s_add_u32 s91, s91, s90")
    a("s_waitcnt lgkmcnt(0)")
    a("s_mov_b64 s[98:99], exec")
    a("s_mov_b64 exec, 1")
    a("v_mov_b32 v253, s96")
    a("v_mov_b32 v252, 0")
    a("buffer_store_dword v253, v252, s[8:11], s91 offen")
    a("s_mov_b64 exec, s[98:99]")

def layer_setup(a):
    if INPLACE:
        a(f"s_mov_b32 s{S_XF}, {hex(WS_XF)}")
        a(f"s_mov_b32 s{S_XFN}, {hex(WS_XF)}")
        a(f"s_mov_b32 s{S_OF}, {hex(WS_OF)}")
        a(f"s_mov_b32 s{S_ST}, {hex(WS_STATS)}")
        a(f"s_mov_b32 s{S_STN}, {hex(WS_STATS)}")
        a(f"s_mov_b32 s{S_ZP}, {hex(WS_ZP)}")
        a(f"s_bitcmp1_b32 s{S_L}, 0")
        a(f"s_cselect_b32 s{S_KV}, {hex(WS_KVF)}, {hex(WS_KVP)}".replace(f"{hex(WS_KVF)}, {hex(WS_KVP)}", "s38, s39")) if False else None
        a(f"s_mov_b32 s38, {hex(WS_KVF)}")
        a(f"s_mov_b32 s39, {hex(WS_KVP)}")
        a(f"s_bitcmp1_b32 s{S_L}, 0")
        a(f"s_cselect_b32 s{S_KV}, s38, s39")
    else:
        a(f"s_lshl_b32 s38, s{S_L}, 22")
        a(f"s_add_u32 s{S_XF}, s38, {hex(WS_XF)}" if WS_XF else f"s_mov_b32 s{S_XF}, s38")
        a(f"s_add_u32 s{S_XFN}, s{S_XF}, 0x400000")
        a(f"s_add_u32 s{S_OF}, s38, {hex(WS_OF)}")
        a(f"s_lshl_b32 s38, s{S_L}, 18")
        a(f"s_add_u32 s{S_ST}, s38, {hex(WS_STATS)}")
        a(f"s_add_u32 s{S_STN}, s{S_ST}, 0x40000")
        a(f"s_lshr_b32 s39, s{S_L}, 1")
        a(f"s_lshl_b32 s38, s39, 17")
        a(f"s_add_u32 s{S_ZP}, s38, {hex(WS_ZP)}")
        a(f"s_lshl_b32 s38, s39, 21")
        a(f"s_add_u32 s38, s38, {hex(WS_KVP)}")
        a(f"s_lshl_b32 s39, s39, 23")
        a(f"s_add_u32 s39, s39, {hex(WS_KVF)}")
        a(f"s_bitcmp1_b32 s{S_L}, 0")
        a(f"s_cselect_b32 s{S_KV}, s39, s38")
    a(f"s_mul_i32 s38, s{S_L}, 0x1800")
    a(f"s_add_u32 s{S_FL}, s38, {hex(WS_FLAGS + 0x1800)}")
    a(f"s_and_b32 s38, s{S_L}, 1")
    a("s_mul_i32 s38, s38, 768")
    a(f"s_add_u32 s{S_CS}, s38, {L_CS}")

def wsrd(a, pa, pb, nbytes):
    a(f"s_bitcmp1_b32 s{S_L}, 0")
    a(f"s_cselect_b32 s12, s{pb}, s{pa}")
    a(f"s_cselect_b32 s13, s{pb+1}, s{pa+1}")
    a("s_and_b32 s13, s13, 0xffff")
    a(f"s_mov_b32 s14, {hex(nbytes)}")
    a("s_mov_b32 s15, 0x20000")

def signal(a, sflag, sidx):
    a(f"s_lshl_b32 s39, s{sidx}, 3")
    a("v_mov_b32 v250, s39")
    a(f"v_mov_b32 v248, s{S_N}")
    a(f"v_not_b32 v249, v248")
    a("s_mov_b64 exec, 1")
    a(f"buffer_store_dwordx2 v[248:249], v250, s[8:11], s{sflag} offen sc1")
    a("s_mov_b64 exec, -1")

_poll_n = [0]
NPOLL = int(os.environ.get('NPOLL', '1'))
def poll(a, sflag):
    n = _poll_n[0]; _poll_n[0] += 1
    a(f"v_and_b32 v250, 15, v{V_LANE}")
    a("v_lshlrev_b32 v250, 3, v250")
    a(f"s_mov_b32 s39, {SPIN}")
    a(f"s_not_b32 s37x, s{S_N}".replace("s37x", "s71"))
    regs = [248, 246, 244][:NPOLL]
    for i, r in enumerate(regs):
        a(f"buffer_load_dwordx2 {v(r,2)}, v250, s[8:11], s{sflag} offen sc1")
        if i < NPOLL - 1: a("s_sleep 3")
    a(f"poll{n}:")
    for r in regs:
        a(f"s_waitcnt vmcnt({NPOLL-1})")
        a(f"v_cmp_eq_u32 vcc, s{S_N}, v{r}")
        a(f"v_cmp_eq_u32 s[72:73], s71, v{r+1}")
        a("s_nop 0")
        a("s_and_b64 vcc, vcc, s[72:73]")
        a("s_cmp_eq_u64 vcc, exec")
        a(f"s_cbranch_scc1 poll{n}_done")
        a(f"buffer_load_dwordx2 {v(r,2)}, v250, s[8:11], s{sflag} offen sc1")
    a("s_sub_u32 s39, s39, 1")
    a("s_cmp_lg_u32 s39, 0")
    a(f"s_cbranch_scc1 poll{n}")
    a(f"poll{n}_done:")

def handoff(a, lbl, ftype, sgroup, sidx, layer_delta=0, wave=4, do_signal=True, do_poll=True):
    a(f"s_cmp_eq_u32 s{S_WAVE}, {wave}")
    a(f"s_cbranch_scc0 {lbl}")
    a(f"s_lshl_b32 s38, s{sgroup}, 7")
    a(f"s_add_u32 s38, s38, s{S_FL}")
    off = ftype + layer_delta * 0x1800
    if off > 0: a(f"s_add_u32 s38, s38, {off}")
    if off < 0: a(f"s_sub_u32 s38, s38, {-off}")
    if do_signal: signal(a, 38, sidx)
    if do_poll: poll(a, 38)
    a(f"{lbl}:")

ACC = 0
FA, FB = 96, 116
VX, VW, VX0, VW0 = 136, 137, 138, 139
def acc(p, mi): return ACC + (p * 2 + mi) * 16

VXN, VXN0 = 140, 144
def p1_reads(a, fs, ks, which, nat=False):
    def rd(n):
        if nat:
            if n == 0: return f"ds_read_b128 {v(fs,4)}, v{VXN+ks}"
            if n == 3: return f"ds_read_b128 {v(fs+4,4)}, v{VXN+ks} offset:4096"
        if n == 0: return f"ds_read_b128 {v(fs,4)}, v{VX} offset:{ks*1024}"
        if n == 3: return f"ds_read_b128 {v(fs+4,4)}, v{VX} offset:{4096+ks*1024}"
        p, t = {1:(0,0),2:(0,1),4:(1,0),5:(1,1),6:(2,0),7:(2,1)}[n]
        return f"ds_read_b64_tr_b16 {v(fs+8+4*p+2*t,2)}, v{VW} offset:{16384+p*8192+ks*2048+t*(512 if nat else 1024)}"
    for n in which: a(rd(n))

def p1_sub(a, cur, nxt, nks, barrier=False, nat=False):
    x0, x1, wq, wk, wv = cur, cur+4, cur+8, cur+12, cur+16
    def mf(d, A, B):
        if os.environ.get("M16EXP"):
            a(f"{M16} {v(d,4)}, {v(A,4)}, {v(B,4)}, {v(d,4)}")
            a(f"{M16} {v(d+8,4)}, {v(A,4)}, {v(B,4)}, {v(d+8,4)}")
        else:
            a(f"{M32} {v(d,16)}, {v(A,4)}, {v(B,4)}, {v(d,16)}")
    if barrier:
        a("s_waitcnt lgkmcnt(0)")
        a("s_barrier")
        a(f"s_add_u32 s40, s40, {STAGE}")
        a(f"s_cmp_eq_u32 s40, {NST*STAGE}")
        a("s_cselect_b32 s40, 0, s40")
        if nat:
            for k in range(4): a(f"v_add_u32 v{VXN+k}, s40, v{VXN0+k}")
        else:
            a(f"v_add_u32 v{VX}, s40, v{VX0}")
        a(f"v_add_u32 v{VW}, s40, v{VW0}")
    else:
        a("s_waitcnt lgkmcnt(5)")
    mf(acc(0,0), wq, x0)
    p1_reads(a, nxt, nks, [0, 1], nat)
    if not barrier: a("s_waitcnt lgkmcnt(6)")
    mf(acc(0,1), wq, x1)
    p1_reads(a, nxt, nks, [2, 3], nat)
    if not barrier: a("s_waitcnt lgkmcnt(6)")
    mf(acc(1,0), wk, x0)
    p1_reads(a, nxt, nks, [4, 5], nat)
    mf(acc(1,1), wk, x1)
    p1_reads(a, nxt, nks, [6, 7], nat)
    if not barrier: a("s_waitcnt lgkmcnt(8)")
    mf(acc(2,0), x0, wv)
    mf(acc(2,1), x1, wv)

ROT = os.environ.get("ROT", "none")
def issue_x(a, fill=None):
    a("s_mul_i32 s41, s56, s82")
    a("s_add_u32 s41, s41, s58")
    a("s_add_u32 s43, s45, s47")
    a("s_add_u32 s56, s56, 1")
    a("s_and_b32 s56, s56, 15")
    for q in range(4):
        a(f"s_add_u32 m0, s43, {q*1024}")
        if q: a("s_add_u32 s41, s41, s81")
        else: a("s_nop 0")
        a(f"buffer_load_dwordx4 v{2 if q % 2 == 0 else 4}, s[84:87], s41 offen sc1 lds")
        if fill: fill()
    a(f"s_add_u32 s45, s45, {STAGE}")
    a(f"s_cmp_eq_u32 s45, {NST*STAGE}")
    a("s_cselect_b32 s45, 0, s45")

def issue_w(a, fill=None):
    a(f"s_mul_i32 s42, s57, {64*6144}")
    a("s_add_u32 s42, s42, s59")
    a("s_add_u32 s57, s57, 1")
    a("s_and_b32 s57, s57, 15")
    a("s_add_u32 s44, s46, s48")
    for p in range(3):
        for q in range(2):
            a(f"s_add_u32 m0, s44, {p*8192+q*1024}")
            a(f"s_add_u32 s43, s42, {p*2048+q*8*6144}")
            a("buffer_load_dwordx4 v3, s[12:15], s43 offen lds")
            if fill: fill()
    a(f"s_add_u32 s46, s46, {STAGE}")
    a(f"s_cmp_eq_u32 s46, {NST*STAGE}")
    a("s_cselect_b32 s46, 0, s46")

WPF = int(os.environ.get("WPF", "0"))
PFD = int(os.environ.get("PFD", "6"))
def m_w_prefetch(a, sstage, lbl):
    a(f"s_mul_i32 s43, s{sstage}, {64*6144}")
    a("s_add_u32 s43, s43, s45")
    n = 0
    for q in range(2):
        for p in range(3):
            a(f"s_add_u32 s44, s43, {q*8*6144 + p*2048}")
            a(f"buffer_load_dwordx4 {v(196+4*n,4)}, v220, s[12:15], s44 offen")
            n += 1
PFMOD = os.environ.get("PFMOD", "")
def w_prefetch(a, srow0, nrows, vdst, vtmp):
    a(f"s_bitcmp1_b32 s{S_L}, 0")
    a(f"s_cselect_b32 s16, s{S_AWQKV}, s{S_BWQKV}")
    a(f"s_cselect_b32 s17, s{S_AWQKV+1}, s{S_BWQKV+1}")
    a("s_and_b32 s17, s17, 0xffff")
    a(f"s_mov_b32 s18, {hex(D_*3*D_*2)}")
    a("s_mov_b32 s19, 0x20000")
    a(f"v_lshrrev_b32 v{vtmp}, 3, v{V_LANE}")
    a(f"v_mul_u32_u24 v{vtmp}, 6144, v{vtmp}")
    a(f"v_and_b32 v{vtmp+1}, 7, v{V_LANE}")
    a(f"v_lshl_add_u32 v{vtmp}, v{vtmp+1}, 4, v{vtmp}")
    a(f"s_mul_i32 s43, s{srow0}, 6144")
    a(f"s_lshl_b32 s44, s{S_J}, 7")
    a("s_add_u32 s43, s43, s44")
    n = 0
    for g in range(nrows // 8):
        for p in range(3):
            a(f"s_add_u32 s44, s43, {g*8*6144 + p*2048}")
            a(f"buffer_load_dwordx4 {v(vdst+4*n,4)}, v{vtmp}, s[16:19], s44 offen {PFMOD}")
            n += 1

def wo_voff(a, vd=5, t0=6, t1=7):
    a(f"v_lshrrev_b32 v{vd}, 3, v{V_LANE}")
    a(f"v_lshlrev_b32 v{t0}, 11, v{vd}")
    a(f"v_and_b32 v{vd}, 7, v{V_LANE}")
    a(f"v_bfe_u32 v{t1}, v{V_LANE}, 4, 1")
    a(f"v_lshlrev_b32 v{t1}, 2, v{t1}")
    a(f"v_xor_b32 v{vd}, v{vd}, v{t1}")
    a(f"v_lshl_add_u32 v{vd}, v{vd}, 4, v{t0}")

def wo_dma(a, first_piece_sgpr, n, vd=5):
    a(f"s_lshl_b32 s43, s{first_piece_sgpr}, 14")
    a(f"s_lshl_b32 s44, s{S_J}, 7")
    a("s_add_u32 s43, s43, s44")
    a(f"s_lshl_b32 s44, s{first_piece_sgpr}, 10")
    for i in range(n):
        a("s_mov_b32 m0, s44")
        a("s_add_u32 s44, s44, 1024")
        a(f"buffer_load_dwordx4 v{vd}, s[12:15], s43 offen lds")
        if i < n - 1: a("s_add_u32 s43, s43, 16384")

CSACC, CSF, CSV0, CSONE = 48, 56, 8, 10
def csflag(a):
    a(f"s_and_b32 s38, s{S_L}, 1")
    a(f"s_mul_i32 s38, s38, {FL_O - FL_KV}")
    a(f"s_lshl_b32 s39, s{S_J}, 7")
    a("s_add_u32 s38, s38, s39")
    a(f"s_add_u32 s38, s38, {hex(WS_FLAGS + FL_KV)}")

def colsum_setup(a):
    L_ = V_LANE
    a(f"v_lshrrev_b32 v11, 5, v{L_}")
    a(f"v_bfe_u32 v12, v{L_}, 2, 2")
    a("v_lshl_add_u32 v11, v11, 2, v12")
    a("v_lshlrev_b32 v11, 7, v11")
    a(f"v_bfe_u32 v12, v{L_}, 4, 1")
    a(f"v_bfe_u32 v13, v{L_}, 1, 1")
    a("v_lshl_add_u32 v12, v12, 1, v13")
    a(f"v_bfe_u32 v13, v{L_}, 3, 1")
    a("v_lshlrev_b32 v13, 2, v13")
    a("v_xor_b32 v12, v12, v13")
    a("v_lshl_add_u32 v11, v12, 4, v11")
    a(f"v_and_b32 v12, 1, v{L_}")
    a("v_lshl_add_u32 v11, v12, 3, v11")
    a(f"s_lshl_b32 s39, s{S_R1}, 11")
    a("s_add_u32 s39, s39, 16384")
    a(f"v_add_u32 v{CSV0}, s39, v11")
    a(f"v_xor_b32 v{CSV0+1}, 64, v{CSV0}")
    a(f"v_mov_b32 v{CSONE}, {hex(ONES_BF16)}")
    for i in range(6): a(f"v_mov_b32 v{CSACC+i}, 0")
    a("s_mov_b32 s51, 0")

def colsum_stage(a, lbl):
    a(f"s_cmp_lt_u32 s{S_L}, 2")
    a(f"s_cbranch_scc0 {lbl}")
    a(f"v_add_u32 v12, s51, v{CSV0}")
    a(f"v_add_u32 v13, s51, v{CSV0+1}")
    for p in range(3):
        for hd in range(2):
            for t in range(2):
                a(f"ds_read_b64_tr_b16 {v(CSF+(p*2+hd)*4+2*t,2)}, v{12+hd} offset:{p*8192+t*1024}")
    a(f"s_add_u32 s51, s51, {STAGE}")
    a(f"s_cmp_eq_u32 s51, {NST*STAGE}")
    a("s_cselect_b32 s51, 0, s51")
    a("s_waitcnt lgkmcnt(0)")
    for q in range(4):
        for f in range(6):
            a(f"v_dot2c_f32_bf16 v{CSACC+f}, v{CSF+f*4+q}, v{CSONE}")
    a(f"{lbl}:")

def colsum_reads(a):
    a(f"v_add_u32 v12, s51, v{CSV0}")
    a(f"v_add_u32 v13, s51, v{CSV0+1}")
    for p in range(3):
        for hd in range(2):
            for t in range(2):
                a(f"ds_read_b64_tr_b16 {v(CSF+(p*2+hd)*4+2*t,2)}, v{12+hd} offset:{p*8192+t*1024}")
    a(f"s_add_u32 s51, s51, {STAGE}")
    a(f"s_cmp_eq_u32 s51, {NST*STAGE}")
    a("s_cselect_b32 s51, 0, s51")

def colsum_filler(a):
    st = {"n": 0, "k": 0}
    ops = [(f, q) for q in range(4) for f in range(6)]
    def fill():
        st["n"] += 1
        if st["n"] < 3: return
        if st["n"] == 3: a("s_waitcnt lgkmcnt(0)")
        for _ in range(3):
            if st["k"] < 24:
                f, q = ops[st["k"]]; st["k"] += 1
                a(f"v_dot2c_f32_bf16 v{CSACC+f}, v{CSF+f*4+q}, v{CSONE}")
    return fill

def issue_stage(a, cs):
    if cs:
        colsum_reads(a)
        f = colsum_filler(a)
        issue_x(a, f); issue_w(a, f)
    else:
        issue_x(a); issue_w(a)

def colsum_finish(a, lbl):
    a(f"s_cmp_lt_u32 s{S_L}, 2")
    a(f"s_cbranch_scc0 {lbl}")
    a("s_nop 2")
    for f in range(6): a(f"v_mov_b32 v{56+f}, v{CSACC+f}")
    a("s_nop 1")
    for f in range(6): a(f"v_permlane32_swap_b32 v{CSACC+f}, v{56+f}")
    a("s_nop 1")
    for f in range(6): a(f"v_add_f32 v{CSACC+f}, v{CSACC+f}, v{56+f}")
    a(f"v_and_b32 v12, 31, v{V_LANE}")
    a("v_lshlrev_b32 v12, 2, v12")
    a(f"v_add_u32 v12, s{S_CS}, v12")
    a("s_mov_b64 exec, 0xffffffff")
    for p in range(3):
        for hd in range(2):
            a(f"ds_add_f32 v12, v{CSACC+p*2+hd} offset:{p*256+hd*128}")
    a("s_mov_b64 exec, -1")
    a("s_waitcnt lgkmcnt(0)")
    a(f"{lbl}:")

T1 = 158
def load_stats_T(a, dst_nm, dst_rs, t=148):
    a(f"v_and_b32 v{t}, 31, v{V_LANE}")
    a(f"s_lshl_b32 s39, s{S_R1}, 8")
    a(f"v_lshlrev_b32 v{t}, 2, v{t}")
    a(f"v_add_u32 v{t}, s39, v{t}")
    a(f"v_add_u32 v{t}, {L_NM}, v{t}")
    for mi in range(2):
        a(f"ds_read_b32 v{dst_nm+2*mi}, v{t} offset:{mi*128}")
        a(f"ds_read_b32 v{dst_rs+2*mi}, v{t} offset:{512+mi*128}")

def load_cs_T(a, p, dst, t=149):
    a(f"v_lshrrev_b32 v{t}, 5, v{V_LANE}")
    a(f"v_lshlrev_b32 v{t}, 4, v{t}")
    a(f"s_lshl_b32 s39, s{S_R2}, 7")
    a(f"s_add_u32 s39, s39, s{S_CS}")
    a(f"v_add_u32 v{t}, s39, v{t}")
    for g in range(4):
        a(f"ds_read_b128 {v(dst+4*g,4)}, v{t} offset:{p*256+g*32}")

def norm_T(a, ac, cs, nm, rs):
    for r in range(8):
        a(f"v_pk_fma_f32 {v(ac+2*r,2)}, {v(cs+2*r,2)}, {v(nm,2)}, {v(ac+2*r,2)} op_sel_hi:[1,0,1]")
    for r in range(8):
        a(f"v_pk_mul_f32 {v(ac+2*r,2)}, {v(ac+2*r,2)}, {v(rs,2)} op_sel_hi:[1,0]")

def pack(a, ac, dst):
    for r in range(8):
        a(f"v_cvt_pk_bf16_f32 v{dst+r}, v{ac+2*r}, v{ac+2*r+1}")

def load_stats_F(a, mi, dst_nm, dst_rs, t=144):
    a(f"v_lshrrev_b32 v{t}, 5, v{V_LANE}")
    a(f"v_lshlrev_b32 v{t}, 4, v{t}")
    a(f"s_lshl_b32 s39, s{S_R1}, 8")
    a(f"v_add_u32 v{t}, s39, v{t}")
    a(f"v_add_u32 v{t}, {L_NM}, v{t}")
    for g in range(4):
        a(f"ds_read_b128 {v(dst_nm+4*g,4)}, v{t} offset:{mi*128+g*32}")
        a(f"ds_read_b128 {v(dst_rs+4*g,4)}, v{t} offset:{512+mi*128+g*32}")

def load_cs_F(a, dst, t=145):
    a(f"v_and_b32 v{t}, 31, v{V_LANE}")
    a(f"v_lshlrev_b32 v{t}, 2, v{t}")
    a(f"s_lshl_b32 s39, s{S_R2}, 7")
    a(f"s_add_u32 s39, s39, s{S_CS}")
    a(f"v_add_u32 v{t}, s39, v{t}")
    a(f"ds_read_b32 v{dst}, v{t} offset:512")

def norm_F(a, ac, cs, nm, rs):
    for r in range(8):
        a(f"v_pk_fma_f32 {v(ac+2*r,2)}, {v(nm+2*r,2)}, {v(cs,2)}, {v(ac+2*r,2)} op_sel_hi:[1,0,1]")
    for r in range(8):
        a(f"v_pk_mul_f32 {v(ac+2*r,2)}, {v(ac+2*r,2)}, {v(rs+2*r,2)}")

def wphi_load(a, dst, t0, t1):
    a(f"v_lshrrev_b32 v{t0}, 5, v{V_LANE}")
    a(f"v_bfe_u32 v{t1}, v{V_LANE}, 2, 2")
    a(f"v_lshl_add_u32 v{t0}, v{t0}, 2, v{t1}")
    a(f"v_lshlrev_b32 v{t0}, 6, v{t0}")
    a(f"v_bfe_u32 v{t1}, v{V_LANE}, 4, 1")
    a(f"v_lshl_add_u32 v{t0}, v{t1}, 5, v{t0}")
    a(f"v_and_b32 v{t1}, 3, v{V_LANE}")
    a(f"v_lshl_add_u32 v{t1}, v{t1}, 3, v{t0}")
    a(f"s_lshl_b32 s39, s{S_R2}, 11")
    a(f"s_add_u32 s39, s39, {L_WPHI}")
    a(f"v_add_u32 v{t1}, s39, v{t1}")
    for t in range(2):
        for tp in range(2):
            a(f"ds_read_b64_tr_b16 {v(dst+4*t+2*tp,2)}, v{t1} offset:{(16*t+8*tp)*64}")

def softmax_pm(a, PD, EN, PT, T):
    sL = S_L2E
    mx, mn, t1, t2, sp, sn = T, T+1, T+2, T+3, T+4, T+6
    a(f"v_max3_f32 v{mx}, v{PD}, v{PD+1}, v{PD+2}")
    a(f"v_min3_f32 v{mn}, v{PD}, v{PD+1}, v{PD+2}")
    for i in range(3, 15, 2):
        a(f"v_max3_f32 v{mx}, v{mx}, v{PD+i}, v{PD+i+1}")
        a(f"v_min3_f32 v{mn}, v{mn}, v{PD+i}, v{PD+i+1}")
    a(f"v_max_f32 v{mx}, v{mx}, v{PD+15}")
    a(f"v_min_f32 v{mn}, v{mn}, v{PD+15}")
    a(f"v_mov_b32 v{t1}, v{mx}")
    a(f"v_mov_b32 v{t2}, v{mn}")
    a("s_nop 1")
    a(f"v_permlane32_swap_b32 v{mx}, v{t1}")
    a(f"v_permlane32_swap_b32 v{mn}, v{t2}")
    a("s_nop 1")
    a(f"v_max_f32 v{mx}, v{mx}, v{t1}")
    a(f"v_min_f32 v{mn}, v{mn}, v{t2}")
    a(f"v_mul_f32 v{mx}, s{sL}, v{mx}")
    a(f"v_mul_f32 v{mn}, s{sL}, v{mn}")
    for r in range(16): a(f"v_fma_f32 v{EN+r}, -v{PD+r}, s{sL}, v{mn}")
    for r in range(16): a(f"v_fma_f32 v{PD+r}, v{PD+r}, s{sL}, -v{mx}")
    for r in range(16): a(f"v_exp_f32 v{EN+r}, v{EN+r}")
    for r in range(16): a(f"v_exp_f32 v{PD+r}, v{PD+r}")
    a(f"v_pk_add_f32 {v(sn,2)}, {v(EN,2)}, {v(EN+2,2)}")
    for r in range(2, 8): a(f"v_pk_add_f32 {v(sn,2)}, {v(sn,2)}, {v(EN+2*r,2)}")
    a(f"v_pk_add_f32 {v(sp,2)}, {v(PD,2)}, {v(PD+2,2)}")
    for r in range(2, 8): a(f"v_pk_add_f32 {v(sp,2)}, {v(sp,2)}, {v(PD+2*r,2)}")
    a(f"v_add_f32 v{sn}, v{sn}, v{sn+1}")
    a(f"v_add_f32 v{sp}, v{sp}, v{sp+1}")
    a(f"v_mov_b32 v{t1}, v{sp}")
    a(f"v_mov_b32 v{t2}, v{sn}")
    a("s_nop 1")
    a(f"v_permlane32_swap_b32 v{sp}, v{t1}")
    a(f"v_permlane32_swap_b32 v{sn}, v{t2}")
    a("s_nop 1")
    a(f"v_add_f32 v{sp}, v{sp}, v{t1}")
    a(f"v_add_f32 v{sn}, v{sn}, v{t2}")
    a(f"v_rcp_f32 v{sp}, v{sp}")
    a(f"v_rcp_f32 v{sn}, v{sn}")
    a("s_nop 0")
    for r in range(8): a(f"v_pk_mul_f32 {v(PD+2*r,2)}, {v(PD+2*r,2)}, {v(sp,2)} op_sel_hi:[1,0]")
    for r in range(8): a(f"v_pk_mul_f32 {v(EN+2*r,2)}, {v(EN+2*r,2)}, {v(sn,2)} op_sel_hi:[1,0]")
    for r in range(8): a(f"v_cvt_pk_bf16_f32 v{PT+r}, v{PD+2*r}, v{PD+2*r+1}")
    for r in range(8): a(f"v_cvt_pk_bf16_f32 v{PT+8+r}, v{EN+2*r}, v{EN+2*r+1}")

NM, RS = 150, 154
CSV, CSQ, CSK, FNM, FRS = 162, 164, 180, 196, 212

def head_tb(a):
    a(f"s_lshl_b32 s50, s{S_J}, 1")
    a(f"s_add_u32 s50, s50, s{S_R2}")
    a(f"s_lshl_b32 s51, s{S_MB}, 2")
    a(f"s_lshl_b32 s39, s{S_R1}, 1")
    a("s_add_u32 s51, s51, s39")

def m_layer_A(a):
    PD, EN = 32, 48
    KVA_, TD, PF = 64, [96, 112], [128, 136]
    ONES = [144, 158]
    PT0, PT1, ZA = 164, 180, 180
    KT, WPH, I0, VF, T = 196, 212, 220, 228, 246
    load_stats_T(a, NM, RS)
    load_cs_T(a, 1, CSK)
    load_cs_F(a, CSV)
    load_stats_F(a, 0, FNM, FRS)
    head_tb(a)
    a("s_waitcnt lgkmcnt(0)")
    norm_F(a, acc(2, 0), CSV, FNM, FRS)
    load_stats_F(a, 1, FNM, FRS)
    pack(a, acc(2, 0), VF)
    for mi in range(2): norm_T(a, acc(1, mi), CSK, NM + 2*mi, RS + 2*mi)
    a("s_waitcnt lgkmcnt(0)")
    norm_F(a, acc(2, 1), CSV, FNM, FRS)
    pack(a, acc(2, 1), VF + 8)
    for mi in range(2): pack(a, acc(1, mi), KT + 8*mi)
    wphi_load(a, WPH, 148, 149)
    n4, hh, jj, val = 144, 145, 146, 147
    a(f"v_bfe_u32 v{n4}, v{V_LANE}, 2, 1")
    a(f"v_lshrrev_b32 v{hh}, 5, v{V_LANE}")
    a(f"v_cmp_eq_u32 vcc, v{n4}, v{hh}")
    a(f"v_bfe_u32 v{jj}, v{V_LANE}, 3, 1")
    a(f"v_lshlrev_b32 v{jj}, 2, v{jj}")
    a(f"v_and_b32 v{n4}, 3, v{V_LANE}")
    a(f"v_add_u32 v{jj}, v{jj}, v{n4}")
    a(f"v_and_b32 v{n4}, 1, v{jj}")
    a(f"v_lshlrev_b32 v{n4}, 4, v{n4}")
    a(f"v_mov_b32 v{val}, 0x3f80")
    a(f"v_lshlrev_b32 v{val}, v{n4}, v{val}")
    a(f"v_cndmask_b32 v{val}, 0, v{val}, vcc")
    a(f"v_lshrrev_b32 v{jj}, 1, v{jj}")
    a(f"v_bfe_u32 v{hh}, v{V_LANE}, 4, 1")
    a(f"v_lshl_add_u32 v{jj}, v{hh}, 2, v{jj}")
    for k in range(8):
        a(f"v_cmp_eq_u32 vcc, {k}, v{jj}")
        a("s_nop 1")
        a(f"v_cndmask_b32 v{I0+k}, 0, v{val}, vcc")
    a(f"v_cmp_eq_u32 vcc, 0, v{hh}")
    a(f"v_mov_b32 v{val}, {hex(ONES_BF16)}")
    a("s_nop 0")
    a(f"v_cndmask_b32 v148, 0, v{val}, vcc")
    a(f"v_sub_u32 v149, v{val}, v148")
    for k in range(4):
        a(f"v_mov_b32 v{ONES[0]+k}, v148")
        a(f"v_mov_b32 v{ONES[1]+k}, v149")
    a("s_waitcnt lgkmcnt(0)")
    for mi in range(2):
        a(f"{M32} {v(PD,16)}, {v(WPH,4)}, {v(KT+8*mi,4)}, 0")
        a(f"{M32} {v(PD,16)}, {v(WPH+4,4)}, {v(KT+8*mi+4,4)}, {v(PD,16)}")
        a("s_nop 11")
        softmax_pm(a, PD, EN, PT0, T)
        a("s_nop 1")
        for fb in range(2):
            a(f"{M32} {v(TD[fb],16)}, {v(PT0+8*fb,4)}, {v(I0,4)}, 0")
            a(f"{M32} {v(TD[fb],16)}, {v(PT0+8*fb+4,4)}, {v(I0+4,4)}, {v(TD[fb],16)}")
        a("s_nop 10")
        pack(a, TD[0], PF[0])
        pack(a, TD[1], PF[1])
        a("s_nop 1")
        for fb in range(2):
            for tt in range(2):
                c = "0" if (mi == 0 and tt == 0) else v(KVA_+16*fb,16)
                a(f"{M32} {v(KVA_+16*fb,16)}, {v(PF[fb]+4*tt,4)}, {v(VF+8*mi+4*tt,4)}, {c}")
        for fb in range(2):
            for tt in range(2):
                c = "0" if (mi == 0 and tt == 0 and fb == 0) else v(ZA,16)
                a(f"{M32} {v(ZA,16)}, {v(PF[fb]+4*tt,4)}, {v(ONES[fb],4)}, {c}")
    a("s_nop 15")
    stamp(a, 4)
    t = 148
    a(f"s_lshl_b32 s39, s{S_R2}, 13")
    a(f"s_add_u32 s39, s39, {L_SCR}")
    a(f"v_add_u32 v{t}, s39, v{V_L16}")
    a(f"v_lshrrev_b32 v149, 4, v{V_LANE}")
    a("v_lshlrev_b32 v149, 6, v149")
    a(f"s_lshl_b32 s39, s{S_R2}, 8")
    a(f"s_add_u32 s39, s39, {L_SCR+16384}")
    a("v_add_u32 v149, s39, v149")
    a(f"s_cmp_eq_u32 s{S_R1}, 0")
    a("s_cbranch_scc1 mA_red0")
    for q in range(8):
        a(f"ds_write_b128 v{t}, {v(KVA_+4*q,4)} offset:{q*1024}")
    a("s_mov_b32 exec_lo, 0x00010001")
    a("s_mov_b32 exec_hi, 0x00010001")
    for q in range(4):
        a(f"ds_write_b128 v149, {v(ZA+4*q,4)} offset:{q*16}")
    a("s_mov_b64 exec, -1")
    a("s_waitcnt lgkmcnt(0)")
    a("s_barrier")
    a("s_branch mA_red1")
    a("mA_red0:")
    a("s_barrier")
    for q in range(8):
        a(f"ds_read_b128 {v(96+4*q,4)}, v{t} offset:{q*1024}")
    for q in range(4):
        a(f"ds_read_b128 {v(128+4*q,4)}, v149 offset:{q*16}")
    a("s_waitcnt lgkmcnt(0)")
    for r in range(16): a(f"v_pk_add_f32 {v(KVA_+2*r,2)}, {v(KVA_+2*r,2)}, {v(96+2*r,2)}")
    for r in range(8): a(f"v_pk_add_f32 {v(ZA+2*r,2)}, {v(ZA+2*r,2)}, {v(128+2*r,2)}")
    for r in range(16): a(f"v_cvt_pk_bf16_f32 v{96+r}, v{KVA_+2*r}, v{KVA_+2*r+1}")
    a("s_lshl_b32 s52, s50, 4")
    a(f"s_add_u32 s52, s52, s{S_MB}")
    a("s_lshl_b32 s53, s52, 12")
    a(f"s_add_u32 s53, s53, s{S_KV}")
    for u in range(4):
        a(f"buffer_store_dwordx4 {v(96+4*u,4)}, v{V_L16}, s[8:11], s53 offen offset:{u*1024} sc1")
    a("s_lshl_b32 s53, s52, 8")
    a(f"s_add_u32 s53, s53, s{S_ZP}")
    a(f"v_bfe_u32 v148, v{V_LANE}, 4, 1")
    a("v_lshlrev_b32 v148, 7, v148")
    a(f"v_lshrrev_b32 v149, 5, v{V_LANE}")
    a("v_lshl_add_u32 v148, v149, 6, v148")
    a("s_mov_b32 exec_lo, 0x00010001")
    a("s_mov_b32 exec_hi, 0x00010001")
    for q in range(4):
        a(f"buffer_store_dwordx4 {v(ZA+4*q,4)}, v148, s[8:11], s53 offen offset:{q*16} sc1")
    a("s_mov_b64 exec, -1")
    a("s_waitcnt vmcnt(0)")
    a("mA_red1:")
    a("s_barrier")
    stamp(a, 5)
    load_cs_T(a, 0, CSQ)
    a("s_waitcnt lgkmcnt(0)")
    for mi in range(2): norm_T(a, acc(0, mi), CSQ, NM + 2*mi, RS + 2*mi)
    for mi in range(2): pack(a, acc(0, mi), KT + 8*mi)
    a("s_nop 1")
    for mi in range(2):
        a(f"{M32} {v(PD,16)}, {v(WPH,4)}, {v(KT+8*mi,4)}, 0")
        a(f"{M32} {v(PD,16)}, {v(WPH+4,4)}, {v(KT+8*mi+4,4)}, {v(PD,16)}")
        a("s_nop 11")
        softmax_pm(a, PD, EN, PT0 if mi == 0 else PT1, T)
    stamp(a, 6)
    a("s_barrier")

def kv_reduce(a):
    stamp(a, 12)
    a("v_lshrrev_b32 v144, 8, v253") if False else None
    a(f"s_lshr_b32 s39, s{S_WAVE}, 2")
    a("s_lshl_b32 s39, s39, 16")
    a(f"s_and_b32 s40, s{S_WAVE}, 3")
    a("s_lshl_b32 s40, s40, 10")
    a("s_add_u32 s39, s39, s40")
    a(f"s_lshl_b32 s41, s{S_J}, 17")
    a("s_add_u32 s39, s39, s41")
    a(f"s_add_u32 s39, s39, s{S_KV}")
    for i in range(16):
        a(f"buffer_load_dwordx4 {v(64+4*i,4)}, v{V_L16}, s[8:11], s39 offen sc1")
        if i < 15: a("s_add_u32 s39, s39, 4096")
    a(f"s_cmp_lt_u32 s{S_WAVE}, 2")
    a("s_cbranch_scc0 kvr_nz")
    a(f"s_lshl_b32 s39, s{S_J}, 1")
    a(f"s_add_u32 s39, s39, s{S_WAVE}")
    a("s_lshl_b32 s39, s39, 12")
    a(f"s_add_u32 s39, s39, s{S_ZP}")
    a(f"v_lshlrev_b32 v143, 2, v{V_LANE}")
    for i in range(16):
        a(f"buffer_load_dword v{144+i}, v143, s[8:11], s39 offen offset:{i*256} sc1")
    a("s_waitcnt vmcnt(0)")
    for i in range(1, 16): a(f"v_add_f32 v144, v144, v{144+i}")
    a("v_cvt_pk_bf16_f32 v144, v144, v144")
    a(f"v_lshrrev_b32 v145, 5, v{V_LANE}")
    a(f"v_bfe_u32 v146, v{V_LANE}, 3, 1")
    a("v_lshl_add_u32 v145, v145, 1, v146")
    a(f"v_bfe_u32 v146, v{V_LANE}, 4, 1")
    a("v_lshl_add_u32 v145, v145, 1, v146")
    a(f"v_and_b32 v146, 7, v{V_LANE}")
    a("v_lshl_add_u32 v145, v145, 3, v146")
    a("v_lshlrev_b32 v145, 1, v145")
    a(f"s_lshl_b32 s39, s{S_WAVE}, 7")
    a(f"s_add_u32 s39, s39, {L_SCR+8192}")
    a("v_add_u32 v145, s39, v145")
    a("ds_write_b16 v145, v144")
    a("kvr_nz:")
    a(f"v_mov_b32 v140, {hex(SEL_LO)}")
    a(f"v_mov_b32 v141, {hex(SEL_HI)}")
    for r in range(8): a(f"v_mov_b32 v{128+r}, 0")
    for i in range(16):
        a(f"s_waitcnt vmcnt({15-i})")
        for d in range(4):
            a(f"v_dot2c_f32_bf16 v{128+2*d}, v{64+4*i+d}, v140")
            a(f"v_dot2c_f32_bf16 v{128+2*d+1}, v{64+4*i+d}, v141")
    stamp(a, 13)
    a("s_nop 2")
    for d in range(4): a(f"v_cvt_pk_bf16_f32 v{136+d}, v{128+2*d}, v{128+2*d+1}")
    a(f"s_lshl_b32 s39, s{S_WAVE}, 10")
    a(f"s_add_u32 s39, s39, {L_SCR}")
    a(f"v_add_u32 v142, s39, v{V_L16}")
    a("ds_write_b128 v142, v[136:139]")
    a("s_waitcnt lgkmcnt(0)")
    a("s_barrier")

def m_layer_A2(a):
    stamp(a, 14)
    PT = [164, 180]
    KVF, ZF, NUM, DEN, T = 64, 80, 96, 112, 246
    a(f"s_lshl_b32 s39, s{S_R2}, 12")
    a(f"s_add_u32 s39, s39, {L_SCR}")
    a(f"v_add_u32 v148, s39, v{V_L16}")
    for u in range(4): a(f"ds_read_b128 {v(KVF+4*u,4)}, v148 offset:{u*1024}")
    a(f"v_lshrrev_b32 v149, 5, v{V_LANE}")
    a("v_lshlrev_b32 v149, 4, v149")
    a(f"s_lshl_b32 s39, s{S_R2}, 7")
    a(f"s_add_u32 s39, s39, {L_SCR+8192}")
    a("v_add_u32 v149, s39, v149")
    for u in range(4): a(f"ds_read_b128 {v(ZF+4*u,4)}, v149 offset:{u*32}")
    head_tb(a)
    a("s_lshl_b32 s52, s51, 16")
    a("s_lshl_b32 s53, s50, 11")
    a("s_add_u32 s52, s52, s53")
    a(f"s_add_u32 s52, s52, s{S_OF}")
    a("s_waitcnt lgkmcnt(0)")
    NUMS, DENS = [96, 128], [112, 144]
    for mi in range(2):
        for u in range(4):
            c = "0" if u == 0 else v(DENS[mi],16)
            a(f"{M32} {v(DENS[mi],16)}, {v(ZF+4*u,4)}, {v(PT[mi]+4*u,4)}, {c}")
        for u in range(4):
            c = "0" if u == 0 else v(NUMS[mi],16)
            a(f"{M32} {v(NUMS[mi],16)}, {v(KVF+4*u,4)}, {v(PT[mi]+4*u,4)}, {c}")
    for mi in range(2):
        a("s_nop 7" if mi == 1 else "s_nop 1")
        a(f"v_add_f32 v{T}, {f32(1e-6)}, v{DENS[mi]}")
        a(f"v_rcp_f32 v{T}, v{T}")
        a("s_nop 0")
        for r in range(8): a(f"v_pk_mul_f32 {v(NUMS[mi]+2*r,2)}, {v(NUMS[mi]+2*r,2)}, {v(T,2)} op_sel_hi:[1,0]")
        pack(a, NUMS[mi], 196 + 8*mi)
        a(f"s_add_u32 s53, s52, {mi*65536}")
        a(f"buffer_store_dwordx4 {v(196+8*mi,4)}, v{V_L16}, s[8:11], s53 offen sc1")
        a(f"buffer_store_dwordx4 {v(196+8*mi+4,4)}, v{V_L16}, s[8:11], s53 offen offset:1024 sc1")
    a("s_waitcnt vmcnt(0)")

def m_layer_B(a):
    RQ, PK = 158, 228
    load_stats_T(a, NM, RS)
    load_cs_T(a, 1, CSK)
    load_cs_F(a, CSV)
    load_stats_F(a, 0, FNM, FRS)
    load_cs_T(a, 0, CSQ)
    head_tb(a)
    a("s_lshl_b32 s52, s50, 6")
    a("s_add_u32 s52, s52, s51")
    a("s_lshl_b32 s52, s52, 12")
    a(f"s_add_u32 s52, s52, s{S_KV}")
    a(f"s_lshl_b32 s39, s{S_R2}, 16")
    a(f"s_lshl_b32 s40, s{S_R1}, 13")
    a("s_add_u32 s39, s39, s40")
    a(f"v_add_u32 v149, s39, v{V_L16}")
    a("s_waitcnt lgkmcnt(0)")
    for mi in range(2):
        norm_T(a, acc(1, mi), CSK, NM + 2*mi, RS + 2*mi)
        pk = PK + 8 * mi
        pack(a, acc(1, mi), pk)
        a(f"s_add_u32 s53, s52, {mi*4096}")
        a(f"buffer_store_dwordx4 {v(pk,4)}, v{V_L16}, s[8:11], s53 offen sc1")
        a(f"buffer_store_dwordx4 {v(pk+4,4)}, v{V_L16}, s[8:11], s53 offen offset:1024 sc1")
        a(f"ds_write_b128 v149, {v(pk,4)} offset:{mi*4096}")
        a(f"ds_write_b128 v149, {v(pk+4,4)} offset:{mi*4096+1024}")
    for mi in range(2):
        if mi == 1:
            load_stats_F(a, 1, FNM, FRS)
            a("s_waitcnt lgkmcnt(0)")
        norm_F(a, acc(2, mi), CSV, FNM, FRS)
        pk = PK + 8 * mi
        pack(a, acc(2, mi), pk)
        a(f"s_add_u32 s53, s52, {mi*4096}")
        a(f"buffer_store_dwordx4 {v(pk,4)}, v{V_L16}, s[8:11], s53 offen offset:2048 sc1")
        a(f"buffer_store_dwordx4 {v(pk+4,4)}, v{V_L16}, s[8:11], s53 offen offset:3072 sc1")
        a(f"ds_write_b128 v149, {v(pk,4)} offset:{mi*4096+2048}")
        a(f"ds_write_b128 v149, {v(pk+4,4)} offset:{mi*4096+3072}")
    c = (32 ** -0.5) * LOG2E
    for mi in range(2): a(f"v_mul_f32 v{RQ+2*mi}, {f32(c)}, v{RS+2*mi}")
    a(f"s_lshl_b32 s39, s{S_R1}, 2")
    a(f"s_add_u32 s39, s39, s{S_R2}")
    a("s_lshl_b32 s39, s39, 11")
    a(f"s_add_u32 s39, s39, {L_SCR}")
    a(f"v_add_u32 v148, s39, v{V_L16}")
    for mi in range(2):
        norm_T(a, acc(0, mi), CSQ, NM + 2*mi, RQ + 2*mi)
        pack(a, acc(0, mi), 196 + 8*mi)
        a(f"ds_write_b128 v148, {v(196+8*mi,4)} offset:{mi*4096}")
        a(f"ds_write_b128 v148, {v(196+8*mi+4,4)} offset:{mi*4096+1024}")
    a("s_waitcnt vmcnt(0) lgkmcnt(0)")

CH = 16384
APRIO = int(os.environ.get('APRIO', '0'))
ANOBAR = int(os.environ.get('ANOBAR', '0'))
aQ, aNEGM, aSA, aSB, aP, aO, aL, aSEL, aKVA, aKVB, aVA, aVG, aT0 = 0, 8, 24, 40, 56, 64, 80, 84, 88, 104, 120, 121, 123

def attention(a):
    Q, NEGM, SA, SB, P, O, L, SEL, KVA, KVB, VA, VG, T0 = aQ, aNEGM, aSA, aSB, aP, aO, aL, aSEL, aKVA, aKVB, aVA, aVG, aT0
    a(f"s_and_b32 s50, s{S_WAVE}, 1")
    a(f"s_lshr_b32 s51, s{S_WAVE}, 1")
    a("s_lshl_b32 s52, s50, 16")
    a(f"v_add_u32 v{VA}, s52, v{V_L16}")
    a(f"s_lshl_b32 s53, s{S_J}, 1")
    a("s_add_u32 s53, s53, s50")
    a("s_lshl_b32 s30, s53, 18") if False else None
    a("s_lshl_b32 s54, s53, 18")
    a(f"s_add_u32 s54, s54, s{S_KV}")
    a("s_lshl_b32 s55, s51, 12")
    a("s_add_u32 s57, s54, s55")
    a("s_add_u32 s55, s55, s52")
    a(f"s_add_u32 s58, s{S_MB}, 1")
    def dma(buf):
        a("s_and_b32 s58, s58, 15")
        a("s_lshl_b32 s56, s58, 14")
        a("s_add_u32 s56, s56, s57")
        a(f"s_add_u32 m0, s55, {buf*CH}")
        a("s_add_u32 s58, s58, 1")
        for i in range(4):
            a(f"buffer_load_dwordx4 v{V_L16}, s[8:11], s56 offen offset:{i*1024} sc1 lds")
    def wo_part(k):
        a(f"s_and_b32 s41, s{S_WAVE}, 3")
        a("s_lshl_b32 s41, s41, 2")
        a(f"s_lshr_b32 s42, s{S_WAVE}, 2")
        a("s_lshl_b32 s42, s42, 6")
        a("s_add_u32 s41, s41, s42")
        if k: a(f"s_add_u32 s41, s41, {16*k}")
        wo_dma(a, 41, 4, vd=VG)
    def rd(kv, off):
        for i in range(4): a(f"ds_read_b128 {v(kv+4*i,4)}, v{VA} offset:{off+i*1024}")
    handoff(a, "at_sig", FL_KV, S_J, S_MB, wave=0, do_poll=False)
    wsrd(a, S_AWO, S_BWO, D_ * D_ * 2)
    wo_voff(a, VG, T0, T0 + 1)
    a(f"s_lshl_b32 s39, s{S_WAVE}, 11")
    a(f"s_add_u32 s39, s39, {L_SCR}")
    a(f"v_add_u32 v{T0}, s39, v{V_L16}")
    a(f"ds_read_b128 {v(Q,4)}, v{T0}")
    a(f"ds_read_b128 {v(Q+4,4)}, v{T0} offset:1024")
    a(f"v_and_b32 v{T0}, 3, v{V_LANE}")
    a(f"v_bfe_u32 v{T0+1}, v{V_LANE}, 2, 1")
    a(f"v_bfe_u32 v{T0+2}, v{V_LANE}, 4, 1")
    a(f"v_xor_b32 v{T0+1}, v{T0+1}, v{T0+2}")
    a(f"v_or_b32 v{T0}, v{T0}, v{T0+1}")
    a(f"v_cmp_eq_u32 vcc, 0, v{T0}")
    a(f"v_mov_b32 v{T0+1}, {hex(ONES_BF16)}")
    a(f"v_mov_b32 v{T0+2}, 0")
    a(f"v_cndmask_b32 v{SEL}, v{T0+2}, v{T0+1}, vcc")
    for i in range(1, 4): a(f"v_mov_b32 v{SEL+i}, v{SEL}")
    for i in range(16): a(f"v_mov_b32 v{O+i}, 0")
    for i in range(4): a(f"v_mov_b32 v{L+i}, 0")
    for i in range(8): a(f"v_mov_b32 v{P+i}, 0")
    rd(KVA, 0)
    a("s_waitcnt lgkmcnt(0)")
    a(f"{M32} {v(SA,16)}, {v(KVA,4)}, {v(Q,4)}, 0")
    a(f"{M32} {v(SA,16)}, {v(KVA+4,4)}, {v(Q+4,4)}, {v(SA,16)}")
    rd(KVB, 4096)
    a("s_nop 7")
    a(f"v_max3_f32 v{T0}, v{SA}, v{SA+1}, v{SA+2}")
    for i in range(3, 15, 2): a(f"v_max3_f32 v{T0}, v{T0}, v{SA+i}, v{SA+i+1}")
    a(f"v_max_f32 v{T0}, v{T0}, v{SA+15}")
    a(f"v_mov_b32 v{T0+1}, v{T0}")
    a("s_nop 1")
    a(f"v_permlane32_swap_b32 v{T0}, v{T0+1}")
    a("s_nop 1")
    a(f"v_max_f32 v{T0}, v{T0}, v{T0+1}")
    a(f"v_sub_f32 v{NEGM}, 0, v{T0}")
    for i in range(1, 16): a(f"v_mov_b32 v{NEGM+i}, v{NEGM}")
    for i in range(16): a(f"v_add_f32 v{SA+i}, v{SA+i}, v{NEGM}")
    handoff(a, "at_pol", FL_KV, S_J, S_MB, wave=0, do_signal=False)
    a("s_barrier")
    stamp(a, 5)
    dma(1); dma(2)
    pn = [0]
    if APRIO == 1:
        a(f"s_cmp_ge_u32 s{S_WAVE}, 4")
        a("s_cbranch_scc0 at_np")
        a("s_setprio 1")
        a("at_np:")
    if APRIO == 3:
        a(f"s_cmp_lt_u32 s{S_WAVE}, 4")
        a("s_cbranch_scc0 at_np")
        a("s_setprio 1")
        a("at_np:")
    if APRIO == 2:
        a(f"s_cmp_ge_u32 s{S_WAVE}, 4")
        a("s_cselect_b64 vcc, -1, 0")
    def rounds(last):
        for r in range(16):
            cur, nxt = (SA, SB) if r % 2 == 0 else (SB, SA)
            kvc, kvn = (KVA, KVB) if r % 2 == 0 else (KVB, KVA)
            tK = (r + 2) % 16; tV = (r + 1) % 16
            doK = not (last and r >= 14)
            doQK = not (last and r == 15)
            e = lambda i: a(f"v_exp_f32 v{cur+i}, v{cur+i}")
            c = lambda i: a(f"v_cvt_pk_bf16_f32 v{P+i}, v{cur+2*i}, v{cur+2*i+1}")
            if APRIO == 2:
                a(f"s_setprio {1 if r % 2 == 0 else 0}") if False else None
                a(f"s_cbranch_vccz at_p{pn[0]}a")
                a(f"s_setprio {r % 2}")
                a(f"s_branch at_p{pn[0]}b")
                a(f"at_p{pn[0]}a:")
                a(f"s_setprio {1 - r % 2}")
                a(f"at_p{pn[0]}b:")
                pn[0] += 1
            if not (os.environ.get("AEXP") == "half" and r % 2 == 0 and (r + 2) % 4 != 0): a("s_waitcnt lgkmcnt(0)")
            if (r + 2) % 4 == 0 and not (last and r == 14):
                b = (r + 2) // 4
                a("s_waitcnt vmcnt(4)")
                if not ANOBAR: a("s_barrier")
                if last and b == 1 and WPF:
                    a(f"s_cmp_eq_u32 s{S_L}, 3")
                    a("s_cbranch_scc1 at_nopf")
                    a(f"s_and_b32 s41, s{S_MB}, 7")
                    a("s_lshl_b32 s41, s41, 7")
                    a(f"s_lshl_b32 s42, s{S_WAVE}, 4")
                    a("s_add_u32 s41, s41, s42")
                    w_prefetch(a, 41, 16, 128, 152)
                    a("at_nopf:")
                if not (last and b >= 2): dma((b + 2) % 4)
                if last and b == 2: wo_part(0)
                if last and b == 3: wo_part(1)
            if doQK: a(f"{M32} {v(nxt,16)}, {v(kvn,4)}, {v(Q,4)}, {v(NEGM,16)}")
            for i in range(0, 4): e(i)
            AEXP = os.environ.get("AEXP", "")
            if doK and AEXP != "nolds" and not (AEXP == "half" and r % 2 == 1):
                a(f"ds_read_b128 {v(kvc,4)}, v{VA} offset:{tK*4096}")
                a(f"ds_read_b128 {v(kvc+4,4)}, v{VA} offset:{tK*4096+1024}")
            if doQK: a(f"{M32} {v(nxt,16)}, {v(kvn+4,4)}, {v(Q+4,4)}, {v(nxt,16)}")
            for i in range(4, 8): e(i)
            a(f"{M32} {v(O,16)}, {v(kvn+12,4)}, {v(P+4,4)}, {v(O,16)}")
            for i in range(0, 4): c(i)
            e(8); e(9)
            if doQK and AEXP != "nolds" and not (AEXP == "half" and r % 2 == 1):
                a(f"ds_read_b128 {v(kvn+8,4)}, v{VA} offset:{tV*4096+2048}")
                a(f"ds_read_b128 {v(kvn+12,4)}, v{VA} offset:{tV*4096+3072}")
            if AEXP != "norow": a(f"{M16} {v(L,4)}, {v(SEL,4)}, {v(P+4,4)}, {v(L,4)}")
            e(10); e(11)
            a(f"{M32} {v(O,16)}, {v(kvc+8,4)}, {v(P,4)}, {v(O,16)}")
            for i in range(12, 16): e(i)
            if AEXP != "norow": a(f"{M16} {v(L,4)}, {v(SEL,4)}, {v(P,4)}, {v(L,4)}")
            for i in range(4, 8): c(i)
    a("s_mov_b32 s40, 3")
    a("at_loop:")
    rounds(False)
    a("s_sub_u32 s40, s40, 1")
    a("s_cmp_lg_u32 s40, 0")
    a("s_cbranch_scc1 at_loop")
    rounds(True)
    a("s_nop 1")
    a(f"{M32} {v(O,16)}, {v(KVB+12,4)}, {v(P+4,4)}, {v(O,16)}")
    a(f"{M16} {v(L,4)}, {v(SEL,4)}, {v(P+4,4)}, {v(L,4)}")
    if APRIO: a("s_setprio 0")
    stamp(a, 6)
    a("s_nop 15")
    a(f"v_mov_b32 v{T0}, 0")
    for i in range(16): a(f"v_fma_f32 v{T0}, v{O+i}, 0, v{T0}")
    a(f"v_cmp_eq_f32 vcc, 0, v{T0}")
    a(f"v_mov_b32 v{T0+1}, {f32(2.0**100)}")
    a(f"v_cmp_lt_f32 s[42:43], v{L}, v{T0+1}")
    a("s_nop 1")
    a("s_and_b64 vcc, vcc, s[42:43]")
    a("s_cmp_eq_u64 vcc, exec")
    a("s_cbranch_scc1 at_fin")
    for i in range(16): a(f"v_mov_b32 v{O+i}, 0")
    for i in range(4): a(f"v_mov_b32 v{L+i}, 0")
    MV = T0 + 2
    a(f"v_mov_b32 v{MV}, {f32(-3.0e38)}")
    a("s_mov_b32 s41, s54")
    a("s_mov_b32 s40, 64")
    a("at_fb:")
    for i in range(4):
        a(f"buffer_load_dwordx4 {v(KVA+4*i,4)}, v{V_L16}, s[8:11], s41 offen offset:{i*1024} sc1")
    a("s_waitcnt vmcnt(0)")
    a(f"{M32} {v(SA,16)}, {v(KVA,4)}, {v(Q,4)}, 0")
    a(f"{M32} {v(SA,16)}, {v(KVA+4,4)}, {v(Q+4,4)}, {v(SA,16)}")
    a("s_nop 15")
    a(f"v_max3_f32 v{T0}, v{SA}, v{SA+1}, v{SA+2}")
    for i in range(3, 15, 2): a(f"v_max3_f32 v{T0}, v{T0}, v{SA+i}, v{SA+i+1}")
    a(f"v_max_f32 v{T0}, v{T0}, v{SA+15}")
    a(f"v_mov_b32 v{T0+1}, v{T0}")
    a("s_nop 1")
    a(f"v_permlane32_swap_b32 v{T0}, v{T0+1}")
    a("s_nop 1")
    a(f"v_max3_f32 v{T0}, v{T0}, v{T0+1}, v{MV}")
    a(f"v_sub_f32 v{T0+1}, v{MV}, v{T0}")
    a(f"v_exp_f32 v{T0+1}, v{T0+1}")
    a(f"v_mov_b32 v{MV}, v{T0}")
    for i in range(16): a(f"v_sub_f32 v{SA+i}, v{SA+i}, v{T0}")
    for i in range(16): a(f"v_exp_f32 v{SA+i}, v{SA+i}")
    for i in range(16): a(f"v_mul_f32 v{O+i}, v{O+i}, v{T0+1}")
    for i in range(4): a(f"v_mul_f32 v{L+i}, v{L+i}, v{T0+1}")
    for i in range(8): a(f"v_cvt_pk_bf16_f32 v{P+i}, v{SA+2*i}, v{SA+2*i+1}")
    a("s_nop 1")
    a(f"{M32} {v(O,16)}, {v(KVA+8,4)}, {v(P,4)}, {v(O,16)}")
    a(f"{M16} {v(L,4)}, {v(SEL,4)}, {v(P,4)}, {v(L,4)}")
    a(f"{M32} {v(O,16)}, {v(KVA+12,4)}, {v(P+4,4)}, {v(O,16)}")
    a(f"{M16} {v(L,4)}, {v(SEL,4)}, {v(P+4,4)}, {v(L,4)}")
    a("s_nop 15")
    a("s_add_u32 s41, s41, 4096")
    a("s_sub_u32 s40, s40, 1")
    a("s_cmp_lg_u32 s40, 0")
    a("s_cbranch_scc1 at_fb")
    a("at_fin:")
    a(f"v_rcp_f32 v{T0}, v{L}")
    a("s_nop 0")
    for i in range(16): a(f"v_mul_f32 v{O+i}, v{O+i}, v{T0}")
    for i in range(8): a(f"v_cvt_pk_bf16_f32 v{P+i}, v{O+2*i}, v{O+2*i+1}")
    a(f"s_lshl_b32 s39, s{S_MB}, 2")
    a("s_add_u32 s39, s39, s51")
    a("s_lshl_b32 s39, s39, 16")
    a("s_lshl_b32 s40, s53, 11")
    a("s_add_u32 s39, s39, s40")
    a(f"s_add_u32 s39, s39, s{S_OF}")
    a(f"buffer_store_dwordx4 {v(P,4)}, v{V_L16}, s[8:11], s39 offen sc1")
    a(f"buffer_store_dwordx4 {v(P+4,4)}, v{V_L16}, s[8:11], s39 offen offset:1024 sc1")
    a("s_waitcnt vmcnt(0)")


def attention2(a):
    QA, QB, NA, NB, SA, SB, PA, PB, OA, OB, LA, LB, SEL = 0, 8, 16, 32, 48, 64, 80, 88, 96, 112, 128, 132, 136
    KS, VS = [140, 148], [156, 164]
    VA, VG, T0 = 172, 173, 174
    a(f"s_and_b32 s50, s{S_WAVE}, 1")
    a(f"s_lshr_b32 s51, s{S_WAVE}, 1")
    a("s_lshl_b32 s52, s50, 16")
    a(f"s_lshr_b32 s59, s{S_WAVE}, 2")
    a("s_lshl_b32 s39, s59, 13")
    a("s_add_u32 s39, s39, s52")
    a(f"v_add_u32 v{VA}, s39, v{V_L16}")
    a(f"s_lshl_b32 s53, s{S_J}, 1")
    a("s_add_u32 s53, s53, s50")
    a("s_lshl_b32 s54, s53, 18")
    a(f"s_add_u32 s54, s54, s{S_KV}")
    a("s_lshl_b32 s55, s51, 12")
    a("s_add_u32 s57, s54, s55")
    a("s_add_u32 s55, s55, s52")
    a(f"s_add_u32 s58, s{S_MB}, 1")
    def dma(buf):
        a("s_and_b32 s58, s58, 15")
        a("s_lshl_b32 s56, s58, 14")
        a("s_add_u32 s56, s56, s57")
        a(f"s_add_u32 m0, s55, {buf*CH}")
        a("s_add_u32 s58, s58, 1")
        for i in range(4):
            a(f"buffer_load_dwordx4 v{V_L16}, s[8:11], s56 offen offset:{i*1024} sc1 lds")
    def wo_part(k):
        a(f"s_and_b32 s41, s{S_WAVE}, 3")
        a("s_lshl_b32 s41, s41, 2")
        a(f"s_lshr_b32 s42, s{S_WAVE}, 2")
        a("s_lshl_b32 s42, s42, 6")
        a("s_add_u32 s41, s41, s42")
        if k: a(f"s_add_u32 s41, s41, {16*k}")
        wo_dma(a, 41, 4, vd=VG)
    handoff(a, "at_sig", FL_KV, S_J, S_MB, wave=0, do_poll=False)
    wsrd(a, S_AWO, S_BWO, D_ * D_ * 2)
    wo_voff(a, VG, T0, T0 + 1)
    a(f"s_bfe_u32 s49, s{S_WAVE}, 0x10001")
    a("s_lshl_b32 s39, s49, 2")
    a("s_add_u32 s39, s39, s50")
    a("s_lshl_b32 s39, s39, 11")
    a(f"s_add_u32 s39, s39, {L_SCR}")
    a(f"v_add_u32 v{T0}, s39, v{V_L16}")
    a(f"ds_read_b128 {v(QA,4)}, v{T0}")
    a(f"ds_read_b128 {v(QA+4,4)}, v{T0} offset:1024")
    a(f"ds_read_b128 {v(QB,4)}, v{T0} offset:4096")
    a(f"ds_read_b128 {v(QB+4,4)}, v{T0} offset:5120")
    a(f"v_add_u32 v{T0+1}, s52, v{V_L16}")
    a(f"ds_read_b128 {v(KS[1],4)}, v{T0+1}")
    a(f"ds_read_b128 {v(KS[1]+4,4)}, v{T0+1} offset:1024")
    a(f"ds_read_b128 {v(KS[0],4)}, v{VA}")
    a(f"ds_read_b128 {v(KS[0]+4,4)}, v{VA} offset:1024")
    a(f"v_and_b32 v{T0}, 3, v{V_LANE}")
    a(f"v_bfe_u32 v{T0+1}, v{V_LANE}, 2, 1")
    a(f"v_bfe_u32 v{T0+2}, v{V_LANE}, 4, 1")
    a(f"v_xor_b32 v{T0+1}, v{T0+1}, v{T0+2}")
    a(f"v_or_b32 v{T0}, v{T0}, v{T0+1}")
    a(f"v_cmp_eq_u32 vcc, 0, v{T0}")
    a(f"v_mov_b32 v{T0+1}, {hex(ONES_BF16)}")
    a(f"v_mov_b32 v{T0+2}, 0")
    a(f"v_cndmask_b32 v{SEL}, v{T0+2}, v{T0+1}, vcc")
    for i in range(1, 4): a(f"v_mov_b32 v{SEL+i}, v{SEL}")
    for i in range(32): a(f"v_mov_b32 v{OA+i}, 0")
    for i in range(8): a(f"v_mov_b32 v{LA+i}, 0")
    for i in range(8): a(f"v_mov_b32 v{PB+i}, 0")
    for i in range(8): a(f"v_mov_b32 v{VS[1]+i}, 0")
    a("s_waitcnt lgkmcnt(0)")
    for S_, Q_ in ((SA, QA), (SB, QB)):
        a(f"{M32} {v(S_,16)}, {v(KS[1],4)}, {v(Q_,4)}, 0")
        a(f"{M32} {v(S_,16)}, {v(KS[1]+4,4)}, {v(Q_+4,4)}, {v(S_,16)}")
    a("s_nop 9")
    for S_, N_, t in ((SA, NA, T0), (SB, NB, T0 + 2)):
        if S_ == SB: pass
        a(f"v_max3_f32 v{t}, v{S_}, v{S_+1}, v{S_+2}")
        for i in range(3, 15, 2): a(f"v_max3_f32 v{t}, v{t}, v{S_+i}, v{S_+i+1}")
        a(f"v_max_f32 v{t}, v{t}, v{S_+15}")
        a(f"v_mov_b32 v{t+1}, v{t}")
        a("s_nop 1")
        a(f"v_permlane32_swap_b32 v{t}, v{t+1}")
        a("s_nop 1")
        a(f"v_max_f32 v{t}, v{t}, v{t+1}")
        a(f"v_sub_f32 v{N_}, 0, v{t}")
        for i in range(1, 16): a(f"v_mov_b32 v{N_+i}, v{N_}")
    a("s_nop 1")
    a(f"{M32} {v(SA,16)}, {v(KS[0],4)}, {v(QA,4)}, {v(NA,16)}")
    a(f"{M32} {v(SA,16)}, {v(KS[0]+4,4)}, {v(QA+4,4)}, {v(SA,16)}")
    handoff(a, "at_pol", FL_KV, S_J, S_MB, wave=0, do_signal=False)
    a("s_barrier")
    stamp(a, 5)
    dma(1); dma(2)
    a("s_nop 7")
    def off(n): return ((n // 2) % 4) * CH + (n % 2) * 4096
    def phases(last):
        for n in range(8):
            for sx in range(2):
                if sx == 0:
                    cur, Pc, oth, Qo, No, Kq, Oo, Lo, Po, Vp = SA, PA, SB, QB, NB, KS[n % 2], OB, LB, PB, VS[(n + 1) % 2]
                    doQK = True
                else:
                    cur, Pc, oth, Qo, No, Kq, Oo, Lo, Po, Vp = SB, PB, SA, QA, NA, KS[(n + 1) % 2], OA, LA, PA, VS[n % 2]
                    doQK = not (last and n == 7)
                e = lambda i: a(f"v_exp_f32 v{cur+i}, v{cur+i}")
                c = lambda i: a(f"v_cvt_pk_bf16_f32 v{Pc+i}, v{cur+2*i}, v{cur+2*i+1}")
                if sx == 1: a("s_waitcnt lgkmcnt(0)")
                if sx == 0 and n % 2 == 1 and not (last and n == 7):
                    b = (n + 1) // 2
                    a("s_waitcnt vmcnt(4)")
                    a("s_barrier")
                    if not (last and b >= 2): dma((b + 2) % 4)
                    if last and b == 2: wo_part(0)
                    if last and b == 3: wo_part(1)
                if doQK: a(f"{M32} {v(oth,16)}, {v(Kq,4)}, {v(Qo,4)}, {v(No,16)}")
                for i in range(0, 4): e(i)
                if sx == 0:
                    if not (last and n == 7):
                        a(f"ds_read_b128 {v(KS[(n+1)%2],4)}, v{VA} offset:{off(n+1)}")
                        a(f"ds_read_b128 {v(KS[(n+1)%2]+4,4)}, v{VA} offset:{off(n+1)+1024}")
                    a(f"ds_read_b128 {v(VS[n%2],4)}, v{VA} offset:{off(n)+2048}")
                    a(f"ds_read_b128 {v(VS[n%2]+4,4)}, v{VA} offset:{off(n)+3072}")
                if doQK: a(f"{M32} {v(oth,16)}, {v(Kq+4,4)}, {v(Qo+4,4)}, {v(oth,16)}")
                for i in range(4, 8): e(i)
                a(f"{M32} {v(Oo,16)}, {v(Vp,4)}, {v(Po,4)}, {v(Oo,16)}")
                for i in range(0, 4): c(i)
                e(8); e(9)
                a(f"{M16} {v(Lo,4)}, {v(SEL,4)}, {v(Po,4)}, {v(Lo,4)}")
                e(10); e(11)
                a(f"{M32} {v(Oo,16)}, {v(Vp+4,4)}, {v(Po+4,4)}, {v(Oo,16)}")
                for i in range(12, 16): e(i)
                a(f"{M16} {v(Lo,4)}, {v(SEL,4)}, {v(Po+4,4)}, {v(Lo,4)}")
                for i in range(4, 8): c(i)
    a("s_mov_b32 s40, 3")
    a("at_loop:")
    phases(False)
    a("s_sub_u32 s40, s40, 1")
    a("s_cmp_lg_u32 s40, 0")
    a("s_cbranch_scc1 at_loop")
    phases(True)
    a("s_nop 1")
    a(f"{M32} {v(OB,16)}, {v(VS[1],4)}, {v(PB,4)}, {v(OB,16)}")
    a(f"{M16} {v(LB,4)}, {v(SEL,4)}, {v(PB,4)}, {v(LB,4)}")
    a(f"{M32} {v(OB,16)}, {v(VS[1]+4,4)}, {v(PB+4,4)}, {v(OB,16)}")
    a(f"{M16} {v(LB,4)}, {v(SEL,4)}, {v(PB+4,4)}, {v(LB,4)}")
    a("s_barrier")
    stamp(a, 6)
    a("s_lshl_b32 s39, s49, 1")
    a("s_add_u32 s41, s39, s59")
    a("s_xor_b32 s42, s41, 1")
    a("s_mul_i32 s42, s42, 4608")
    a("s_mul_i32 s43, s41, 4608")
    a("s_add_u32 s44, s52, 32768")
    a("s_add_u32 s42, s42, s44")
    a("s_add_u32 s43, s43, s44")
    a(f"v_add_u32 v{T0}, s42, v{V_L16}")
    a(f"v_add_u32 v{T0+1}, s43, v{V_L16}")
    a(f"v_lshlrev_b32 v{T0+2}, 2, v{V_LANE}")
    a(f"v_add_u32 v{T0+3}, s43, v{T0+2}")
    a(f"v_add_u32 v{T0+2}, s42, v{T0+2}")
    a("s_nop 4")
    a("s_cmp_eq_u32 s59, 0")
    a("s_cbranch_scc0 at_k1")
    for q in range(4): a(f"ds_write_b128 v{T0}, {v(OB+4*q,4)} offset:{q*1024}")
    a(f"ds_write_b32 v{T0+2}, v{LB} offset:4096")
    a("s_branch at_k2")
    a("at_k1:")
    for q in range(4): a(f"ds_write_b128 v{T0}, {v(OA+4*q,4)} offset:{q*1024}")
    a(f"ds_write_b32 v{T0+2}, v{LA} offset:4096")
    for i in range(16): a(f"v_mov_b32 v{OA+i}, v{OB+i}")
    a(f"v_mov_b32 v{LA}, v{LB}")
    for i in range(8): a(f"v_mov_b32 v{QA+i}, v{QB+i}")
    a("at_k2:")
    a("s_waitcnt lgkmcnt(0)")
    a("s_barrier")
    for q in range(4): a(f"ds_read_b128 {v(SA+4*q,4)}, v{T0+1} offset:{q*1024}")
    a(f"ds_read_b32 v{SB}, v{T0+3} offset:4096")
    a("s_waitcnt lgkmcnt(0)")
    for r in range(8): a(f"v_pk_add_f32 {v(OA+2*r,2)}, {v(OA+2*r,2)}, {v(SA+2*r,2)}")
    a(f"v_add_f32 v{LA}, v{LA}, v{SB}")
    O, L, Q, P, KVA = OA, LA, QA, PA, KS[0]
    a(f"v_mov_b32 v{T0}, 0")
    for i in range(16): a(f"v_fma_f32 v{T0}, v{O+i}, 0, v{T0}")
    a(f"v_cmp_eq_f32 vcc, 0, v{T0}")
    a(f"v_mov_b32 v{T0+1}, {f32(2.0**100)}")
    a(f"v_cmp_lt_f32 s[42:43], v{L}, v{T0+1}")
    a("s_nop 1")
    a("s_and_b64 vcc, vcc, s[42:43]")
    a("s_cmp_eq_u64 vcc, exec")
    a("s_cbranch_scc1 at_fin")
    KF = 140
    for i in range(16): a(f"v_mov_b32 v{O+i}, 0")
    for i in range(4): a(f"v_mov_b32 v{L+i}, 0")
    MV = T0 + 2
    a(f"v_mov_b32 v{MV}, {f32(-3.0e38)}")
    a("s_mov_b32 s45, s54")
    a("s_mov_b32 s40, 64")
    a("at_fb:")
    for i in range(4):
        a(f"buffer_load_dwordx4 {v(KF+4*i,4)}, v{V_L16}, s[8:11], s45 offen offset:{i*1024} sc1")
    a("s_waitcnt vmcnt(0)")
    a(f"{M32} {v(SA,16)}, {v(KF,4)}, {v(Q,4)}, 0")
    a(f"{M32} {v(SA,16)}, {v(KF+4,4)}, {v(Q+4,4)}, {v(SA,16)}")
    a("s_nop 15")
    a(f"v_max3_f32 v{T0}, v{SA}, v{SA+1}, v{SA+2}")
    for i in range(3, 15, 2): a(f"v_max3_f32 v{T0}, v{T0}, v{SA+i}, v{SA+i+1}")
    a(f"v_max_f32 v{T0}, v{T0}, v{SA+15}")
    a(f"v_mov_b32 v{T0+1}, v{T0}")
    a("s_nop 1")
    a(f"v_permlane32_swap_b32 v{T0}, v{T0+1}")
    a("s_nop 1")
    a(f"v_max3_f32 v{T0}, v{T0}, v{T0+1}, v{MV}")
    a(f"v_sub_f32 v{T0+1}, v{MV}, v{T0}")
    a(f"v_exp_f32 v{T0+1}, v{T0+1}")
    a(f"v_mov_b32 v{MV}, v{T0}")
    for i in range(16): a(f"v_sub_f32 v{SA+i}, v{SA+i}, v{T0}")
    for i in range(16): a(f"v_exp_f32 v{SA+i}, v{SA+i}")
    for i in range(16): a(f"v_mul_f32 v{O+i}, v{O+i}, v{T0+1}")
    for i in range(4): a(f"v_mul_f32 v{L+i}, v{L+i}, v{T0+1}")
    for i in range(8): a(f"v_cvt_pk_bf16_f32 v{P+i}, v{SA+2*i}, v{SA+2*i+1}")
    a("s_nop 1")
    a(f"{M32} {v(O,16)}, {v(KF+8,4)}, {v(P,4)}, {v(O,16)}")
    a(f"{M16} {v(L,4)}, {v(SEL,4)}, {v(P,4)}, {v(L,4)}")
    a(f"{M32} {v(O,16)}, {v(KF+12,4)}, {v(P+4,4)}, {v(O,16)}")
    a(f"{M16} {v(L,4)}, {v(SEL,4)}, {v(P+4,4)}, {v(L,4)}")
    a("s_nop 15")
    a("s_add_u32 s45, s45, 4096")
    a("s_sub_u32 s40, s40, 1")
    a("s_cmp_lg_u32 s40, 0")
    a("s_cbranch_scc1 at_fb")
    a("at_fin:")
    a(f"v_rcp_f32 v{T0}, v{L}")
    a("s_nop 0")
    for i in range(16): a(f"v_mul_f32 v{O+i}, v{O+i}, v{T0}")
    for i in range(8): a(f"v_cvt_pk_bf16_f32 v{P+i}, v{O+2*i}, v{O+2*i+1}")
    a(f"s_lshl_b32 s39, s{S_MB}, 2")
    a("s_add_u32 s39, s39, s41")
    a("s_lshl_b32 s39, s39, 16")
    a("s_lshl_b32 s40, s53, 11")
    a("s_add_u32 s39, s39, s40")
    a(f"s_add_u32 s39, s39, s{S_OF}")
    a(f"buffer_store_dwordx4 {v(P,4)}, v{V_L16}, s[8:11], s39 offen sc1")
    a(f"buffer_store_dwordx4 {v(P+4,4)}, v{V_L16}, s[8:11], s39 offen offset:1024 sc1")
    a("s_waitcnt vmcnt(0)")

def m_setup(a):
    layer_setup(a)
    a(f"s_lshl_b32 s39, s{S_R1}, 13")
    a(f"v_add_u32 v{VX0}, s39, v{V_L16}")
    L_ = V_LANE
    a(f"v_lshrrev_b32 v5, 5, v{L_}")
    a(f"v_bfe_u32 v6, v{L_}, 2, 2")
    a("v_lshl_add_u32 v5, v5, 2, v6")
    a("v_lshlrev_b32 v5, 7, v5")
    a(f"v_bfe_u32 v6, v{L_}, 4, 1")
    a(f"v_bfe_u32 v7, v{L_}, 1, 1")
    a("v_lshl_add_u32 v6, v6, 1, v7")
    a(f"s_lshl_b32 s39, s{S_R2}, 2")
    a("v_add_u32 v6, s39, v6")
    a(f"v_bfe_u32 v7, v{L_}, 3, 1")
    a("v_lshlrev_b32 v7, 2, v7")
    a("v_xor_b32 v6, v6, v7")
    a("v_lshl_add_u32 v5, v6, 4, v5")
    a(f"v_and_b32 v6, 1, v{L_}")
    a(f"v_lshl_add_u32 v{VW0}, v6, 3, v5")
    a(f"v_mov_b32 v{VX}, v{VX0}")
    a(f"v_mov_b32 v{VW}, v{VW0}")
    if PFD:
        wsrd(a, S_AWQKV, S_BWQKV, D_ * 3 * D_ * 2)
        a(f"v_lshrrev_b32 v220, 3, v{V_LANE}")
        a("v_mul_u32_u24 v220, 6144, v220")
        a(f"v_and_b32 v221, 7, v{V_LANE}")
        a("v_lshl_add_u32 v220, v221, 4, v220")
        a(f"s_mul_i32 s45, s{S_WAVE}, {16*6144}")
        a(f"s_lshl_b32 s39, s{S_J}, 7")
        a("s_add_u32 s45, s45, s39")
        a(f"s_and_b32 s42, s{S_MB}, 7")
        a(f"s_mov_b32 s41, {PFD}")
    for i in range(96): a(f"v_mov_b32 v{ACC+i}, 0")
    a("s_mov_b32 s40, 0")
    a("s_mov_b32 s49, 16")

def emit_xstore(a, PK, ONE, S1, VA, sx, sst):
    for i in range(4):
        a(f"buffer_store_dwordx4 {v(PK+4*i,4)}, v{V_L16}, s[8:11], s{sx} offen offset:{i*1024} sc1")
    S2, S3, S4 = S1 + 1, S1 + 2, S1 + 3
    a(f"v_mov_b32 v{S1}, 0")
    a(f"v_mov_b32 v{S2}, 0")
    for r in range(16):
        a(f"v_dot2c_f32_bf16 v{S1}, v{PK+r}, v{ONE}")
        a(f"v_dot2c_f32_bf16 v{S2}, v{PK+r}, v{PK+r}")
    a("s_nop 2")
    a(f"v_mov_b32 v{S3}, v{S1}")
    a(f"v_mov_b32 v{S4}, v{S2}")
    a("s_nop 1")
    a(f"v_permlane32_swap_b32 v{S1}, v{S3}")
    a(f"v_permlane32_swap_b32 v{S2}, v{S4}")
    a("s_nop 1")
    a(f"v_add_f32 v{S1}, v{S1}, v{S3}")
    a(f"v_add_f32 v{S2}, v{S2}, v{S4}")
    a(f"v_and_b32 v{VA}, 31, v{V_LANE}")
    a(f"v_lshlrev_b32 v{VA}, 3, v{VA}")
    a("s_mov_b64 exec, 0xffffffff")
    a(f"buffer_store_dwordx2 {v(S1,2)}, v{VA}, s[8:11], s{sst} offen sc1")
    a("s_mov_b64 exec, -1")

def m_p3(a):
    a("m_f1:")
    a("s_barrier")
    handoff(a, "m_ho_s", FL_O, S_MB, S_J, wave=0, do_poll=False)
    ACC3, AR, WF, RES = 0, 32, [96, 104], 112
    VWA = [128, 129, 130, 131]
    L_ = V_LANE
    a(f"s_lshl_b32 s50, s{S_MB}, 2")
    a(f"s_add_u32 s50, s50, s{S_WAVE}")
    a("s_lshl_b32 s51, s50, 16")
    a(f"s_lshl_b32 s39, s{S_J}, 12")
    a("s_add_u32 s52, s51, s39")
    a(f"s_add_u32 s53, s52, s{S_XF}")
    for i in range(4):
        a(f"buffer_load_dwordx4 {v(RES+4*i,4)}, v{V_L16}, s[8:11], s53 offen offset:{i*1024} sc1")
    a(f"s_add_u32 s54, s51, s{S_OF}")
    seq = list(range(0, 16)) + list(range(32, 48)) + list(range(16, 32)) + list(range(48, 64))
    NR = int(os.environ.get("NR", "16"))
    def areg(idx):
        slot = idx % NR
        return AR + 4 * slot if slot < 16 else 144 + 4 * (slot - 16)
    def aload(idx):
        ks = seq[idx]
        if ks % 4 == 0: a(f"s_add_u32 s55, s54, {(ks//4)*4096}")
        a(f"buffer_load_dwordx4 {v(areg(idx),4)}, v{V_L16}, s[8:11], s55 offen offset:{(ks%4)*1024} sc1 {os.environ.get('ANT','')}")
    a(f"v_lshrrev_b32 v132, 5, v{L_}")
    a(f"v_bfe_u32 v133, v{L_}, 2, 2")
    a("v_lshl_add_u32 v132, v132, 2, v133")
    a("v_lshlrev_b32 v132, 7, v132")
    a(f"v_bfe_u32 v133, v{L_}, 4, 1")
    a(f"v_bfe_u32 v134, v{L_}, 1, 1")
    a("v_lshl_add_u32 v133, v133, 1, v134")
    a(f"v_bfe_u32 v134, v{L_}, 3, 1")
    a("v_lshlrev_b32 v134, 2, v134")
    a("v_xor_b32 v133, v133, v134")
    a("v_lshl_add_u32 v132, v133, 4, v132")
    a(f"v_and_b32 v133, 1, v{L_}")
    a(f"v_lshl_add_u32 v{VWA[0]}, v133, 3, v132")
    a(f"v_xor_b32 v{VWA[1]}, 64, v{VWA[0]}")
    a(f"v_add_u32 v{VWA[2]}, 0x10000, v{VWA[0]}")
    a(f"v_add_u32 v{VWA[3]}, 0x10000, v{VWA[1]}")
    for i in range(32): a(f"v_mov_b32 v{ACC3+i}, 0")
    def wreads(idx, cb):
        fs = WF[idx % 2]; ks = seq[idx]
        half, kk = ks // 32, ks % 32
        for t in range(2):
            a(f"ds_read_b64_tr_b16 {v(fs+4*cb+2*t,2)}, v{VWA[half*2+cb]} offset:{kk*2048+t*1024}")
    handoff(a, "m_ho_p", FL_O, S_MB, S_J, wave=0, do_signal=False)
    a("s_barrier")
    stamp(a, 8)
    for idx in range(NR): aload(idx)
    wreads(0, 0); wreads(0, 1)
    stamp(a, 9)
    for ks in range(64):
        fs = WF[ks % 2]; A = areg(ks)
        vm = min(NR - 1, 63 - ks)
        a(f"s_waitcnt vmcnt({vm}) lgkmcnt(2)")
        a(f"{M32} {v(ACC3,16)}, {v(fs,4)}, {v(A,4)}, {v(ACC3,16)}")
        if ks == 31: a("s_barrier")
        if ks < 63:
            wreads(ks + 1, 0)
            a("s_waitcnt lgkmcnt(2)")
        else:
            a("s_waitcnt lgkmcnt(0)")
        a(f"{M32} {v(ACC3+16,16)}, {v(fs+4,4)}, {v(A,4)}, {v(ACC3+16,16)}")
        if ks < 63: wreads(ks + 1, 1)
        if ks + NR < 64: aload(ks + NR)
    stamp(a, 10)
    T = 136
    a(f"v_mov_b32 v{T}, {hex(SEL_LO)}")
    a(f"v_mov_b32 v{T+1}, {hex(SEL_HI)}")
    a(f"v_mov_b32 v{T+2}, {hex(ONES_BF16)}")
    a("s_nop 7")
    for cb in range(2):
        for r in range(8):
            a(f"v_dot2c_f32_bf16 v{ACC3+16*cb+2*r}, v{RES+8*cb+r}, v{T}")
            a(f"v_dot2c_f32_bf16 v{ACC3+16*cb+2*r+1}, v{RES+8*cb+r}, v{T+1}")
    a("s_nop 2")
    PK = RES
    for cb in range(2):
        for r in range(8):
            a(f"v_cvt_pk_bf16_f32 v{PK+8*cb+r}, v{ACC3+16*cb+2*r}, v{ACC3+16*cb+2*r+1}")
    a(f"s_cmp_eq_u32 s{S_L}, 3")
    a("s_cbranch_scc1 p3_final")
    a(f"s_add_u32 s53, s52, s{S_XFN}")
    a(f"s_lshl_b32 s39, s{S_J}, 14")
    a("s_lshl_b32 s40, s50, 8")
    a("s_add_u32 s39, s39, s40")
    a(f"s_add_u32 s54, s39, s{S_STN}")
    emit_xstore(a, PK, T + 2, 140, 144, 53, 54)
    a(f"s_add_u32 s{S_L}, s{S_L}, 1")
    m_setup(a)
    a("s_waitcnt vmcnt(0)")
    a("s_barrier")
    if STAMP: a(f"s_sub_u32 s{S_L}, s{S_L}, 1")
    stamp(a, 11)
    if STAMP: a(f"s_add_u32 s{S_L}, s{S_L}, 1")
    handoff(a, "m_hx", FL_X, S_MB, S_J, layer_delta=-1, wave=0)
    a("s_barrier")
    a("s_branch m_layer")
    a("p3_final:")
    for i in range(4):
        a(f"v_permlane32_swap_b32 v{PK+4*i}, v{PK+4*i+2}")
        a(f"v_permlane32_swap_b32 v{PK+4*i+1}, v{PK+4*i+3}")
    a(f"v_and_b32 v144, 31, v{L_}")
    a("v_lshlrev_b32 v144, 11, v144")
    a(f"v_lshrrev_b32 v145, 5, v{L_}")
    a("v_lshl_add_u32 v144, v145, 4, v144")
    a(f"s_lshl_b32 s39, s{S_J}, 7")
    a("s_add_u32 s39, s39, s51")
    srd(a, 16, S_OUT, S_ * D_ * 2)
    for i in range(4):
        a(f"buffer_store_dwordx4 {v(PK+4*i,4)}, v144, s[16:19], s39 offen offset:{i*32} {os.environ.get('OUTMOD','')}")
    a("s_waitcnt vmcnt(0)")
    stamp(a, 11)
    a("s_endpgm")

def gen_mega(name="mega_kernel"):
    a = Asm()
    kstart(a, name, 256)
    a(f"s_load_dwordx2 s[4:5], s[0:1], {KA_WS}")
    a(f"s_load_dwordx2 s[{S_AWQKV}:{S_AWQKV+1}], s[0:1], {KA_AWQKV}")
    a(f"s_load_dwordx2 s[{S_BWQKV}:{S_BWQKV+1}], s[0:1], {KA_BWQKV}")
    a(f"s_load_dwordx2 s[{S_AWO}:{S_AWO+1}], s[0:1], {KA_AWO}")
    a(f"s_load_dwordx2 s[{S_BWO}:{S_BWO+1}], s[0:1], {KA_BWO}")
    a(f"s_load_dwordx2 s[{S_AWPHI}:{S_AWPHI+1}], s[0:1], {KA_AWPHI}")
    a(f"s_load_dwordx2 s[{S_OUT}:{S_OUT+1}], s[0:1], {KA_OUT}")
    a("v_lshrrev_b32 v1, 6, v0")
    a(f"v_and_b32 v{V_LANE}, 63, v0")
    a(f"v_lshlrev_b32 v{V_L16}, 4, v{V_LANE}")
    a("s_and_b32 s38, s2, 7")
    a("s_lshr_b32 s39, s2, 3")
    a(f"v_readfirstlane_b32 s{S_WAVE}, v1")
    a(f"s_and_b32 s{S_MB}, s38, 1")
    a(f"s_lshl_b32 s{S_MB}, s{S_MB}, 3")
    a("s_and_b32 s40, s39, 7")
    a(f"s_add_u32 s{S_MB}, s{S_MB}, s40")
    a(f"s_lshr_b32 s{S_J}, s38, 1")
    a(f"s_lshl_b32 s{S_J}, s{S_J}, 2")
    a("s_lshr_b32 s40, s39, 3")
    a(f"s_add_u32 s{S_J}, s{S_J}, s40")
    a(f"s_mov_b32 s{S_L}, 0")
    a(f"s_mov_b32 s{S_L2E}, {f32(LOG2E)}")
    a(f"s_load_dwordx2 s[74:75], s[0:1], {KA_AX}")
    if STAMP:
        a("s_lshl_b32 s90, s2, 6")
        a(f"s_lshl_b32 s91, s{S_WAVE}, 2")
        a("s_add_u32 s90, s90, s91")
        a(f"s_add_u32 s90, s90, {hex(WS_STAMP)}")
    a("s_waitcnt lgkmcnt(0)")
    srd(a, 8, 4, WS_SIZE)
    if DBGST:
        a(f"s_load_dwordx2 s[92:93], s[0:1], {KA_DBG}")
        a("s_waitcnt lgkmcnt(0)")
        srd(a, 88, 92, 256)
    stamp(a, 0)
    if os.environ.get("CODEPF"):
        a("s_getpc_b64 s[76:77]")
        a("cpf_here:")
        a("s_add_u32 s76, s76, 0")
        a("s_and_b32 s76, s76, 0xffffff00")
        a("s_and_b32 s77, s77, 0xffff")
        a("s_mov_b32 s78, 0x9000")
        a("s_mov_b32 s79, 0x20000")
        a("s_lshr_b32 s39, s2, 3")
        a("s_lshl_b32 s39, s39, 11")
        a(f"buffer_load_dwordx4 v[200:203], v{V_L16}, s[76:79], s39 offen")
        a(f"buffer_load_dwordx4 v[204:207], v{V_L16}, s[76:79], s39 offen offset:1024")
    a("v_mov_b32 v217, 0")
    a(f"s_mov_b32 s39, {hex(WS_FLAGS + 4*0x1800 + FL_O)}")
    a("buffer_load_dword v218, v217, s[8:11], s39 offen sc1")
    a(f"s_cmp_lt_u32 s{S_WAVE}, 4")
    a("s_cbranch_scc1 m_entry")
    a(f"s_sub_u32 s{S_R1}, s{S_WAVE}, 4")
    a("l_layer:")
    layer_setup(a)
    wsrd(a, S_AWQKV, S_BWQKV, D_ * 3 * D_ * 2)
    a(f"v_mov_b32 v2, v{V_L16}")
    a(f"v_lshrrev_b32 v5, 3, v{V_LANE}")
    a("v_mul_u32_u24 v3, 6144, v5")
    a(f"v_and_b32 v6, 7, v{V_LANE}")
    a(f"v_bfe_u32 v7, v{V_LANE}, 4, 1")
    a("v_lshlrev_b32 v7, 2, v7")
    a("v_xor_b32 v6, v6, v7")
    a("v_lshl_add_u32 v3, v6, 4, v3")
    a(f"s_mul_i32 s59, s{S_R1}, {16*6144}")
    a(f"s_lshl_b32 s39, s{S_J}, 7")
    a("s_add_u32 s59, s59, s39")
    if ROT == "mb":
        a(f"s_mov_b32 s56, s{S_MB}")
    elif ROT == "mb2":
        a(f"s_lshl_b32 s56, s{S_MB}, 1")
        a("s_and_b32 s56, s56, 15")
    elif ROT == "mbj":
        a(f"s_add_u32 s56, s{S_MB}, s{S_J}")
        a("s_and_b32 s56, s56, 15")
    else:
        a("s_mov_b32 s56, 0")
    a("s_mov_b32 s57, s56")
    a(f"s_lshl_b32 s47, s{S_R1}, 12")
    a(f"s_lshl_b32 s48, s{S_R1}, 11")
    a("s_add_u32 s48, s48, 16384")
    a("s_mov_b32 s45, 0")
    a("s_mov_b32 s46, 0")
    a(f"s_lshl_b32 s58, s{S_MB}, 2")
    a(f"s_add_u32 s58, s58, s{S_R1}")
    a("s_lshl_b32 s58, s58, 16")
    a(f"s_cmp_eq_u32 s{S_L}, 0")
    a("s_cbranch_scc1 l_xrow")
    a(f"s_add_u32 s58, s58, s{S_XF}")
    srd(a, 84, 4, WS_SIZE)
    a("s_mov_b32 s81, 1024")
    a("s_mov_b32 s82, 4096")
    a(f"v_mov_b32 v4, v{V_L16}")
    a("s_branch l_xdone")
    a("l_xrow:")
    srd(a, 84, 74, S_ * D_ * 2)
    a("s_mov_b32 s81, 16384")
    a("s_mov_b32 s82, 128")
    a(f"v_lshrrev_b32 v5, 3, v{V_LANE}")
    a("v_lshlrev_b32 v5, 11, v5")
    a(f"v_and_b32 v6, 7, v{V_LANE}")
    a(f"v_lshrrev_b32 v7, 4, v{V_LANE}")
    a("v_xor_b32 v6, v6, v7")
    a("v_lshl_add_u32 v2, v6, 4, v5")
    a("v_xor_b32 v4, 64, v2")
    a("l_xdone:")
    def share_dma():
        if os.environ.get("NOSHDMA"): return
        a(f"s_cmp_lt_u32 s{S_L}, 2")
        n = _poll_n[0]; _poll_n[0] += 1
        a(f"s_cbranch_scc0 l_nosh{n}")
        a(f"s_mul_i32 s42, s{S_MB}, {64*6144}")
        a("s_add_u32 s42, s42, s59")
        a(f"s_lshl_b32 s44, s{S_R1}, 11")
        for p in range(3):
            for q in range(2):
                a(f"s_add_u32 m0, s44, {L_SH[p] + q*1024}")
                a(f"s_add_u32 s43, s42, {p*2048 + q*8*6144}")
                a("buffer_load_dwordx4 v3, s[12:15], s43 offen lds")
        a(f"l_nosh{n}:")
    def wphi_dma():
        srd(a, 16, S_AWPHI, 32*32*32*2)
        a(f"s_lshl_b32 s49, s{S_J}, 12")
        a(f"s_lshl_b32 s39, s{S_R1}, 10")
        a("s_add_u32 s49, s49, s39")
        a(f"s_add_u32 m0, s39, {L_WPHI}")
        a("s_nop 0")
        a(f"buffer_load_dwordx4 v{V_L16}, s[16:19], s49 offen lds")
    a(f"s_cmp_eq_u32 s{S_L}, 0")
    a("s_cbranch_scc0 l_w1")
    share_dma()
    for st in range(3): issue_w(a)
    issue_x(a); wphi_dma(); issue_x(a); issue_x(a)
    a("s_waitcnt vmcnt(31)")
    a("s_barrier")
    a("s_branch l_w2")
    a("l_w1:")
    share_dma()
    a("s_barrier")
    for st in range(3): issue_w(a)
    a("s_waitcnt vmcnt(18)")
    a("s_barrier")
    stamp(a, 1)
    issue_x(a); wphi_dma(); issue_x(a); issue_x(a)
    a("l_w2:")
    a("s_waitcnt vmcnt(9)")
    a(f"v_readfirstlane_b32 s80, v218")
    a("s_barrier")
    a(f"s_add_u32 s{S_N}, s80, 1")
    a("s_waitcnt vmcnt(4)")
    a("s_barrier")
    issue_stage(a, False)
    a(f"s_cmp_lt_u32 s{S_L}, 2")
    a("s_cbranch_scc0 l_nopub")
    a(f"s_cmp_eq_u32 s{S_R1}, 3")
    a("s_cbranch_scc0 l_nopub")
    a(f"v_lshlrev_b32 v5, 3, v{V_LANE}")
    a(f"v_add_u32 v6, {L_SH[0]}, v5")
    for w in range(4):
        a(f"ds_read_b64 {v(16+4*w,2)}, v6 offset:{w*2048}")
        a(f"ds_read_b64 {v(18+4*w,2)}, v6 offset:{w*2048+512}")
    a(f"s_and_b32 s39, s{S_L}, 1")
    a(f"s_mul_i32 s39, s39, {16*3072*4}")
    a(f"s_mul_i32 s43, s{S_MB}, {3072*4}")
    a("s_add_u32 s43, s43, s39")
    a(f"s_lshl_b32 s44, s{S_J}, 8")
    a("s_add_u32 s43, s43, s44")
    a(f"s_add_u32 s43, s43, {hex(WS_CSP)}")
    a(f"v_lshrrev_b32 v8, 5, v{V_LANE}")
    a(f"v_and_b32 v9, 31, v{V_LANE}")
    a("v_lshlrev_b32 v9, 3, v9")
    a("v_lshl_add_u32 v8, v8, 12, v9")
    a("v_add_u32 v9, 8192, v9")
    a("s_waitcnt lgkmcnt(0)")
    for w in range(1, 4):
        for k in range(4): a(f"v_add_f32 v{16+k}, v{16+k}, v{16+4*w+k}")
    a("buffer_store_dwordx2 v[16:17], v8, s[8:11], s43 offen sc1")
    a("s_mov_b64 exec, 0xffffffff")
    a("buffer_store_dwordx2 v[18:19], v9, s[8:11], s43 offen sc1")
    a("s_mov_b64 exec, -1")
    a("l_nopub:")
    a("s_mov_b32 s49, 12")
    a("l_loop:")
    a("s_waitcnt vmcnt(10)")
    a("s_barrier")
    a("s_cmp_eq_u32 s49, 11")
    a("s_cbranch_scc0 l_nosig")
    a(f"s_cmp_lt_u32 s{S_L}, 2")
    a("s_cbranch_scc0 l_nosig")
    a(f"s_cmp_eq_u32 s{S_R1}, 3")
    a("s_cbranch_scc0 l_nosig")
    csflag(a)
    signal(a, 38, S_MB)
    a("l_nosig:")
    issue_stage(a, False)
    a("s_sub_u32 s49, s49, 1")
    a("s_cmp_lg_u32 s49, 0")
    a("s_cbranch_scc1 l_loop")
    a(f"s_cmp_ge_u32 s{S_R1}, 2")
    a("s_cbranch_scc1 l_colf")
    a(f"s_lshl_b32 s38, s{S_MB}, 7")
    a(f"s_add_u32 s38, s38, s{S_FL}")
    a(f"s_sub_u32 s38, s38, {0x1800 - FL_X}")
    a("s_branch l_stf")
    a("l_colf:")
    csflag(a)
    a("l_stf:")
    a(f"v_and_b32 v250, 15, v{V_LANE}")
    a("v_lshlrev_b32 v250, 3, v250")
    a("buffer_load_dwordx2 v[248:249], v250, s[8:11], s38 offen sc1")
    a("s_waitcnt vmcnt(11)")
    a("s_barrier")
    a("s_waitcnt vmcnt(0)")
    a(f"s_not_b32 s71, s{S_N}")
    a(f"v_cmp_eq_u32 vcc, s{S_N}, v248")
    a("v_cmp_eq_u32 s[72:73], s71, v249")
    a("s_nop 0")
    a("s_and_b64 vcc, vcc, s[72:73]")
    a("s_cmp_eq_u64 vcc, exec")
    a("s_cbranch_scc1 l_colok")
    if not os.environ.get("NOCS"): poll(a, 38)
    a("l_colok:")
    a(f"s_cmp_ge_u32 s{S_R1}, 2")
    a("s_cbranch_scc1 l_cola")
    a(f"s_lshl_b32 s49, s{S_MB}, 7")
    a(f"s_lshl_b32 s39, s{S_R1}, 6")
    a("s_add_u32 s49, s49, s39")
    a("s_lshl_b32 s49, s49, 3")
    a(f"s_add_u32 s49, s49, s{S_ST}")
    a("s_mov_b32 s50, 16384")
    a(f"v_lshlrev_b32 v5, 3, v{V_LANE}")
    a("s_branch l_stl")
    a("l_cola:")
    a(f"s_sub_u32 s49, s{S_R1}, 2")
    a("s_lshl_b32 s49, s49, 1")
    a(f"v_lshrrev_b32 v5, 5, v{V_LANE}")
    a("v_add_u32 v5, s49, v5")
    a("v_min_u32 v5, 2, v5")
    a(f"v_and_b32 v6, 31, v{V_LANE}")
    a("v_lshlrev_b32 v6, 3, v6")
    a("v_lshl_add_u32 v7, v5, 8, v6")
    a("v_lshl_add_u32 v5, v5, 12, v6")
    a(f"s_and_b32 s39, s{S_L}, 1")
    a(f"s_mul_i32 s39, s39, {16*3072*4}")
    a(f"s_lshl_b32 s49, s{S_J}, 8")
    a("s_add_u32 s49, s49, s39")
    a(f"s_add_u32 s49, s49, {hex(WS_CSP)}")
    a(f"s_mov_b32 s50, {3072*4}")
    a("l_stl:")
    for i in range(16):
        a(f"buffer_load_dwordx2 {v(16+2*i,2)}, v5, s[8:11], s49 offen sc1")
        if i < 15: a("s_add_u32 s49, s49, s50")
    a("s_barrier")
    a("s_waitcnt vmcnt(0)")
    for i in range(1, 16):
        a(f"v_add_f32 v16, v16, v{16+2*i}")
        a(f"v_add_f32 v17, v17, v{17+2*i}")
    a(f"s_cmp_ge_u32 s{S_R1}, 2")
    a("s_cbranch_scc1 l_colw")
    a(f"v_mul_f32 v16, {f32(1.0/1024)}, v16")
    a(f"v_mul_f32 v17, {f32(1.0/1024)}, v17")
    a("v_fma_f32 v17, -v16, v16, v17")
    a("v_max_f32 v17, 0, v17")
    a(f"v_add_f32 v17, {f32(1e-5)}, v17")
    a("v_rsq_f32 v17, v17")
    a("v_sub_f32 v16, 0, v16")
    a(f"s_lshl_b32 s39, s{S_R1}, 8")
    a(f"v_lshlrev_b32 v5, 2, v{V_LANE}")
    a("v_add_u32 v5, s39, v5")
    a(f"v_add_u32 v5, {L_NM}, v5")
    a("ds_write_b32 v5, v16")
    a("ds_write_b32 v5, v17 offset:512")
    a("s_branch l_stw")
    a("l_colw:")
    a(f"v_add_u32 v7, s{S_CS}, v7")
    a("ds_write_b64 v7, v[16:17]")
    a("l_stw:")
    a("s_waitcnt lgkmcnt(0)")
    a("l_cole:")
    a("s_barrier")
    a(f"s_bitcmp1_b32 s{S_L}, 0")
    a("s_cbranch_scc1 l_B")
    wsrd(a, S_AWO, S_BWO, D_ * D_ * 2)
    a(f"s_lshl_b32 s41, s{S_R1}, 5")
    wo_voff(a)
    wo_dma(a, 41, 32)
    if True:
        a(f"s_cmp_eq_u32 s{S_L}, 0")
        a("s_cbranch_scc0 l_nowpf")
        a(f"s_and_b32 s41, s{S_MB}, 7")
        a("s_lshl_b32 s41, s41, 7")
        a(f"s_lshl_b32 s42, s{S_R1}, 5")
        a("s_add_u32 s41, s41, s42")
        w_prefetch(a, 41, 32, 16, 8)
        a("l_nowpf:")
    a("s_barrier")
    a("s_barrier")
    handoff(a, "l_hkv", FL_KV, S_J, S_MB)
    a("s_barrier")
    a("s_branch kv_reduce")
    a("l_B:")
    a("s_barrier")
    a("s_branch attention")
    a("m_entry:")
    a(f"s_lshr_b32 s{S_R1}, s{S_WAVE}, 1")
    a(f"s_and_b32 s{S_R2}, s{S_WAVE}, 1")
    srd(a, 16, 74, S_ * D_ * 2)
    a(f"s_lshl_b32 s50, s{S_MB}, 2")
    a(f"s_add_u32 s50, s50, s{S_WAVE}")
    a("s_lshl_b32 s51, s50, 16")
    a(f"s_lshl_b32 s39, s{S_J}, 7")
    a("s_add_u32 s53, s51, s39")
    a(f"v_and_b32 v156, 31, v{V_LANE}")
    a("v_lshlrev_b32 v156, 11, v156")
    a(f"v_lshrrev_b32 v157, 5, v{V_LANE}")
    a("v_lshl_add_u32 v156, v157, 4, v156")
    for i in range(4):
        a(f"buffer_load_dwordx4 {v(112+4*i,4)}, v156, s[16:19], s53 offen offset:{i*32}")
    m_setup(a)
    a(f"s_lshl_b32 s39, s{S_J}, 12")
    a("s_add_u32 s77, s51, s39")
    a(f"s_add_u32 s77, s77, s{S_XF}")
    a(f"s_lshl_b32 s39, s{S_J}, 14")
    a("s_lshl_b32 s78, s50, 8")
    a("s_add_u32 s78, s78, s39")
    a(f"s_add_u32 s78, s78, s{S_ST}")
    a("s_barrier")
    a("m_layer:")
    if not os.environ.get("NOCS"):
        a(f"s_cmp_lt_u32 s{S_L}, 2")
        a("s_cbranch_scc0 m_nocs")
        L_ = V_LANE
        a(f"v_lshrrev_b32 v140, 5, v{L_}")
        a(f"v_bfe_u32 v141, v{L_}, 2, 2")
        a("v_lshl_add_u32 v140, v140, 2, v141")
        a("v_lshlrev_b32 v140, 7, v140")
        a(f"v_bfe_u32 v141, v{L_}, 4, 1")
        a(f"v_bfe_u32 v142, v{L_}, 1, 1")
        a("v_lshl_add_u32 v141, v141, 1, v142")
        a(f"v_bfe_u32 v142, v{L_}, 3, 1")
        a("v_lshlrev_b32 v142, 2, v142")
        a("v_xor_b32 v141, v141, v142")
        a("v_lshl_add_u32 v140, v141, 4, v140")
        a(f"v_and_b32 v141, 1, v{L_}")
        a("v_lshl_add_u32 v140, v141, 3, v140")
        a(f"s_lshl_b32 s39, s{S_WAVE}, 11")
        a("v_add_u32 v140, s39, v140")
        a("v_xor_b32 v141, 64, v140")
        for p in range(3):
            for hd in range(2):
                a(f"v_add_u32 v142, {L_SH[p]}, v{140+hd}")
                for t in range(2):
                    a(f"ds_read_b64_tr_b16 {v(160+(p*2+hd)*4+2*t,2)}, v142 offset:{t*1024}")
        a(f"v_mov_b32 v143, {hex(ONES_BF16)}")
        for f in range(6): a(f"v_mov_b32 v{150+f}, 0")
        a("s_waitcnt lgkmcnt(0)")
        for q in range(4):
            for f in range(6): a(f"v_dot2c_f32_bf16 v{150+f}, v{160+f*4+q}, v143")
        a("s_nop 2")
        for f in range(6): a(f"v_mov_b32 v{184+f}, v{150+f}")
        a("s_nop 1")
        for f in range(6): a(f"v_permlane32_swap_b32 v{150+f}, v{184+f}")
        a("s_nop 1")
        for f in range(6): a(f"v_add_f32 v{150+f}, v{150+f}, v{184+f}")
        a(f"v_and_b32 v142, 31, v{L_}")
        a("v_lshlrev_b32 v142, 2, v142")
        a(f"s_lshl_b32 s39, s{S_WAVE}, 11")
        a(f"s_add_u32 s39, s39, {L_SH[0]}")
        a("v_add_u32 v142, s39, v142")
        for p in range(3):
            for hd in range(2): a(f"ds_write_b32 v142, v{150+p*2+hd} offset:{p*256+hd*128}")
        a("s_waitcnt lgkmcnt(0)")
        a("m_nocs:")
    def m_main(nat):
        t = "n" if nat else ""
        a("s_barrier")
        stamp(a, 2)
        p1_reads(a, FA, 0, range(8), nat)
        if nat:
            p1_sub(a, FA, FB, 1, nat=nat)
            p1_sub(a, FB, FA, 2, nat=nat)
            p1_sub(a, FA, FB, 3, nat=nat)
            a("s_waitcnt vmcnt(0)")
            p1_sub(a, FB, FA, 0, barrier=True, nat=nat)
            handoff(a, "m_sx0", FL_X, S_MB, S_J, layer_delta=-1, wave=0, do_poll=False)
            a("s_sub_u32 s49, s49, 1")
            if PFD: a("s_add_u32 s41, s41, 1")
        if PFD:
            a("s_cmp_ge_u32 s42, 3")
            a(f"s_cbranch_scc0 m_pf0{t}")
            a(f"s_cmp_lt_u32 s42, {PFD + (1 if nat else 0)}")
            a(f"s_cbranch_scc0 m_pf0{t}")
            m_w_prefetch(a, 42, "x")
            a(f"m_pf0{t}:")
        a(f"m_loop{t}:")
        if PFD:
            a("s_and_b32 s39, s41, 7")
            a("s_cmp_eq_u32 s39, s42")
            a(f"s_cbranch_scc0 m_pf1{t}")
            a("s_cmp_lt_u32 s41, 16")
            a(f"s_cbranch_scc0 m_pf1{t}")
            m_w_prefetch(a, 41, "y")
            a(f"m_pf1{t}:")
            a("s_add_u32 s41, s41, 1")
        p1_sub(a, FA, FB, 1, nat=nat)
        p1_sub(a, FB, FA, 2, nat=nat)
        p1_sub(a, FA, FB, 3, nat=nat)
        p1_sub(a, FB, FA, 0, barrier=True, nat=nat)
        a("s_sub_u32 s49, s49, 1")
        a("s_cmp_lg_u32 s49, 0")
        a(f"s_cbranch_scc1 m_loop{t}")
    a(f"s_cmp_eq_u32 s{S_L}, 0")
    a("s_cbranch_scc0 m_std")
    L_ = V_LANE
    a(f"v_and_b32 v5, 31, v{L_}")
    a("v_lshlrev_b32 v6, 7, v5")
    a(f"s_lshl_b32 s39, s{S_R1}, 13")
    a("v_add_u32 v6, s39, v6")
    a("v_bfe_u32 v5, v5, 1, 3")
    a(f"v_lshrrev_b32 v7, 5, v{L_}")
    for k in range(4):
        a(f"v_add_u32 v8, {2*k}, v7")
        a("v_xor_b32 v8, v8, v5")
        a(f"v_lshl_add_u32 v{VXN0+k}, v8, 4, v6")
        a(f"v_mov_b32 v{VXN+k}, v{VXN0+k}")
    a(f"v_lshrrev_b32 v5, 5, v{L_}")
    a("v_lshlrev_b32 v5, 9, v5")
    a(f"v_add_u32 v{VW0}, v{VW0}, v5")
    a(f"v_mov_b32 v{VW}, v{VW0}")
    for r in (5, 6, 7, 8): a(f"v_mov_b32 v{r}, 0")
    a(f"v_mov_b32 v150, {hex(ONES_BF16)}")
    a("s_waitcnt vmcnt(0)")
    a(f"v_readfirstlane_b32 s{S_N}, v218")
    for i in range(4):
        a(f"v_permlane32_swap_b32 v{112+4*i}, v{112+4*i+2}")
        a(f"v_permlane32_swap_b32 v{112+4*i+1}, v{112+4*i+3}")
    a(f"s_add_u32 s{S_N}, s{S_N}, 1")
    emit_xstore(a, 112, 150, 152, 156, 77, 78)
    m_main(True)
    a("s_branch m_done")
    a("m_std:")
    m_main(False)
    a("m_done:")
    a("s_waitcnt vmcnt(0) lgkmcnt(0)")
    stamp(a, 3)
    a(f"s_bitcmp1_b32 s{S_L}, 0")
    a("s_cbranch_scc1 m_B")
    m_layer_A(a)
    a("kv_reduce:")
    kv_reduce(a)
    a(f"s_cmp_lt_u32 s{S_WAVE}, 4")
    a("s_cbranch_scc0 l_A2")
    m_layer_A2(a)
    stamp(a, 7)
    a("s_branch m_f1")
    a("l_A2:")
    a("s_barrier")
    a("s_waitcnt vmcnt(0)")
    a("s_barrier")
    a("s_branch l_p3")
    a("m_B:")
    m_layer_B(a)
    stamp(a, 4)
    a("s_barrier")
    a("attention:")
    (attention2 if os.environ.get("A2Q", "1") == "1" else attention)(a)
    stamp(a, 7)
    a(f"s_cmp_lt_u32 s{S_WAVE}, 4")
    a("s_cbranch_scc1 m_f1")
    a("s_barrier")
    a(f"s_sub_u32 s41, s{S_WAVE}, 4")
    a("s_lshl_b32 s41, s41, 3")
    a("s_add_u32 s41, s41, 32")
    vg_ = 173 if os.environ.get("A2Q", "1") == "1" else aVG
    wo_dma(a, 41, 8, vd=vg_)
    a("s_add_u32 s41, s41, 64")
    wo_dma(a, 41, 8, vd=vg_)
    a("s_barrier")
    a("l_p3:")
    a("s_waitcnt vmcnt(0)")
    a("s_barrier")
    a(f"s_add_u32 s{S_L}, s{S_L}, 1")
    a(f"s_cmp_lt_u32 s{S_L}, 4")
    a("s_cbranch_scc1 l_layer")
    a("s_endpgm")
    m_p3(a)
    kend(a, name)
    return a.text(), kernel_descriptor(name, 256), dict(name=name, grid=256, block=512, lds=MEGA_LDS)
```

```python
from common import *

S_MB, S_J, S_WAVE, S_R1, S_R2, S_L = 20, 21, 22, 23, 24, 25
S_AWQKV, S_BWQKV, S_AWO, S_BWO, S_AWPHI, S_OUT = 26, 28, 30, 32, 34, 36
S_XF, S_XFN, S_OF, S_KV, S_ST, S_STN, S_FL, S_ZP = 60, 61, 62, 63, 64, 65, 66, 67
S_L2E = 68
S_N, S_CS = 69, 70
V_LANE, V_L16 = 255, 254
STAGE = 40960
NST = 3
L_SCR0 = 131072
L_NM = L_SCR0
L_RS = L_NM + 512
L_CS = L_NM + 1024
L_WPHI = L_SCR0 + 3072
L_SCR = L_WPHI + 4096
L_SH = [L_SCR, L_SCR + 8192, L_SCR + 16384 + 1024]
MEGA_LDS = 163840
assert L_SH[2] + 8192 <= MEGA_LDS
SPIN = 1 << 16

class Ctx:
    pass

DBGST = os.environ.get("DBGST")
_dbg_n = [0]
def stamp(a, k):
    if DBGST:
        m = {2: 0, 3: 1, 7: 2, 11: 3}
        if k not in m and k != 0: return
        n = _dbg_n[0]; _dbg_n[0] += 1
        a("s_memrealtime s[96:97]")
        a("s_waitcnt lgkmcnt(0)")
        if k == 0:
            a("s_mov_b32 s95, s96")
            return
        a("s_cmp_eq_u32 s2, 0")
        a(f"s_cbranch_scc0 dbg{n}")
        a(f"s_cmp_eq_u32 s{S_WAVE}, 0")
        a(f"s_cbranch_scc0 dbg{n}")
        a("s_sub_u32 s96, s96, s95")
        a(f"s_lshl_b32 s97, s{S_L}, 4")
        a(f"s_add_u32 s97, s97, {m[k]*4}")
        a("s_and_b32 s97, s97, 63")
        a("s_mov_b64 s[98:99], exec")
        a("s_mov_b64 exec, 1")
        a("v_mov_b32 v253, s96")
        a("v_mov_b32 v252, s97")
        a("buffer_store_dword v253, v252, s[100:103]".replace("s[100:103]", "s[92:95]").replace("s[92:95]", "s[88:91]") + ", 0 offen")
        a("s_mov_b64 exec, s[98:99]")
        a(f"dbg{n}:")
        return
    if not STAMP: return
    a("s_memrealtime s[96:97]")
    a(f"s_lshl_b32 s91, s{S_L}, 4")
    a(f"s_add_u32 s91, s91, {k}")
    a("s_lshl_b32 s91, s91, 14")
    a("s_add_u32 s91, s91, s90")
    a("s_waitcnt lgkmcnt(0)")
    a("s_mov_b64 s[98:99], exec")
    a("s_mov_b64 exec, 1")
    a("v_mov_b32 v253, s96")
    a("v_mov_b32 v252, 0")
    a("buffer_store_dword v253, v252, s[8:11], s91 offen")
    a("s_mov_b64 exec, s[98:99]")

def layer_setup(a):
    if INPLACE:
        a(f"s_mov_b32 s{S_XF}, {hex(WS_XF)}")
        a(f"s_mov_b32 s{S_XFN}, {hex(WS_XF)}")
        a(f"s_mov_b32 s{S_OF}, {hex(WS_OF)}")
        a(f"s_mov_b32 s{S_ST}, {hex(WS_STATS)}")
        a(f"s_mov_b32 s{S_STN}, {hex(WS_STATS)}")
        a(f"s_mov_b32 s{S_ZP}, {hex(WS_ZP)}")
        a(f"s_bitcmp1_b32 s{S_L}, 0")
        a(f"s_cselect_b32 s{S_KV}, {hex(WS_KVF)}, {hex(WS_KVP)}".replace(f"{hex(WS_KVF)}, {hex(WS_KVP)}", "s38, s39")) if False else None
        a(f"s_mov_b32 s38, {hex(WS_KVF)}")
        a(f"s_mov_b32 s39, {hex(WS_KVP)}")
        a(f"s_bitcmp1_b32 s{S_L}, 0")
        a(f"s_cselect_b32 s{S_KV}, s38, s39")
    else:
        a(f"s_lshl_b32 s38, s{S_L}, 22")
        a(f"s_add_u32 s{S_XF}, s38, {hex(WS_XF)}" if WS_XF else f"s_mov_b32 s{S_XF}, s38")
        a(f"s_add_u32 s{S_XFN}, s{S_XF}, 0x400000")
        a(f"s_add_u32 s{S_OF}, s38, {hex(WS_OF)}")
        a(f"s_lshl_b32 s38, s{S_L}, 18")
        a(f"s_add_u32 s{S_ST}, s38, {hex(WS_STATS)}")
        a(f"s_add_u32 s{S_STN}, s{S_ST}, 0x40000")
        a(f"s_lshr_b32 s39, s{S_L}, 1")
        a(f"s_lshl_b32 s38, s39, 17")
        a(f"s_add_u32 s{S_ZP}, s38, {hex(WS_ZP)}")
        a(f"s_lshl_b32 s38, s39, 21")
        a(f"s_add_u32 s38, s38, {hex(WS_KVP)}")
        a(f"s_lshl_b32 s39, s39, 23")
        a(f"s_add_u32 s39, s39, {hex(WS_KVF)}")
        a(f"s_bitcmp1_b32 s{S_L}, 0")
        a(f"s_cselect_b32 s{S_KV}, s39, s38")
    a(f"s_mul_i32 s38, s{S_L}, 0x1800")
    a(f"s_add_u32 s{S_FL}, s38, {hex(WS_FLAGS + 0x1800)}")
    a(f"s_and_b32 s38, s{S_L}, 1")
    a("s_mul_i32 s38, s38, 768")
    a(f"s_add_u32 s{S_CS}, s38, {L_CS}")

def wsrd(a, pa, pb, nbytes):
    a(f"s_bitcmp1_b32 s{S_L}, 0")
    a(f"s_cselect_b32 s12, s{pb}, s{pa}")
    a(f"s_cselect_b32 s13, s{pb+1}, s{pa+1}")
    a("s_and_b32 s13, s13, 0xffff")
    a(f"s_mov_b32 s14, {hex(nbytes)}")
    a("s_mov_b32 s15, 0x20000")

def signal(a, sflag, sidx):
    a(f"s_lshl_b32 s39, s{sidx}, 3")
    a("v_mov_b32 v250, s39")
    a(f"v_mov_b32 v248, s{S_N}")
    a(f"v_not_b32 v249, v248")
    a("s_mov_b64 exec, 1")
    a(f"buffer_store_dwordx2 v[248:249], v250, s[8:11], s{sflag} offen sc1")
    a("s_mov_b64 exec, -1")

_poll_n = [0]
NPOLL = int(os.environ.get('NPOLL', '1'))
def poll(a, sflag):
    n = _poll_n[0]; _poll_n[0] += 1
    a(f"v_and_b32 v250, 15, v{V_LANE}")
    a("v_lshlrev_b32 v250, 3, v250")
    a(f"s_mov_b32 s39, {SPIN}")
    a(f"s_not_b32 s37x, s{S_N}".replace("s37x", "s71"))
    regs = [248, 246, 244][:NPOLL]
    for i, r in enumerate(regs):
        a(f"buffer_load_dwordx2 {v(r,2)}, v250, s[8:11], s{sflag} offen sc1")
        if i < NPOLL - 1: a("s_sleep 3")
    a(f"poll{n}:")
    for r in regs:
        a(f"s_waitcnt vmcnt({NPOLL-1})")
        a(f"v_cmp_eq_u32 vcc, s{S_N}, v{r}")
        a(f"v_cmp_eq_u32 s[72:73], s71, v{r+1}")
        a("s_nop 0")
        a("s_and_b64 vcc, vcc, s[72:73]")
        a("s_cmp_eq_u64 vcc, exec")
        a(f"s_cbranch_scc1 poll{n}_done")
        a(f"buffer_load_dwordx2 {v(r,2)}, v250, s[8:11], s{sflag} offen sc1")
    a("s_sub_u32 s39, s39, 1")
    a("s_cmp_lg_u32 s39, 0")
    a(f"s_cbranch_scc1 poll{n}")
    a(f"poll{n}_done:")

def handoff(a, lbl, ftype, sgroup, sidx, layer_delta=0, wave=4, do_signal=True, do_poll=True):
    a(f"s_cmp_eq_u32 s{S_WAVE}, {wave}")
    a(f"s_cbranch_scc0 {lbl}")
    a(f"s_lshl_b32 s38, s{sgroup}, 7")
    a(f"s_add_u32 s38, s38, s{S_FL}")
    off = ftype + layer_delta * 0x1800
    if off > 0: a(f"s_add_u32 s38, s38, {off}")
    if off < 0: a(f"s_sub_u32 s38, s38, {-off}")
    if do_signal: signal(a, 38, sidx)
    if do_poll: poll(a, 38)
    a(f"{lbl}:")

ACC = 0
FA, FB = 96, 116
VX, VW, VX0, VW0 = 136, 137, 138, 139
def acc(p, mi): return ACC + (p * 2 + mi) * 16

VXN, VXN0 = 140, 144
def p1_reads(a, fs, ks, which, nat=False):
    def rd(n):
        if nat:
            if n == 0: return f"ds_read_b128 {v(fs,4)}, v{VXN+ks}"
            if n == 3: return f"ds_read_b128 {v(fs+4,4)}, v{VXN+ks} offset:4096"
        if n == 0: return f"ds_read_b128 {v(fs,4)}, v{VX} offset:{ks*1024}"
        if n == 3: return f"ds_read_b128 {v(fs+4,4)}, v{VX} offset:{4096+ks*1024}"
        p, t = {1:(0,0),2:(0,1),4:(1,0),5:(1,1),6:(2,0),7:(2,1)}[n]
        return f"ds_read_b64_tr_b16 {v(fs+8+4*p+2*t,2)}, v{VW} offset:{16384+p*8192+ks*2048+t*(512 if nat else 1024)}"
    for n in which: a(rd(n))

def p1_sub(a, cur, nxt, nks, barrier=False, nat=False):
    x0, x1, wq, wk, wv = cur, cur+4, cur+8, cur+12, cur+16
    def mf(d, A, B):
        if os.environ.get("M16EXP"):
            a(f"{M16} {v(d,4)}, {v(A,4)}, {v(B,4)}, {v(d,4)}")
            a(f"{M16} {v(d+8,4)}, {v(A,4)}, {v(B,4)}, {v(d+8,4)}")
        else:
            a(f"{M32} {v(d,16)}, {v(A,4)}, {v(B,4)}, {v(d,16)}")
    if barrier:
        a("s_waitcnt lgkmcnt(0)")
        a("s_barrier")
        a(f"s_add_u32 s40, s40, {STAGE}")
        a(f"s_cmp_eq_u32 s40, {NST*STAGE}")
        a("s_cselect_b32 s40, 0, s40")
        if nat:
            for k in range(4): a(f"v_add_u32 v{VXN+k}, s40, v{VXN0+k}")
        else:
            a(f"v_add_u32 v{VX}, s40, v{VX0}")
        a(f"v_add_u32 v{VW}, s40, v{VW0}")
    else:
        a("s_waitcnt lgkmcnt(5)")
    mf(acc(0,0), wq, x0)
    p1_reads(a, nxt, nks, [0, 1], nat)
    if not barrier: a("s_waitcnt lgkmcnt(6)")
    mf(acc(0,1), wq, x1)
    p1_reads(a, nxt, nks, [2, 3], nat)
    if not barrier: a("s_waitcnt lgkmcnt(6)")
    mf(acc(1,0), wk, x0)
    p1_reads(a, nxt, nks, [4, 5], nat)
    mf(acc(1,1), wk, x1)
    p1_reads(a, nxt, nks, [6, 7], nat)
    if not barrier: a("s_waitcnt lgkmcnt(8)")
    mf(acc(2,0), x0, wv)
    mf(acc(2,1), x1, wv)

ROT = os.environ.get("ROT", "none")
def issue_x(a, fill=None):
    a("s_mul_i32 s41, s56, s82")
    a("s_add_u32 s41, s41, s58")
    a("s_add_u32 s43, s45, s47")
    a("s_add_u32 s56, s56, 1")
    a("s_and_b32 s56, s56, 15")
    for q in range(4):
        a(f"s_add_u32 m0, s43, {q*1024}")
        if q: a("s_add_u32 s41, s41, s81")
        else: a("s_nop 0")
        a(f"buffer_load_dwordx4 v{2 if q % 2 == 0 else 4}, s[84:87], s41 offen sc1 lds")
        if fill: fill()
    a(f"s_add_u32 s45, s45, {STAGE}")
    a(f"s_cmp_eq_u32 s45, {NST*STAGE}")
    a("s_cselect_b32 s45, 0, s45")

def issue_w(a, fill=None):
    a(f"s_mul_i32 s42, s57, {64*6144}")
    a("s_add_u32 s42, s42, s59")
    a("s_add_u32 s57, s57, 1")
    a("s_and_b32 s57, s57, 15")
    a("s_add_u32 s44, s46, s48")
    for p in range(3):
        for q in range(2):
            a(f"s_add_u32 m0, s44, {p*8192+q*1024}")
            a(f"s_add_u32 s43, s42, {p*2048+q*8*6144}")
            a("buffer_load_dwordx4 v3, s[12:15], s43 offen lds")
            if fill: fill()
    a(f"s_add_u32 s46, s46, {STAGE}")
    a(f"s_cmp_eq_u32 s46, {NST*STAGE}")
    a("s_cselect_b32 s46, 0, s46")

WPF = int(os.environ.get("WPF", "0"))
PFD = int(os.environ.get("PFD", "6"))
def m_w_prefetch(a, sstage, lbl):
    a(f"s_mul_i32 s43, s{sstage}, {64*6144}")
    a("s_add_u32 s43, s43, s45")
    n = 0
    for q in range(2):
        for p in range(3):
            a(f"s_add_u32 s44, s43, {q*8*6144 + p*2048}")
            a(f"buffer_load_dwordx4 {v(196+4*n,4)}, v220, s[12:15], s44 offen")
            n += 1
PFMOD = os.environ.get("PFMOD", "")
def w_prefetch(a, srow0, nrows, vdst, vtmp):
    a(f"s_bitcmp1_b32 s{S_L}, 0")
    a(f"s_cselect_b32 s16, s{S_AWQKV}, s{S_BWQKV}")
    a(f"s_cselect_b32 s17, s{S_AWQKV+1}, s{S_BWQKV+1}")
    a("s_and_b32 s17, s17, 0xffff")
    a(f"s_mov_b32 s18, {hex(D_*3*D_*2)}")
    a("s_mov_b32 s19, 0x20000")
    a(f"v_lshrrev_b32 v{vtmp}, 3, v{V_LANE}")
    a(f"v_mul_u32_u24 v{vtmp}, 6144, v{vtmp}")
    a(f"v_and_b32 v{vtmp+1}, 7, v{V_LANE}")
    a(f"v_lshl_add_u32 v{vtmp}, v{vtmp+1}, 4, v{vtmp}")
    a(f"s_mul_i32 s43, s{srow0}, 6144")
    a(f"s_lshl_b32 s44, s{S_J}, 7")
    a("s_add_u32 s43, s43, s44")
    n = 0
    for g in range(nrows // 8):
        for p in range(3):
            a(f"s_add_u32 s44, s43, {g*8*6144 + p*2048}")
            a(f"buffer_load_dwordx4 {v(vdst+4*n,4)}, v{vtmp}, s[16:19], s44 offen {PFMOD}")
            n += 1

def wo_voff(a, vd=5, t0=6, t1=7):
    a(f"v_lshrrev_b32 v{vd}, 3, v{V_LANE}")
    a(f"v_lshlrev_b32 v{t0}, 11, v{vd}")
    a(f"v_and_b32 v{vd}, 7, v{V_LANE}")
    a(f"v_bfe_u32 v{t1}, v{V_LANE}, 4, 1")
    a(f"v_lshlrev_b32 v{t1}, 2, v{t1}")
    a(f"v_xor_b32 v{vd}, v{vd}, v{t1}")
    a(f"v_lshl_add_u32 v{vd}, v{vd}, 4, v{t0}")

def wo_dma(a, first_piece_sgpr, n, vd=5):
    a(f"s_lshl_b32 s43, s{first_piece_sgpr}, 14")
    a(f"s_lshl_b32 s44, s{S_J}, 7")
    a("s_add_u32 s43, s43, s44")
    a(f"s_lshl_b32 s44, s{first_piece_sgpr}, 10")
    for i in range(n):
        a("s_mov_b32 m0, s44")
        a("s_add_u32 s44, s44, 1024")
        a(f"buffer_load_dwordx4 v{vd}, s[12:15], s43 offen lds")
        if i < n - 1: a("s_add_u32 s43, s43, 16384")

CSACC, CSF, CSV0, CSONE = 48, 56, 8, 10
def csflag(a):
    a(f"s_and_b32 s38, s{S_L}, 1")
    a(f"s_mul_i32 s38, s38, {FL_O - FL_KV}")
    a(f"s_lshl_b32 s39, s{S_J}, 7")
    a("s_add_u32 s38, s38, s39")
    a(f"s_add_u32 s38, s38, {hex(WS_FLAGS + FL_KV)}")

def colsum_setup(a):
    L_ = V_LANE
    a(f"v_lshrrev_b32 v11, 5, v{L_}")
    a(f"v_bfe_u32 v12, v{L_}, 2, 2")
    a("v_lshl_add_u32 v11, v11, 2, v12")
    a("v_lshlrev_b32 v11, 7, v11")
    a(f"v_bfe_u32 v12, v{L_}, 4, 1")
    a(f"v_bfe_u32 v13, v{L_}, 1, 1")
    a("v_lshl_add_u32 v12, v12, 1, v13")
    a(f"v_bfe_u32 v13, v{L_}, 3, 1")
    a("v_lshlrev_b32 v13, 2, v13")
    a("v_xor_b32 v12, v12, v13")
    a("v_lshl_add_u32 v11, v12, 4, v11")
    a(f"v_and_b32 v12, 1, v{L_}")
    a("v_lshl_add_u32 v11, v12, 3, v11")
    a(f"s_lshl_b32 s39, s{S_R1}, 11")
    a("s_add_u32 s39, s39, 16384")
    a(f"v_add_u32 v{CSV0}, s39, v11")
    a(f"v_xor_b32 v{CSV0+1}, 64, v{CSV0}")
    a(f"v_mov_b32 v{CSONE}, {hex(ONES_BF16)}")
    for i in range(6): a(f"v_mov_b32 v{CSACC+i}, 0")
    a("s_mov_b32 s51, 0")

def colsum_stage(a, lbl):
    a(f"s_cmp_lt_u32 s{S_L}, 2")
    a(f"s_cbranch_scc0 {lbl}")
    a(f"v_add_u32 v12, s51, v{CSV0}")
    a(f"v_add_u32 v13, s51, v{CSV0+1}")
    for p in range(3):
        for hd in range(2):
            for t in range(2):
                a(f"ds_read_b64_tr_b16 {v(CSF+(p*2+hd)*4+2*t,2)}, v{12+hd} offset:{p*8192+t*1024}")
    a(f"s_add_u32 s51, s51, {STAGE}")
    a(f"s_cmp_eq_u32 s51, {NST*STAGE}")
    a("s_cselect_b32 s51, 0, s51")
    a("s_waitcnt lgkmcnt(0)")
    for q in range(4):
        for f in range(6):
            a(f"v_dot2c_f32_bf16 v{CSACC+f}, v{CSF+f*4+q}, v{CSONE}")
    a(f"{lbl}:")

def colsum_reads(a):
    a(f"v_add_u32 v12, s51, v{CSV0}")
    a(f"v_add_u32 v13, s51, v{CSV0+1}")
    for p in range(3):
        for hd in range(2):
            for t in range(2):
                a(f"ds_read_b64_tr_b16 {v(CSF+(p*2+hd)*4+2*t,2)}, v{12+hd} offset:{p*8192+t*1024}")
    a(f"s_add_u32 s51, s51, {STAGE}")
    a(f"s_cmp_eq_u32 s51, {NST*STAGE}")
    a("s_cselect_b32 s51, 0, s51")

def colsum_filler(a):
    st = {"n": 0, "k": 0}
    ops = [(f, q) for q in range(4) for f in range(6)]
    def fill():
        st["n"] += 1
        if st["n"] < 3: return
        if st["n"] == 3: a("s_waitcnt lgkmcnt(0)")
        for _ in range(3):
            if st["k"] < 24:
                f, q = ops[st["k"]]; st["k"] += 1
                a(f"v_dot2c_f32_bf16 v{CSACC+f}, v{CSF+f*4+q}, v{CSONE}")
    return fill

def issue_stage(a, cs):
    if cs:
        colsum_reads(a)
        f = colsum_filler(a)
        issue_x(a, f); issue_w(a, f)
    else:
        issue_x(a); issue_w(a)

def colsum_finish(a, lbl):
    a(f"s_cmp_lt_u32 s{S_L}, 2")
    a(f"s_cbranch_scc0 {lbl}")
    a("s_nop 2")
    for f in range(6): a(f"v_mov_b32 v{56+f}, v{CSACC+f}")
    a("s_nop 1")
    for f in range(6): a(f"v_permlane32_swap_b32 v{CSACC+f}, v{56+f}")
    a("s_nop 1")
    for f in range(6): a(f"v_add_f32 v{CSACC+f}, v{CSACC+f}, v{56+f}")
    a(f"v_and_b32 v12, 31, v{V_LANE}")
    a("v_lshlrev_b32 v12, 2, v12")
    a(f"v_add_u32 v12, s{S_CS}, v12")
    a("s_mov_b64 exec, 0xffffffff")
    for p in range(3):
        for hd in range(2):
            a(f"ds_add_f32 v12, v{CSACC+p*2+hd} offset:{p*256+hd*128}")
    a("s_mov_b64 exec, -1")
    a("s_waitcnt lgkmcnt(0)")
    a(f"{lbl}:")

T1 = 158
def load_stats_T(a, dst_nm, dst_rs, t=148):
    a(f"v_and_b32 v{t}, 31, v{V_LANE}")
    a(f"s_lshl_b32 s39, s{S_R1}, 8")
    a(f"v_lshlrev_b32 v{t}, 2, v{t}")
    a(f"v_add_u32 v{t}, s39, v{t}")
    a(f"v_add_u32 v{t}, {L_NM}, v{t}")
    for mi in range(2):
        a(f"ds_read_b32 v{dst_nm+2*mi}, v{t} offset:{mi*128}")
        a(f"ds_read_b32 v{dst_rs+2*mi}, v{t} offset:{512+mi*128}")

def load_cs_T(a, p, dst, t=149):
    a(f"v_lshrrev_b32 v{t}, 5, v{V_LANE}")
    a(f"v_lshlrev_b32 v{t}, 4, v{t}")
    a(f"s_lshl_b32 s39, s{S_R2}, 7")
    a(f"s_add_u32 s39, s39, s{S_CS}")
    a(f"v_add_u32 v{t}, s39, v{t}")
    for g in range(4):
        a(f"ds_read_b128 {v(dst+4*g,4)}, v{t} offset:{p*256+g*32}")

def norm_T(a, ac, cs, nm, rs):
    for r in range(8):
        a(f"v_pk_fma_f32 {v(ac+2*r,2)}, {v(cs+2*r,2)}, {v(nm,2)}, {v(ac+2*r,2)} op_sel_hi:[1,0,1]")
    for r in range(8):
        a(f"v_pk_mul_f32 {v(ac+2*r,2)}, {v(ac+2*r,2)}, {v(rs,2)} op_sel_hi:[1,0]")

def pack(a, ac, dst):
    for r in range(8):
        a(f"v_cvt_pk_bf16_f32 v{dst+r}, v{ac+2*r}, v{ac+2*r+1}")

def load_stats_F(a, mi, dst_nm, dst_rs, t=144):
    a(f"v_lshrrev_b32 v{t}, 5, v{V_LANE}")
    a(f"v_lshlrev_b32 v{t}, 4, v{t}")
    a(f"s_lshl_b32 s39, s{S_R1}, 8")
    a(f"v_add_u32 v{t}, s39, v{t}")
    a(f"v_add_u32 v{t}, {L_NM}, v{t}")
    for g in range(4):
        a(f"ds_read_b128 {v(dst_nm+4*g,4)}, v{t} offset:{mi*128+g*32}")
        a(f"ds_read_b128 {v(dst_rs+4*g,4)}, v{t} offset:{512+mi*128+g*32}")

def load_cs_F(a, dst, t=145):
    a(f"v_and_b32 v{t}, 31, v{V_LANE}")
    a(f"v_lshlrev_b32 v{t}, 2, v{t}")
    a(f"s_lshl_b32 s39, s{S_R2}, 7")
    a(f"s_add_u32 s39, s39, s{S_CS}")
    a(f"v_add_u32 v{t}, s39, v{t}")
    a(f"ds_read_b32 v{dst}, v{t} offset:512")

def norm_F(a, ac, cs, nm, rs):
    for r in range(8):
        a(f"v_pk_fma_f32 {v(ac+2*r,2)}, {v(nm+2*r,2)}, {v(cs,2)}, {v(ac+2*r,2)} op_sel_hi:[1,0,1]")
    for r in range(8):
        a(f"v_pk_mul_f32 {v(ac+2*r,2)}, {v(ac+2*r,2)}, {v(rs+2*r,2)}")

def wphi_load(a, dst, t0, t1):
    a(f"v_lshrrev_b32 v{t0}, 5, v{V_LANE}")
    a(f"v_bfe_u32 v{t1}, v{V_LANE}, 2, 2")
    a(f"v_lshl_add_u32 v{t0}, v{t0}, 2, v{t1}")
    a(f"v_lshlrev_b32 v{t0}, 6, v{t0}")
    a(f"v_bfe_u32 v{t1}, v{V_LANE}, 4, 1")
    a(f"v_lshl_add_u32 v{t0}, v{t1}, 5, v{t0}")
    a(f"v_and_b32 v{t1}, 3, v{V_LANE}")
    a(f"v_lshl_add_u32 v{t1}, v{t1}, 3, v{t0}")
    a(f"s_lshl_b32 s39, s{S_R2}, 11")
    a(f"s_add_u32 s39, s39, {L_WPHI}")
    a(f"v_add_u32 v{t1}, s39, v{t1}")
    for t in range(2):
        for tp in range(2):
            a(f"ds_read_b64_tr_b16 {v(dst+4*t+2*tp,2)}, v{t1} offset:{(16*t+8*tp)*64}")

def softmax_pm(a, PD, EN, PT, T):
    sL = S_L2E
    mx, mn, t1, t2, sp, sn = T, T+1, T+2, T+3, T+4, T+6
    a(f"v_max3_f32 v{mx}, v{PD}, v{PD+1}, v{PD+2}")
    a(f"v_min3_f32 v{mn}, v{PD}, v{PD+1}, v{PD+2}")
    for i in range(3, 15, 2):
        a(f"v_max3_f32 v{mx}, v{mx}, v{PD+i}, v{PD+i+1}")
        a(f"v_min3_f32 v{mn}, v{mn}, v{PD+i}, v{PD+i+1}")
    a(f"v_max_f32 v{mx}, v{mx}, v{PD+15}")
    a(f"v_min_f32 v{mn}, v{mn}, v{PD+15}")
    a(f"v_mov_b32 v{t1}, v{mx}")
    a(f"v_mov_b32 v{t2}, v{mn}")
    a("s_nop 1")
    a(f"v_permlane32_swap_b32 v{mx}, v{t1}")
    a(f"v_permlane32_swap_b32 v{mn}, v{t2}")
    a("s_nop 1")
    a(f"v_max_f32 v{mx}, v{mx}, v{t1}")
    a(f"v_min_f32 v{mn}, v{mn}, v{t2}")
    a(f"v_mul_f32 v{mx}, s{sL}, v{mx}")
    a(f"v_mul_f32 v{mn}, s{sL}, v{mn}")
    for r in range(16): a(f"v_fma_f32 v{EN+r}, -v{PD+r}, s{sL}, v{mn}")
    for r in range(16): a(f"v_fma_f32 v{PD+r}, v{PD+r}, s{sL}, -v{mx}")
    for r in range(16): a(f"v_exp_f32 v{EN+r}, v{EN+r}")
    for r in range(16): a(f"v_exp_f32 v{PD+r}, v{PD+r}")
    a(f"v_pk_add_f32 {v(sn,2)}, {v(EN,2)}, {v(EN+2,2)}")
    for r in range(2, 8): a(f"v_pk_add_f32 {v(sn,2)}, {v(sn,2)}, {v(EN+2*r,2)}")
    a(f"v_pk_add_f32 {v(sp,2)}, {v(PD,2)}, {v(PD+2,2)}")
    for r in range(2, 8): a(f"v_pk_add_f32 {v(sp,2)}, {v(sp,2)}, {v(PD+2*r,2)}")
    a(f"v_add_f32 v{sn}, v{sn}, v{sn+1}")
    a(f"v_add_f32 v{sp}, v{sp}, v{sp+1}")
    a(f"v_mov_b32 v{t1}, v{sp}")
    a(f"v_mov_b32 v{t2}, v{sn}")
    a("s_nop 1")
    a(f"v_permlane32_swap_b32 v{sp}, v{t1}")
    a(f"v_permlane32_swap_b32 v{sn}, v{t2}")
    a("s_nop 1")
    a(f"v_add_f32 v{sp}, v{sp}, v{t1}")
    a(f"v_add_f32 v{sn}, v{sn}, v{t2}")
    a(f"v_rcp_f32 v{sp}, v{sp}")
    a(f"v_rcp_f32 v{sn}, v{sn}")
    a("s_nop 0")
    for r in range(8): a(f"v_pk_mul_f32 {v(PD+2*r,2)}, {v(PD+2*r,2)}, {v(sp,2)} op_sel_hi:[1,0]")
    for r in range(8): a(f"v_pk_mul_f32 {v(EN+2*r,2)}, {v(EN+2*r,2)}, {v(sn,2)} op_sel_hi:[1,0]")
    for r in range(8): a(f"v_cvt_pk_bf16_f32 v{PT+r}, v{PD+2*r}, v{PD+2*r+1}")
    for r in range(8): a(f"v_cvt_pk_bf16_f32 v{PT+8+r}, v{EN+2*r}, v{EN+2*r+1}")

NM, RS = 150, 154
CSV, CSQ, CSK, FNM, FRS = 162, 164, 180, 196, 212

def head_tb(a):
    a(f"s_lshl_b32 s50, s{S_J}, 1")
    a(f"s_add_u32 s50, s50, s{S_R2}")
    a(f"s_lshl_b32 s51, s{S_MB}, 2")
    a(f"s_lshl_b32 s39, s{S_R1}, 1")
    a("s_add_u32 s51, s51, s39")

def m_layer_A(a):
    PD, EN = 32, 48
    KVA_, TD, PF = 64, [96, 112], [128, 136]
    ONES = [144, 158]
    PT0, PT1, ZA = 164, 180, 180
    KT, WPH, I0, VF, T = 196, 212, 220, 228, 246
    load_stats_T(a, NM, RS)
    load_cs_T(a, 1, CSK)
    load_cs_F(a, CSV)
    load_stats_F(a, 0, FNM, FRS)
    head_tb(a)
    a("s_waitcnt lgkmcnt(0)")
    norm_F(a, acc(2, 0), CSV, FNM, FRS)
    load_stats_F(a, 1, FNM, FRS)
    pack(a, acc(2, 0), VF)
    for mi in range(2): norm_T(a, acc(1, mi), CSK, NM + 2*mi, RS + 2*mi)
    a("s_waitcnt lgkmcnt(0)")
    norm_F(a, acc(2, 1), CSV, FNM, FRS)
    pack(a, acc(2, 1), VF + 8)
    for mi in range(2): pack(a, acc(1, mi), KT + 8*mi)
    wphi_load(a, WPH, 148, 149)
    n4, hh, jj, val = 144, 145, 146, 147
    a(f"v_bfe_u32 v{n4}, v{V_LANE}, 2, 1")
    a(f"v_lshrrev_b32 v{hh}, 5, v{V_LANE}")
    a(f"v_cmp_eq_u32 vcc, v{n4}, v{hh}")
    a(f"v_bfe_u32 v{jj}, v{V_LANE}, 3, 1")
    a(f"v_lshlrev_b32 v{jj}, 2, v{jj}")
    a(f"v_and_b32 v{n4}, 3, v{V_LANE}")
    a(f"v_add_u32 v{jj}, v{jj}, v{n4}")
    a(f"v_and_b32 v{n4}, 1, v{jj}")
    a(f"v_lshlrev_b32 v{n4}, 4, v{n4}")
    a(f"v_mov_b32 v{val}, 0x3f80")
    a(f"v_lshlrev_b32 v{val}, v{n4}, v{val}")
    a(f"v_cndmask_b32 v{val}, 0, v{val}, vcc")
    a(f"v_lshrrev_b32 v{jj}, 1, v{jj}")
    a(f"v_bfe_u32 v{hh}, v{V_LANE}, 4, 1")
    a(f"v_lshl_add_u32 v{jj}, v{hh}, 2, v{jj}")
    for k in range(8):
        a(f"v_cmp_eq_u32 vcc, {k}, v{jj}")
        a("s_nop 1")
        a(f"v_cndmask_b32 v{I0+k}, 0, v{val}, vcc")
    a(f"v_cmp_eq_u32 vcc, 0, v{hh}")
    a(f"v_mov_b32 v{val}, {hex(ONES_BF16)}")
    a("s_nop 0")
    a(f"v_cndmask_b32 v148, 0, v{val}, vcc")
    a(f"v_sub_u32 v149, v{val}, v148")
    for k in range(4):
        a(f"v_mov_b32 v{ONES[0]+k}, v148")
        a(f"v_mov_b32 v{ONES[1]+k}, v149")
    a("s_waitcnt lgkmcnt(0)")
    for mi in range(2):
        a(f"{M32} {v(PD,16)}, {v(WPH,4)}, {v(KT+8*mi,4)}, 0")
        a(f"{M32} {v(PD,16)}, {v(WPH+4,4)}, {v(KT+8*mi+4,4)}, {v(PD,16)}")
        a("s_nop 11")
        softmax_pm(a, PD, EN, PT0, T)
        a("s_nop 1")
        for fb in range(2):
            a(f"{M32} {v(TD[fb],16)}, {v(PT0+8*fb,4)}, {v(I0,4)}, 0")
            a(f"{M32} {v(TD[fb],16)}, {v(PT0+8*fb+4,4)}, {v(I0+4,4)}, {v(TD[fb],16)}")
        a("s_nop 10")
        pack(a, TD[0], PF[0])
        pack(a, TD[1], PF[1])
        a("s_nop 1")
        for fb in range(2):
            for tt in range(2):
                c = "0" if (mi == 0 and tt == 0) else v(KVA_+16*fb,16)
                a(f"{M32} {v(KVA_+16*fb,16)}, {v(PF[fb]+4*tt,4)}, {v(VF+8*mi+4*tt,4)}, {c}")
        for fb in range(2):
            for tt in range(2):
                c = "0" if (mi == 0 and tt == 0 and fb == 0) else v(ZA,16)
                a(f"{M32} {v(ZA,16)}, {v(PF[fb]+4*tt,4)}, {v(ONES[fb],4)}, {c}")
    a("s_nop 15")
    stamp(a, 4)
    t = 148
    a(f"s_lshl_b32 s39, s{S_R2}, 13")
    a(f"s_add_u32 s39, s39, {L_SCR}")
    a(f"v_add_u32 v{t}, s39, v{V_L16}")
    a(f"v_lshrrev_b32 v149, 4, v{V_LANE}")
    a("v_lshlrev_b32 v149, 6, v149")
    a(f"s_lshl_b32 s39, s{S_R2}, 8")
    a(f"s_add_u32 s39, s39, {L_SCR+16384}")
    a("v_add_u32 v149, s39, v149")
    a(f"s_cmp_eq_u32 s{S_R1}, 0")
    a("s_cbranch_scc1 mA_red0")
    for q in range(8):
        a(f"ds_write_b128 v{t}, {v(KVA_+4*q,4)} offset:{q*1024}")
    a("s_mov_b32 exec_lo, 0x00010001")
    a("s_mov_b32 exec_hi, 0x00010001")
    for q in range(4):
        a(f"ds_write_b128 v149, {v(ZA+4*q,4)} offset:{q*16}")
    a("s_mov_b64 exec, -1")
    a("s_waitcnt lgkmcnt(0)")
    a("s_barrier")
    a("s_branch mA_red1")
    a("mA_red0:")
    a("s_barrier")
    for q in range(8):
        a(f"ds_read_b128 {v(96+4*q,4)}, v{t} offset:{q*1024}")
    for q in range(4):
        a(f"ds_read_b128 {v(128+4*q,4)}, v149 offset:{q*16}")
    a("s_waitcnt lgkmcnt(0)")
    for r in range(16): a(f"v_pk_add_f32 {v(KVA_+2*r,2)}, {v(KVA_+2*r,2)}, {v(96+2*r,2)}")
    for r in range(8): a(f"v_pk_add_f32 {v(ZA+2*r,2)}, {v(ZA+2*r,2)}, {v(128+2*r,2)}")
    for r in range(16): a(f"v_cvt_pk_bf16_f32 v{96+r}, v{KVA_+2*r}, v{KVA_+2*r+1}")
    a("s_lshl_b32 s52, s50, 4")
    a(f"s_add_u32 s52, s52, s{S_MB}")
    a("s_lshl_b32 s53, s52, 12")
    a(f"s_add_u32 s53, s53, s{S_KV}")
    for u in range(4):
        a(f"buffer_store_dwordx4 {v(96+4*u,4)}, v{V_L16}, s[8:11], s53 offen offset:{u*1024} sc1")
    a("s_lshl_b32 s53, s52, 8")
    a(f"s_add_u32 s53, s53, s{S_ZP}")
    a(f"v_bfe_u32 v148, v{V_LANE}, 4, 1")
    a("v_lshlrev_b32 v148, 7, v148")
    a(f"v_lshrrev_b32 v149, 5, v{V_LANE}")
    a("v_lshl_add_u32 v148, v149, 6, v148")
    a("s_mov_b32 exec_lo, 0x00010001")
    a("s_mov_b32 exec_hi, 0x00010001")
    for q in range(4):
        a(f"buffer_store_dwordx4 {v(ZA+4*q,4)}, v148, s[8:11], s53 offen offset:{q*16} sc1")
    a("s_mov_b64 exec, -1")
    a("s_waitcnt vmcnt(0)")
    a("mA_red1:")
    a("s_barrier")
    stamp(a, 5)
    load_cs_T(a, 0, CSQ)
    a("s_waitcnt lgkmcnt(0)")
    for mi in range(2): norm_T(a, acc(0, mi), CSQ, NM + 2*mi, RS + 2*mi)
    for mi in range(2): pack(a, acc(0, mi), KT + 8*mi)
    a("s_nop 1")
    for mi in range(2):
        a(f"{M32} {v(PD,16)}, {v(WPH,4)}, {v(KT+8*mi,4)}, 0")
        a(f"{M32} {v(PD,16)}, {v(WPH+4,4)}, {v(KT+8*mi+4,4)}, {v(PD,16)}")
        a("s_nop 11")
        softmax_pm(a, PD, EN, PT0 if mi == 0 else PT1, T)
    stamp(a, 6)
    a("s_barrier")

def kv_reduce(a):
    stamp(a, 12)
    a("v_lshrrev_b32 v144, 8, v253") if False else None
    a(f"s_lshr_b32 s39, s{S_WAVE}, 2")
    a("s_lshl_b32 s39, s39, 16")
    a(f"s_and_b32 s40, s{S_WAVE}, 3")
    a("s_lshl_b32 s40, s40, 10")
    a("s_add_u32 s39, s39, s40")
    a(f"s_lshl_b32 s41, s{S_J}, 17")
    a("s_add_u32 s39, s39, s41")
    a(f"s_add_u32 s39, s39, s{S_KV}")
    for i in range(16):
        a(f"buffer_load_dwordx4 {v(64+4*i,4)}, v{V_L16}, s[8:11], s39 offen sc1")
        if i < 15: a("s_add_u32 s39, s39, 4096")
    a(f"s_cmp_lt_u32 s{S_WAVE}, 2")
    a("s_cbranch_scc0 kvr_nz")
    a(f"s_lshl_b32 s39, s{S_J}, 1")
    a(f"s_add_u32 s39, s39, s{S_WAVE}")
    a("s_lshl_b32 s39, s39, 12")
    a(f"s_add_u32 s39, s39, s{S_ZP}")
    a(f"v_lshlrev_b32 v143, 2, v{V_LANE}")
    for i in range(16):
        a(f"buffer_load_dword v{144+i}, v143, s[8:11], s39 offen offset:{i*256} sc1")
    a("s_waitcnt vmcnt(0)")
    for i in range(1, 16): a(f"v_add_f32 v144, v144, v{144+i}")
    a("v_cvt_pk_bf16_f32 v144, v144, v144")
    a(f"v_lshrrev_b32 v145, 5, v{V_LANE}")
    a(f"v_bfe_u32 v146, v{V_LANE}, 3, 1")
    a("v_lshl_add_u32 v145, v145, 1, v146")
    a(f"v_bfe_u32 v146, v{V_LANE}, 4, 1")
    a("v_lshl_add_u32 v145, v145, 1, v146")
    a(f"v_and_b32 v146, 7, v{V_LANE}")
    a("v_lshl_add_u32 v145, v145, 3, v146")
    a("v_lshlrev_b32 v145, 1, v145")
    a(f"s_lshl_b32 s39, s{S_WAVE}, 7")
    a(f"s_add_u32 s39, s39, {L_SCR+8192}")
    a("v_add_u32 v145, s39, v145")
    a("ds_write_b16 v145, v144")
    a("kvr_nz:")
    a(f"v_mov_b32 v140, {hex(SEL_LO)}")
    a(f"v_mov_b32 v141, {hex(SEL_HI)}")
    for r in range(8): a(f"v_mov_b32 v{128+r}, 0")
    for i in range(16):
        a(f"s_waitcnt vmcnt({15-i})")
        for d in range(4):
            a(f"v_dot2c_f32_bf16 v{128+2*d}, v{64+4*i+d}, v140")
            a(f"v_dot2c_f32_bf16 v{128+2*d+1}, v{64+4*i+d}, v141")
    stamp(a, 13)
    a("s_nop 2")
    for d in range(4): a(f"v_cvt_pk_bf16_f32 v{136+d}, v{128+2*d}, v{128+2*d+1}")
    a(f"s_lshl_b32 s39, s{S_WAVE}, 10")
    a(f"s_add_u32 s39, s39, {L_SCR}")
    a(f"v_add_u32 v142, s39, v{V_L16}")
    a("ds_write_b128 v142, v[136:139]")
    a("s_waitcnt lgkmcnt(0)")
    a("s_barrier")

def m_layer_A2(a):
    stamp(a, 14)
    PT = [164, 180]
    KVF, ZF, NUM, DEN, T = 64, 80, 96, 112, 246
    a(f"s_lshl_b32 s39, s{S_R2}, 12")
    a(f"s_add_u32 s39, s39, {L_SCR}")
    a(f"v_add_u32 v148, s39, v{V_L16}")
    for u in range(4): a(f"ds_read_b128 {v(KVF+4*u,4)}, v148 offset:{u*1024}")
    a(f"v_lshrrev_b32 v149, 5, v{V_LANE}")
    a("v_lshlrev_b32 v149, 4, v149")
    a(f"s_lshl_b32 s39, s{S_R2}, 7")
    a(f"s_add_u32 s39, s39, {L_SCR+8192}")
    a("v_add_u32 v149, s39, v149")
    for u in range(4): a(f"ds_read_b128 {v(ZF+4*u,4)}, v149 offset:{u*32}")
    head_tb(a)
    a("s_lshl_b32 s52, s51, 16")
    a("s_lshl_b32 s53, s50, 11")
    a("s_add_u32 s52, s52, s53")
    a(f"s_add_u32 s52, s52, s{S_OF}")
    a("s_waitcnt lgkmcnt(0)")
    NUMS, DENS = [96, 128], [112, 144]
    for mi in range(2):
        for u in range(4):
            c = "0" if u == 0 else v(DENS[mi],16)
            a(f"{M32} {v(DENS[mi],16)}, {v(ZF+4*u,4)}, {v(PT[mi]+4*u,4)}, {c}")
        for u in range(4):
            c = "0" if u == 0 else v(NUMS[mi],16)
            a(f"{M32} {v(NUMS[mi],16)}, {v(KVF+4*u,4)}, {v(PT[mi]+4*u,4)}, {c}")
    for mi in range(2):
        a("s_nop 7" if mi == 1 else "s_nop 1")
        a(f"v_add_f32 v{T}, {f32(1e-6)}, v{DENS[mi]}")
        a(f"v_rcp_f32 v{T}, v{T}")
        a("s_nop 0")
        for r in range(8): a(f"v_pk_mul_f32 {v(NUMS[mi]+2*r,2)}, {v(NUMS[mi]+2*r,2)}, {v(T,2)} op_sel_hi:[1,0]")
        pack(a, NUMS[mi], 196 + 8*mi)
        a(f"s_add_u32 s53, s52, {mi*65536}")
        a(f"buffer_store_dwordx4 {v(196+8*mi,4)}, v{V_L16}, s[8:11], s53 offen sc1")
        a(f"buffer_store_dwordx4 {v(196+8*mi+4,4)}, v{V_L16}, s[8:11], s53 offen offset:1024 sc1")
    a("s_waitcnt vmcnt(0)")

def m_layer_B(a):
    RQ, PK = 158, 228
    load_stats_T(a, NM, RS)
    load_cs_T(a, 1, CSK)
    load_cs_F(a, CSV)
    load_stats_F(a, 0, FNM, FRS)
    load_cs_T(a, 0, CSQ)
    head_tb(a)
    a("s_lshl_b32 s52, s50, 6")
    a("s_add_u32 s52, s52, s51")
    a("s_lshl_b32 s52, s52, 12")
    a(f"s_add_u32 s52, s52, s{S_KV}")
    a(f"s_lshl_b32 s39, s{S_R2}, 16")
    a(f"s_lshl_b32 s40, s{S_R1}, 13")
    a("s_add_u32 s39, s39, s40")
    a(f"v_add_u32 v149, s39, v{V_L16}")
    a("s_waitcnt lgkmcnt(0)")
    for mi in range(2):
        norm_T(a, acc(1, mi), CSK, NM + 2*mi, RS + 2*mi)
        pk = PK + 8 * mi
        pack(a, acc(1, mi), pk)
        a(f"s_add_u32 s53, s52, {mi*4096}")
        a(f"buffer_store_dwordx4 {v(pk,4)}, v{V_L16}, s[8:11], s53 offen sc1")
        a(f"buffer_store_dwordx4 {v(pk+4,4)}, v{V_L16}, s[8:11], s53 offen offset:1024 sc1")
        a(f"ds_write_b128 v149, {v(pk,4)} offset:{mi*4096}")
        a(f"ds_write_b128 v149, {v(pk+4,4)} offset:{mi*4096+1024}")
    for mi in range(2):
        if mi == 1:
            load_stats_F(a, 1, FNM, FRS)
            a("s_waitcnt lgkmcnt(0)")
        norm_F(a, acc(2, mi), CSV, FNM, FRS)
        pk = PK + 8 * mi
        pack(a, acc(2, mi), pk)
        a(f"s_add_u32 s53, s52, {mi*4096}")
        a(f"buffer_store_dwordx4 {v(pk,4)}, v{V_L16}, s[8:11], s53 offen offset:2048 sc1")
        a(f"buffer_store_dwordx4 {v(pk+4,4)}, v{V_L16}, s[8:11], s53 offen offset:3072 sc1")
        a(f"ds_write_b128 v149, {v(pk,4)} offset:{mi*4096+2048}")
        a(f"ds_write_b128 v149, {v(pk+4,4)} offset:{mi*4096+3072}")
    c = (32 ** -0.5) * LOG2E
    for mi in range(2): a(f"v_mul_f32 v{RQ+2*mi}, {f32(c)}, v{RS+2*mi}")
    a(f"s_lshl_b32 s39, s{S_R1}, 2")
    a(f"s_add_u32 s39, s39, s{S_R2}")
    a("s_lshl_b32 s39, s39, 11")
    a(f"s_add_u32 s39, s39, {L_SCR}")
    a(f"v_add_u32 v148, s39, v{V_L16}")
    for mi in range(2):
        norm_T(a, acc(0, mi), CSQ, NM + 2*mi, RQ + 2*mi)
        pack(a, acc(0, mi), 196 + 8*mi)
        a(f"ds_write_b128 v148, {v(196+8*mi,4)} offset:{mi*4096}")
        a(f"ds_write_b128 v148, {v(196+8*mi+4,4)} offset:{mi*4096+1024}")
    a("s_waitcnt vmcnt(0) lgkmcnt(0)")

CH = 16384
APRIO = int(os.environ.get('APRIO', '0'))
ANOBAR = int(os.environ.get('ANOBAR', '0'))
aQ, aNEGM, aSA, aSB, aP, aO, aL, aSEL, aKVA, aKVB, aVA, aVG, aT0 = 0, 8, 24, 40, 56, 64, 80, 84, 88, 104, 120, 121, 123

def attention(a):
    Q, NEGM, SA, SB, P, O, L, SEL, KVA, KVB, VA, VG, T0 = aQ, aNEGM, aSA, aSB, aP, aO, aL, aSEL, aKVA, aKVB, aVA, aVG, aT0
    a(f"s_and_b32 s50, s{S_WAVE}, 1")
    a(f"s_lshr_b32 s51, s{S_WAVE}, 1")
    a("s_lshl_b32 s52, s50, 16")
    a(f"v_add_u32 v{VA}, s52, v{V_L16}")
    a(f"s_lshl_b32 s53, s{S_J}, 1")
    a("s_add_u32 s53, s53, s50")
    a("s_lshl_b32 s30, s53, 18") if False else None
    a("s_lshl_b32 s54, s53, 18")
    a(f"s_add_u32 s54, s54, s{S_KV}")
    a("s_lshl_b32 s55, s51, 12")
    a("s_add_u32 s57, s54, s55")
    a("s_add_u32 s55, s55, s52")
    a(f"s_add_u32 s58, s{S_MB}, 1")
    def dma(buf):
        a("s_and_b32 s58, s58, 15")
        a("s_lshl_b32 s56, s58, 14")
        a("s_add_u32 s56, s56, s57")
        a(f"s_add_u32 m0, s55, {buf*CH}")
        a("s_add_u32 s58, s58, 1")
        for i in range(4):
            a(f"buffer_load_dwordx4 v{V_L16}, s[8:11], s56 offen offset:{i*1024} sc1 lds")
    def wo_part(k):
        a(f"s_and_b32 s41, s{S_WAVE}, 3")
        a("s_lshl_b32 s41, s41, 2")
        a(f"s_lshr_b32 s42, s{S_WAVE}, 2")
        a("s_lshl_b32 s42, s42, 6")
        a("s_add_u32 s41, s41, s42")
        if k: a(f"s_add_u32 s41, s41, {16*k}")
        wo_dma(a, 41, 4, vd=VG)
    def rd(kv, off):
        for i in range(4): a(f"ds_read_b128 {v(kv+4*i,4)}, v{VA} offset:{off+i*1024}")
    handoff(a, "at_sig", FL_KV, S_J, S_MB, wave=0, do_poll=False)
    wsrd(a, S_AWO, S_BWO, D_ * D_ * 2)
    wo_voff(a, VG, T0, T0 + 1)
    a(f"s_lshl_b32 s39, s{S_WAVE}, 11")
    a(f"s_add_u32 s39, s39, {L_SCR}")
    a(f"v_add_u32 v{T0}, s39, v{V_L16}")
    a(f"ds_read_b128 {v(Q,4)}, v{T0}")
    a(f"ds_read_b128 {v(Q+4,4)}, v{T0} offset:1024")
    a(f"v_and_b32 v{T0}, 3, v{V_LANE}")
    a(f"v_bfe_u32 v{T0+1}, v{V_LANE}, 2, 1")
    a(f"v_bfe_u32 v{T0+2}, v{V_LANE}, 4, 1")
    a(f"v_xor_b32 v{T0+1}, v{T0+1}, v{T0+2}")
    a(f"v_or_b32 v{T0}, v{T0}, v{T0+1}")
    a(f"v_cmp_eq_u32 vcc, 0, v{T0}")
    a(f"v_mov_b32 v{T0+1}, {hex(ONES_BF16)}")
    a(f"v_mov_b32 v{T0+2}, 0")
    a(f"v_cndmask_b32 v{SEL}, v{T0+2}, v{T0+1}, vcc")
    for i in range(1, 4): a(f"v_mov_b32 v{SEL+i}, v{SEL}")
    for i in range(16): a(f"v_mov_b32 v{O+i}, 0")
    for i in range(4): a(f"v_mov_b32 v{L+i}, 0")
    for i in range(8): a(f"v_mov_b32 v{P+i}, 0")
    rd(KVA, 0)
    a("s_waitcnt lgkmcnt(0)")
    a(f"{M32} {v(SA,16)}, {v(KVA,4)}, {v(Q,4)}, 0")
    a(f"{M32} {v(SA,16)}, {v(KVA+4,4)}, {v(Q+4,4)}, {v(SA,16)}")
    rd(KVB, 4096)
    a("s_nop 7")
    a(f"v_max3_f32 v{T0}, v{SA}, v{SA+1}, v{SA+2}")
    for i in range(3, 15, 2): a(f"v_max3_f32 v{T0}, v{T0}, v{SA+i}, v{SA+i+1}")
    a(f"v_max_f32 v{T0}, v{T0}, v{SA+15}")
    a(f"v_mov_b32 v{T0+1}, v{T0}")
    a("s_nop 1")
    a(f"v_permlane32_swap_b32 v{T0}, v{T0+1}")
    a("s_nop 1")
    a(f"v_max_f32 v{T0}, v{T0}, v{T0+1}")
    a(f"v_sub_f32 v{NEGM}, 0, v{T0}")
    for i in range(1, 16): a(f"v_mov_b32 v{NEGM+i}, v{NEGM}")
    for i in range(16): a(f"v_add_f32 v{SA+i}, v{SA+i}, v{NEGM}")
    handoff(a, "at_pol", FL_KV, S_J, S_MB, wave=0, do_signal=False)
    a("s_barrier")
    stamp(a, 5)
    dma(1); dma(2)
    pn = [0]
    if APRIO == 1:
        a(f"s_cmp_ge_u32 s{S_WAVE}, 4")
        a("s_cbranch_scc0 at_np")
        a("s_setprio 1")
        a("at_np:")
    if APRIO == 3:
        a(f"s_cmp_lt_u32 s{S_WAVE}, 4")
        a("s_cbranch_scc0 at_np")
        a("s_setprio 1")
        a("at_np:")
    if APRIO == 2:
        a(f"s_cmp_ge_u32 s{S_WAVE}, 4")
        a("s_cselect_b64 vcc, -1, 0")
    def rounds(last):
        for r in range(16):
            cur, nxt = (SA, SB) if r % 2 == 0 else (SB, SA)
            kvc, kvn = (KVA, KVB) if r % 2 == 0 else (KVB, KVA)
            tK = (r + 2) % 16; tV = (r + 1) % 16
            doK = not (last and r >= 14)
            doQK = not (last and r == 15)
            e = lambda i: a(f"v_exp_f32 v{cur+i}, v{cur+i}")
            c = lambda i: a(f"v_cvt_pk_bf16_f32 v{P+i}, v{cur+2*i}, v{cur+2*i+1}")
            if APRIO == 2:
                a(f"s_setprio {1 if r % 2 == 0 else 0}") if False else None
                a(f"s_cbranch_vccz at_p{pn[0]}a")
                a(f"s_setprio {r % 2}")
                a(f"s_branch at_p{pn[0]}b")
                a(f"at_p{pn[0]}a:")
                a(f"s_setprio {1 - r % 2}")
                a(f"at_p{pn[0]}b:")
                pn[0] += 1
            if not (os.environ.get("AEXP") == "half" and r % 2 == 0 and (r + 2) % 4 != 0): a("s_waitcnt lgkmcnt(0)")
            if (r + 2) % 4 == 0 and not (last and r == 14):
                b = (r + 2) // 4
                a("s_waitcnt vmcnt(4)")
                if not ANOBAR: a("s_barrier")
                if last and b == 1 and WPF:
                    a(f"s_cmp_eq_u32 s{S_L}, 3")
                    a("s_cbranch_scc1 at_nopf")
                    a(f"s_and_b32 s41, s{S_MB}, 7")
                    a("s_lshl_b32 s41, s41, 7")
                    a(f"s_lshl_b32 s42, s{S_WAVE}, 4")
                    a("s_add_u32 s41, s41, s42")
                    w_prefetch(a, 41, 16, 128, 152)
                    a("at_nopf:")
                if not (last and b >= 2): dma((b + 2) % 4)
                if last and b == 2: wo_part(0)
                if last and b == 3: wo_part(1)
            if doQK: a(f"{M32} {v(nxt,16)}, {v(kvn,4)}, {v(Q,4)}, {v(NEGM,16)}")
            for i in range(0, 4): e(i)
            AEXP = os.environ.get("AEXP", "")
            if doK and AEXP != "nolds" and not (AEXP == "half" and r % 2 == 1):
                a(f"ds_read_b128 {v(kvc,4)}, v{VA} offset:{tK*4096}")
                a(f"ds_read_b128 {v(kvc+4,4)}, v{VA} offset:{tK*4096+1024}")
            if doQK: a(f"{M32} {v(nxt,16)}, {v(kvn+4,4)}, {v(Q+4,4)}, {v(nxt,16)}")
            for i in range(4, 8): e(i)
            a(f"{M32} {v(O,16)}, {v(kvn+12,4)}, {v(P+4,4)}, {v(O,16)}")
            for i in range(0, 4): c(i)
            e(8); e(9)
            if doQK and AEXP != "nolds" and not (AEXP == "half" and r % 2 == 1):
                a(f"ds_read_b128 {v(kvn+8,4)}, v{VA} offset:{tV*4096+2048}")
                a(f"ds_read_b128 {v(kvn+12,4)}, v{VA} offset:{tV*4096+3072}")
            if AEXP != "norow": a(f"{M16} {v(L,4)}, {v(SEL,4)}, {v(P+4,4)}, {v(L,4)}")
            e(10); e(11)
            a(f"{M32} {v(O,16)}, {v(kvc+8,4)}, {v(P,4)}, {v(O,16)}")
            for i in range(12, 16): e(i)
            if AEXP != "norow": a(f"{M16} {v(L,4)}, {v(SEL,4)}, {v(P,4)}, {v(L,4)}")
            for i in range(4, 8): c(i)
    a("s_mov_b32 s40, 3")
    a("at_loop:")
    rounds(False)
    a("s_sub_u32 s40, s40, 1")
    a("s_cmp_lg_u32 s40, 0")
    a("s_cbranch_scc1 at_loop")
    rounds(True)
    a("s_nop 1")
    a(f"{M32} {v(O,16)}, {v(KVB+12,4)}, {v(P+4,4)}, {v(O,16)}")
    a(f"{M16} {v(L,4)}, {v(SEL,4)}, {v(P+4,4)}, {v(L,4)}")
    if APRIO: a("s_setprio 0")
    stamp(a, 6)
    a("s_nop 15")
    a(f"v_mov_b32 v{T0}, 0")
    for i in range(16): a(f"v_fma_f32 v{T0}, v{O+i}, 0, v{T0}")
    a(f"v_cmp_eq_f32 vcc, 0, v{T0}")
    a(f"v_mov_b32 v{T0+1}, {f32(2.0**100)}")
    a(f"v_cmp_lt_f32 s[42:43], v{L}, v{T0+1}")
    a("s_nop 1")
    a("s_and_b64 vcc, vcc, s[42:43]")
    a("s_cmp_eq_u64 vcc, exec")
    a("s_cbranch_scc1 at_fin")
    for i in range(16): a(f"v_mov_b32 v{O+i}, 0")
    for i in range(4): a(f"v_mov_b32 v{L+i}, 0")
    MV = T0 + 2
    a(f"v_mov_b32 v{MV}, {f32(-3.0e38)}")
    a("s_mov_b32 s41, s54")
    a("s_mov_b32 s40, 64")
    a("at_fb:")
    for i in range(4):
        a(f"buffer_load_dwordx4 {v(KVA+4*i,4)}, v{V_L16}, s[8:11], s41 offen offset:{i*1024} sc1")
    a("s_waitcnt vmcnt(0)")
    a(f"{M32} {v(SA,16)}, {v(KVA,4)}, {v(Q,4)}, 0")
    a(f"{M32} {v(SA,16)}, {v(KVA+4,4)}, {v(Q+4,4)}, {v(SA,16)}")
    a("s_nop 15")
    a(f"v_max3_f32 v{T0}, v{SA}, v{SA+1}, v{SA+2}")
    for i in range(3, 15, 2): a(f"v_max3_f32 v{T0}, v{T0}, v{SA+i}, v{SA+i+1}")
    a(f"v_max_f32 v{T0}, v{T0}, v{SA+15}")
    a(f"v_mov_b32 v{T0+1}, v{T0}")
    a("s_nop 1")
    a(f"v_permlane32_swap_b32 v{T0}, v{T0+1}")
    a("s_nop 1")
    a(f"v_max3_f32 v{T0}, v{T0}, v{T0+1}, v{MV}")
    a(f"v_sub_f32 v{T0+1}, v{MV}, v{T0}")
    a(f"v_exp_f32 v{T0+1}, v{T0+1}")
    a(f"v_mov_b32 v{MV}, v{T0}")
    for i in range(16): a(f"v_sub_f32 v{SA+i}, v{SA+i}, v{T0}")
    for i in range(16): a(f"v_exp_f32 v{SA+i}, v{SA+i}")
    for i in range(16): a(f"v_mul_f32 v{O+i}, v{O+i}, v{T0+1}")
    for i in range(4): a(f"v_mul_f32 v{L+i}, v{L+i}, v{T0+1}")
    for i in range(8): a(f"v_cvt_pk_bf16_f32 v{P+i}, v{SA+2*i}, v{SA+2*i+1}")
    a("s_nop 1")
    a(f"{M32} {v(O,16)}, {v(KVA+8,4)}, {v(P,4)}, {v(O,16)}")
    a(f"{M16} {v(L,4)}, {v(SEL,4)}, {v(P,4)}, {v(L,4)}")
    a(f"{M32} {v(O,16)}, {v(KVA+12,4)}, {v(P+4,4)}, {v(O,16)}")
    a(f"{M16} {v(L,4)}, {v(SEL,4)}, {v(P+4,4)}, {v(L,4)}")
    a("s_nop 15")
    a("s_add_u32 s41, s41, 4096")
    a("s_sub_u32 s40, s40, 1")
    a("s_cmp_lg_u32 s40, 0")
    a("s_cbranch_scc1 at_fb")
    a("at_fin:")
    a(f"v_rcp_f32 v{T0}, v{L}")
    a("s_nop 0")
    for i in range(16): a(f"v_mul_f32 v{O+i}, v{O+i}, v{T0}")
    for i in range(8): a(f"v_cvt_pk_bf16_f32 v{P+i}, v{O+2*i}, v{O+2*i+1}")
    a(f"s_lshl_b32 s39, s{S_MB}, 2")
    a("s_add_u32 s39, s39, s51")
    a("s_lshl_b32 s39, s39, 16")
    a("s_lshl_b32 s40, s53, 11")
    a("s_add_u32 s39, s39, s40")
    a(f"s_add_u32 s39, s39, s{S_OF}")
    a(f"buffer_store_dwordx4 {v(P,4)}, v{V_L16}, s[8:11], s39 offen sc1")
    a(f"buffer_store_dwordx4 {v(P+4,4)}, v{V_L16}, s[8:11], s39 offen offset:1024 sc1")
    a("s_waitcnt vmcnt(0)")


def attention2(a):
    QA, QB, NA, NB, SA, SB, PA, PB, OA, OB, LA, LB, SEL = 0, 8, 16, 32, 48, 64, 80, 88, 96, 112, 128, 132, 136
    KS, VS = [140, 148], [156, 164]
    VA, VG, T0 = 172, 173, 174
    a(f"s_and_b32 s50, s{S_WAVE}, 1")
    a(f"s_lshr_b32 s51, s{S_WAVE}, 1")
    a("s_lshl_b32 s52, s50, 16")
    a(f"s_lshr_b32 s59, s{S_WAVE}, 2")
    a("s_lshl_b32 s39, s59, 13")
    a("s_add_u32 s39, s39, s52")
    a(f"v_add_u32 v{VA}, s39, v{V_L16}")
    a(f"s_lshl_b32 s53, s{S_J}, 1")
    a("s_add_u32 s53, s53, s50")
    a("s_lshl_b32 s54, s53, 18")
    a(f"s_add_u32 s54, s54, s{S_KV}")
    a("s_lshl_b32 s55, s51, 12")
    a("s_add_u32 s57, s54, s55")
    a("s_add_u32 s55, s55, s52")
    a(f"s_add_u32 s58, s{S_MB}, 1")
    def dma(buf):
        a("s_and_b32 s58, s58, 15")
        a("s_lshl_b32 s56, s58, 14")
        a("s_add_u32 s56, s56, s57")
        a(f"s_add_u32 m0, s55, {buf*CH}")
        a("s_add_u32 s58, s58, 1")
        for i in range(4):
            a(f"buffer_load_dwordx4 v{V_L16}, s[8:11], s56 offen offset:{i*1024} sc1 lds")
    def wo_part(k):
        a(f"s_and_b32 s41, s{S_WAVE}, 3")
        a("s_lshl_b32 s41, s41, 2")
        a(f"s_lshr_b32 s42, s{S_WAVE}, 2")
        a("s_lshl_b32 s42, s42, 6")
        a("s_add_u32 s41, s41, s42")
        if k: a(f"s_add_u32 s41, s41, {16*k}")
        wo_dma(a, 41, 4, vd=VG)
    handoff(a, "at_sig", FL_KV, S_J, S_MB, wave=0, do_poll=False)
    wsrd(a, S_AWO, S_BWO, D_ * D_ * 2)
    wo_voff(a, VG, T0, T0 + 1)
    a(f"s_bfe_u32 s49, s{S_WAVE}, 0x10001")
    a("s_lshl_b32 s39, s49, 2")
    a("s_add_u32 s39, s39, s50")
    a("s_lshl_b32 s39, s39, 11")
    a(f"s_add_u32 s39, s39, {L_SCR}")
    a(f"v_add_u32 v{T0}, s39, v{V_L16}")
    a(f"ds_read_b128 {v(QA,4)}, v{T0}")
    a(f"ds_read_b128 {v(QA+4,4)}, v{T0} offset:1024")
    a(f"ds_read_b128 {v(QB,4)}, v{T0} offset:4096")
    a(f"ds_read_b128 {v(QB+4,4)}, v{T0} offset:5120")
    a(f"v_add_u32 v{T0+1}, s52, v{V_L16}")
    a(f"ds_read_b128 {v(KS[1],4)}, v{T0+1}")
    a(f"ds_read_b128 {v(KS[1]+4,4)}, v{T0+1} offset:1024")
    a(f"ds_read_b128 {v(KS[0],4)}, v{VA}")
    a(f"ds_read_b128 {v(KS[0]+4,4)}, v{VA} offset:1024")
    a(f"v_and_b32 v{T0}, 3, v{V_LANE}")
    a(f"v_bfe_u32 v{T0+1}, v{V_LANE}, 2, 1")
    a(f"v_bfe_u32 v{T0+2}, v{V_LANE}, 4, 1")
    a(f"v_xor_b32 v{T0+1}, v{T0+1}, v{T0+2}")
    a(f"v_or_b32 v{T0}, v{T0}, v{T0+1}")
    a(f"v_cmp_eq_u32 vcc, 0, v{T0}")
    a(f"v_mov_b32 v{T0+1}, {hex(ONES_BF16)}")
    a(f"v_mov_b32 v{T0+2}, 0")
    a(f"v_cndmask_b32 v{SEL}, v{T0+2}, v{T0+1}, vcc")
    for i in range(1, 4): a(f"v_mov_b32 v{SEL+i}, v{SEL}")
    for i in range(32): a(f"v_mov_b32 v{OA+i}, 0")
    for i in range(8): a(f"v_mov_b32 v{LA+i}, 0")
    for i in range(8): a(f"v_mov_b32 v{PB+i}, 0")
    for i in range(8): a(f"v_mov_b32 v{VS[1]+i}, 0")
    a("s_waitcnt lgkmcnt(0)")
    for S_, Q_ in ((SA, QA), (SB, QB)):
        a(f"{M32} {v(S_,16)}, {v(KS[1],4)}, {v(Q_,4)}, 0")
        a(f"{M32} {v(S_,16)}, {v(KS[1]+4,4)}, {v(Q_+4,4)}, {v(S_,16)}")
    a("s_nop 9")
    for S_, N_, t in ((SA, NA, T0), (SB, NB, T0 + 2)):
        if S_ == SB: pass
        a(f"v_max3_f32 v{t}, v{S_}, v{S_+1}, v{S_+2}")
        for i in range(3, 15, 2): a(f"v_max3_f32 v{t}, v{t}, v{S_+i}, v{S_+i+1}")
        a(f"v_max_f32 v{t}, v{t}, v{S_+15}")
        a(f"v_mov_b32 v{t+1}, v{t}")
        a("s_nop 1")
        a(f"v_permlane32_swap_b32 v{t}, v{t+1}")
        a("s_nop 1")
        a(f"v_max_f32 v{t}, v{t}, v{t+1}")
        a(f"v_sub_f32 v{N_}, 0, v{t}")
        for i in range(1, 16): a(f"v_mov_b32 v{N_+i}, v{N_}")
    a("s_nop 1")
    a(f"{M32} {v(SA,16)}, {v(KS[0],4)}, {v(QA,4)}, {v(NA,16)}")
    a(f"{M32} {v(SA,16)}, {v(KS[0]+4,4)}, {v(QA+4,4)}, {v(SA,16)}")
    handoff(a, "at_pol", FL_KV, S_J, S_MB, wave=0, do_signal=False)
    a("s_barrier")
    stamp(a, 5)
    dma(1); dma(2)
    a("s_nop 7")
    def off(n): return ((n // 2) % 4) * CH + (n % 2) * 4096
    def phases(last):
        for n in range(8):
            for sx in range(2):
                if sx == 0:
                    cur, Pc, oth, Qo, No, Kq, Oo, Lo, Po, Vp = SA, PA, SB, QB, NB, KS[n % 2], OB, LB, PB, VS[(n + 1) % 2]
                    doQK = True
                else:
                    cur, Pc, oth, Qo, No, Kq, Oo, Lo, Po, Vp = SB, PB, SA, QA, NA, KS[(n + 1) % 2], OA, LA, PA, VS[n % 2]
                    doQK = not (last and n == 7)
                e = lambda i: a(f"v_exp_f32 v{cur+i}, v{cur+i}")
                c = lambda i: a(f"v_cvt_pk_bf16_f32 v{Pc+i}, v{cur+2*i}, v{cur+2*i+1}")
                if sx == 1: a("s_waitcnt lgkmcnt(0)")
                if sx == 0 and n % 2 == 1 and not (last and n == 7):
                    b = (n + 1) // 2
                    a("s_waitcnt vmcnt(4)")
                    a("s_barrier")
                    if not (last and b >= 2): dma((b + 2) % 4)
                    if last and b == 2: wo_part(0)
                    if last and b == 3: wo_part(1)
                if doQK: a(f"{M32} {v(oth,16)}, {v(Kq,4)}, {v(Qo,4)}, {v(No,16)}")
                for i in range(0, 4): e(i)
                if sx == 0:
                    if not (last and n == 7):
                        a(f"ds_read_b128 {v(KS[(n+1)%2],4)}, v{VA} offset:{off(n+1)}")
                        a(f"ds_read_b128 {v(KS[(n+1)%2]+4,4)}, v{VA} offset:{off(n+1)+1024}")
                    a(f"ds_read_b128 {v(VS[n%2],4)}, v{VA} offset:{off(n)+2048}")
                    a(f"ds_read_b128 {v(VS[n%2]+4,4)}, v{VA} offset:{off(n)+3072}")
                if doQK: a(f"{M32} {v(oth,16)}, {v(Kq+4,4)}, {v(Qo+4,4)}, {v(oth,16)}")
                for i in range(4, 8): e(i)
                a(f"{M32} {v(Oo,16)}, {v(Vp,4)}, {v(Po,4)}, {v(Oo,16)}")
                for i in range(0, 4): c(i)
                e(8); e(9)
                a(f"{M16} {v(Lo,4)}, {v(SEL,4)}, {v(Po,4)}, {v(Lo,4)}")
                e(10); e(11)
                a(f"{M32} {v(Oo,16)}, {v(Vp+4,4)}, {v(Po+4,4)}, {v(Oo,16)}")
                for i in range(12, 16): e(i)
                a(f"{M16} {v(Lo,4)}, {v(SEL,4)}, {v(Po+4,4)}, {v(Lo,4)}")
                for i in range(4, 8): c(i)
    a("s_mov_b32 s40, 3")
    a("at_loop:")
    phases(False)
    a("s_sub_u32 s40, s40, 1")
    a("s_cmp_lg_u32 s40, 0")
    a("s_cbranch_scc1 at_loop")
    phases(True)
    a("s_nop 1")
    a(f"{M32} {v(OB,16)}, {v(VS[1],4)}, {v(PB,4)}, {v(OB,16)}")
    a(f"{M16} {v(LB,4)}, {v(SEL,4)}, {v(PB,4)}, {v(LB,4)}")
    a(f"{M32} {v(OB,16)}, {v(VS[1]+4,4)}, {v(PB+4,4)}, {v(OB,16)}")
    a(f"{M16} {v(LB,4)}, {v(SEL,4)}, {v(PB+4,4)}, {v(LB,4)}")
    a("s_barrier")
    stamp(a, 6)
    a("s_lshl_b32 s39, s49, 1")
    a("s_add_u32 s41, s39, s59")
    a("s_xor_b32 s42, s41, 1")
    a("s_mul_i32 s42, s42, 4608")
    a("s_mul_i32 s43, s41, 4608")
    a("s_add_u32 s44, s52, 32768")
    a("s_add_u32 s42, s42, s44")
    a("s_add_u32 s43, s43, s44")
    a(f"v_add_u32 v{T0}, s42, v{V_L16}")
    a(f"v_add_u32 v{T0+1}, s43, v{V_L16}")
    a(f"v_lshlrev_b32 v{T0+2}, 2, v{V_LANE}")
    a(f"v_add_u32 v{T0+3}, s43, v{T0+2}")
    a(f"v_add_u32 v{T0+2}, s42, v{T0+2}")
    a("s_nop 4")
    a("s_cmp_eq_u32 s59, 0")
    a("s_cbranch_scc0 at_k1")
    for q in range(4): a(f"ds_write_b128 v{T0}, {v(OB+4*q,4)} offset:{q*1024}")
    a(f"ds_write_b32 v{T0+2}, v{LB} offset:4096")
    a("s_branch at_k2")
    a("at_k1:")
    for q in range(4): a(f"ds_write_b128 v{T0}, {v(OA+4*q,4)} offset:{q*1024}")
    a(f"ds_write_b32 v{T0+2}, v{LA} offset:4096")
    for i in range(16): a(f"v_mov_b32 v{OA+i}, v{OB+i}")
    a(f"v_mov_b32 v{LA}, v{LB}")
    for i in range(8): a(f"v_mov_b32 v{QA+i}, v{QB+i}")
    a("at_k2:")
    a("s_waitcnt lgkmcnt(0)")
    a("s_barrier")
    for q in range(4): a(f"ds_read_b128 {v(SA+4*q,4)}, v{T0+1} offset:{q*1024}")
    a(f"ds_read_b32 v{SB}, v{T0+3} offset:4096")
    a("s_waitcnt lgkmcnt(0)")
    for r in range(8): a(f"v_pk_add_f32 {v(OA+2*r,2)}, {v(OA+2*r,2)}, {v(SA+2*r,2)}")
    a(f"v_add_f32 v{LA}, v{LA}, v{SB}")
    O, L, Q, P, KVA = OA, LA, QA, PA, KS[0]
    a(f"v_mov_b32 v{T0}, 0")
    for i in range(16): a(f"v_fma_f32 v{T0}, v{O+i}, 0, v{T0}")
    a(f"v_cmp_eq_f32 vcc, 0, v{T0}")
    a(f"v_mov_b32 v{T0+1}, {f32(2.0**100)}")
    a(f"v_cmp_lt_f32 s[42:43], v{L}, v{T0+1}")
    a("s_nop 1")
    a("s_and_b64 vcc, vcc, s[42:43]")
    a("s_cmp_eq_u64 vcc, exec")
    a("s_cbranch_scc1 at_fin")
    KF = 140
    for i in range(16): a(f"v_mov_b32 v{O+i}, 0")
    for i in range(4): a(f"v_mov_b32 v{L+i}, 0")
    MV = T0 + 2
    a(f"v_mov_b32 v{MV}, {f32(-3.0e38)}")
    a("s_mov_b32 s45, s54")
    a("s_mov_b32 s40, 64")
    a("at_fb:")
    for i in range(4):
        a(f"buffer_load_dwordx4 {v(KF+4*i,4)}, v{V_L16}, s[8:11], s45 offen offset:{i*1024} sc1")
    a("s_waitcnt vmcnt(0)")
    a(f"{M32} {v(SA,16)}, {v(KF,4)}, {v(Q,4)}, 0")
    a(f"{M32} {v(SA,16)}, {v(KF+4,4)}, {v(Q+4,4)}, {v(SA,16)}")
    a("s_nop 15")
    a(f"v_max3_f32 v{T0}, v{SA}, v{SA+1}, v{SA+2}")
    for i in range(3, 15, 2): a(f"v_max3_f32 v{T0}, v{T0}, v{SA+i}, v{SA+i+1}")
    a(f"v_max_f32 v{T0}, v{T0}, v{SA+15}")
    a(f"v_mov_b32 v{T0+1}, v{T0}")
    a("s_nop 1")
    a(f"v_permlane32_swap_b32 v{T0}, v{T0+1}")
    a("s_nop 1")
    a(f"v_max3_f32 v{T0}, v{T0}, v{T0+1}, v{MV}")
    a(f"v_sub_f32 v{T0+1}, v{MV}, v{T0}")
    a(f"v_exp_f32 v{T0+1}, v{T0+1}")
    a(f"v_mov_b32 v{MV}, v{T0}")
    for i in range(16): a(f"v_sub_f32 v{SA+i}, v{SA+i}, v{T0}")
    for i in range(16): a(f"v_exp_f32 v{SA+i}, v{SA+i}")
    for i in range(16): a(f"v_mul_f32 v{O+i}, v{O+i}, v{T0+1}")
    for i in range(4): a(f"v_mul_f32 v{L+i}, v{L+i}, v{T0+1}")
    for i in range(8): a(f"v_cvt_pk_bf16_f32 v{P+i}, v{SA+2*i}, v{SA+2*i+1}")
    a("s_nop 1")
    a(f"{M32} {v(O,16)}, {v(KF+8,4)}, {v(P,4)}, {v(O,16)}")
    a(f"{M16} {v(L,4)}, {v(SEL,4)}, {v(P,4)}, {v(L,4)}")
    a(f"{M32} {v(O,16)}, {v(KF+12,4)}, {v(P+4,4)}, {v(O,16)}")
    a(f"{M16} {v(L,4)}, {v(SEL,4)}, {v(P+4,4)}, {v(L,4)}")
    a("s_nop 15")
    a("s_add_u32 s45, s45, 4096")
    a("s_sub_u32 s40, s40, 1")
    a("s_cmp_lg_u32 s40, 0")
    a("s_cbranch_scc1 at_fb")
    a("at_fin:")
    a(f"v_rcp_f32 v{T0}, v{L}")
    a("s_nop 0")
    for i in range(16): a(f"v_mul_f32 v{O+i}, v{O+i}, v{T0}")
    for i in range(8): a(f"v_cvt_pk_bf16_f32 v{P+i}, v{O+2*i}, v{O+2*i+1}")
    a(f"s_lshl_b32 s39, s{S_MB}, 2")
    a("s_add_u32 s39, s39, s41")
    a("s_lshl_b32 s39, s39, 16")
    a("s_lshl_b32 s40, s53, 11")
    a("s_add_u32 s39, s39, s40")
    a(f"s_add_u32 s39, s39, s{S_OF}")
    a(f"buffer_store_dwordx4 {v(P,4)}, v{V_L16}, s[8:11], s39 offen sc1")
    a(f"buffer_store_dwordx4 {v(P+4,4)}, v{V_L16}, s[8:11], s39 offen offset:1024 sc1")
    a("s_waitcnt vmcnt(0)")

def m_setup(a):
    layer_setup(a)
    a(f"s_lshl_b32 s39, s{S_R1}, 13")
    a(f"v_add_u32 v{VX0}, s39, v{V_L16}")
    L_ = V_LANE
    a(f"v_lshrrev_b32 v5, 5, v{L_}")
    a(f"v_bfe_u32 v6, v{L_}, 2, 2")
    a("v_lshl_add_u32 v5, v5, 2, v6")
    a("v_lshlrev_b32 v5, 7, v5")
    a(f"v_bfe_u32 v6, v{L_}, 4, 1")
    a(f"v_bfe_u32 v7, v{L_}, 1, 1")
    a("v_lshl_add_u32 v6, v6, 1, v7")
    a(f"s_lshl_b32 s39, s{S_R2}, 2")
    a("v_add_u32 v6, s39, v6")
    a(f"v_bfe_u32 v7, v{L_}, 3, 1")
    a("v_lshlrev_b32 v7, 2, v7")
    a("v_xor_b32 v6, v6, v7")
    a("v_lshl_add_u32 v5, v6, 4, v5")
    a(f"v_and_b32 v6, 1, v{L_}")
    a(f"v_lshl_add_u32 v{VW0}, v6, 3, v5")
    a(f"v_mov_b32 v{VX}, v{VX0}")
    a(f"v_mov_b32 v{VW}, v{VW0}")
    if PFD:
        wsrd(a, S_AWQKV, S_BWQKV, D_ * 3 * D_ * 2)
        a(f"v_lshrrev_b32 v220, 3, v{V_LANE}")
        a("v_mul_u32_u24 v220, 6144, v220")
        a(f"v_and_b32 v221, 7, v{V_LANE}")
        a("v_lshl_add_u32 v220, v221, 4, v220")
        a(f"s_mul_i32 s45, s{S_WAVE}, {16*6144}")
        a(f"s_lshl_b32 s39, s{S_J}, 7")
        a("s_add_u32 s45, s45, s39")
        a(f"s_and_b32 s42, s{S_MB}, 7")
        a(f"s_mov_b32 s41, {PFD}")
    for i in range(96): a(f"v_mov_b32 v{ACC+i}, 0")
    a("s_mov_b32 s40, 0")
    a("s_mov_b32 s49, 16")

def emit_xstore(a, PK, ONE, S1, VA, sx, sst):
    for i in range(4):
        a(f"buffer_store_dwordx4 {v(PK+4*i,4)}, v{V_L16}, s[8:11], s{sx} offen offset:{i*1024} sc1")
    S2, S3, S4 = S1 + 1, S1 + 2, S1 + 3
    a(f"v_mov_b32 v{S1}, 0")
    a(f"v_mov_b32 v{S2}, 0")
    for r in range(16):
        a(f"v_dot2c_f32_bf16 v{S1}, v{PK+r}, v{ONE}")
        a(f"v_dot2c_f32_bf16 v{S2}, v{PK+r}, v{PK+r}")
    a("s_nop 2")
    a(f"v_mov_b32 v{S3}, v{S1}")
    a(f"v_mov_b32 v{S4}, v{S2}")
    a("s_nop 1")
    a(f"v_permlane32_swap_b32 v{S1}, v{S3}")
    a(f"v_permlane32_swap_b32 v{S2}, v{S4}")
    a("s_nop 1")
    a(f"v_add_f32 v{S1}, v{S1}, v{S3}")
    a(f"v_add_f32 v{S2}, v{S2}, v{S4}")
    a(f"v_and_b32 v{VA}, 31, v{V_LANE}")
    a(f"v_lshlrev_b32 v{VA}, 3, v{VA}")
    a("s_mov_b64 exec, 0xffffffff")
    a(f"buffer_store_dwordx2 {v(S1,2)}, v{VA}, s[8:11], s{sst} offen sc1")
    a("s_mov_b64 exec, -1")

def m_p3(a):
    a("m_f1:")
    a("s_barrier")
    handoff(a, "m_ho_s", FL_O, S_MB, S_J, wave=0, do_poll=False)
    ACC3, AR, WF, RES = 0, 32, [96, 104], 112
    VWA = [128, 129, 130, 131]
    L_ = V_LANE
    a(f"s_lshl_b32 s50, s{S_MB}, 2")
    a(f"s_add_u32 s50, s50, s{S_WAVE}")
    a("s_lshl_b32 s51, s50, 16")
    a(f"s_lshl_b32 s39, s{S_J}, 12")
    a("s_add_u32 s52, s51, s39")
    a(f"s_add_u32 s53, s52, s{S_XF}")
    for i in range(4):
        a(f"buffer_load_dwordx4 {v(RES+4*i,4)}, v{V_L16}, s[8:11], s53 offen offset:{i*1024} sc1")
    a(f"s_add_u32 s54, s51, s{S_OF}")
    seq = list(range(0, 16)) + list(range(32, 48)) + list(range(16, 32)) + list(range(48, 64))
    NR = int(os.environ.get("NR", "16"))
    def areg(idx):
        slot = idx % NR
        return AR + 4 * slot if slot < 16 else 144 + 4 * (slot - 16)
    def aload(idx):
        ks = seq[idx]
        if ks % 4 == 0: a(f"s_add_u32 s55, s54, {(ks//4)*4096}")
        a(f"buffer_load_dwordx4 {v(areg(idx),4)}, v{V_L16}, s[8:11], s55 offen offset:{(ks%4)*1024} sc1 {os.environ.get('ANT','')}")
    a(f"v_lshrrev_b32 v132, 5, v{L_}")
    a(f"v_bfe_u32 v133, v{L_}, 2, 2")
    a("v_lshl_add_u32 v132, v132, 2, v133")
    a("v_lshlrev_b32 v132, 7, v132")
    a(f"v_bfe_u32 v133, v{L_}, 4, 1")
    a(f"v_bfe_u32 v134, v{L_}, 1, 1")
    a("v_lshl_add_u32 v133, v133, 1, v134")
    a(f"v_bfe_u32 v134, v{L_}, 3, 1")
    a("v_lshlrev_b32 v134, 2, v134")
    a("v_xor_b32 v133, v133, v134")
    a("v_lshl_add_u32 v132, v133, 4, v132")
    a(f"v_and_b32 v133, 1, v{L_}")
    a(f"v_lshl_add_u32 v{VWA[0]}, v133, 3, v132")
    a(f"v_xor_b32 v{VWA[1]}, 64, v{VWA[0]}")
    a(f"v_add_u32 v{VWA[2]}, 0x10000, v{VWA[0]}")
    a(f"v_add_u32 v{VWA[3]}, 0x10000, v{VWA[1]}")
    for i in range(32): a(f"v_mov_b32 v{ACC3+i}, 0")
    def wreads(idx, cb):
        fs = WF[idx % 2]; ks = seq[idx]
        half, kk = ks // 32, ks % 32
        for t in range(2):
            a(f"ds_read_b64_tr_b16 {v(fs+4*cb+2*t,2)}, v{VWA[half*2+cb]} offset:{kk*2048+t*1024}")
    handoff(a, "m_ho_p", FL_O, S_MB, S_J, wave=0, do_signal=False)
    a("s_barrier")
    stamp(a, 8)
    for idx in range(NR): aload(idx)
    wreads(0, 0); wreads(0, 1)
    stamp(a, 9)
    for ks in range(64):
        fs = WF[ks % 2]; A = areg(ks)
        vm = min(NR - 1, 63 - ks)
        a(f"s_waitcnt vmcnt({vm}) lgkmcnt(2)")
        a(f"{M32} {v(ACC3,16)}, {v(fs,4)}, {v(A,4)}, {v(ACC3,16)}")
        if ks == 31: a("s_barrier")
        if ks < 63:
            wreads(ks + 1, 0)
            a("s_waitcnt lgkmcnt(2)")
        else:
            a("s_waitcnt lgkmcnt(0)")
        a(f"{M32} {v(ACC3+16,16)}, {v(fs+4,4)}, {v(A,4)}, {v(ACC3+16,16)}")
        if ks < 63: wreads(ks + 1, 1)
        if ks + NR < 64: aload(ks + NR)
    stamp(a, 10)
    T = 136
    a(f"v_mov_b32 v{T}, {hex(SEL_LO)}")
    a(f"v_mov_b32 v{T+1}, {hex(SEL_HI)}")
    a(f"v_mov_b32 v{T+2}, {hex(ONES_BF16)}")
    a("s_nop 7")
    for cb in range(2):
        for r in range(8):
            a(f"v_dot2c_f32_bf16 v{ACC3+16*cb+2*r}, v{RES+8*cb+r}, v{T}")
            a(f"v_dot2c_f32_bf16 v{ACC3+16*cb+2*r+1}, v{RES+8*cb+r}, v{T+1}")
    a("s_nop 2")
    PK = RES
    for cb in range(2):
        for r in range(8):
            a(f"v_cvt_pk_bf16_f32 v{PK+8*cb+r}, v{ACC3+16*cb+2*r}, v{ACC3+16*cb+2*r+1}")
    a(f"s_cmp_eq_u32 s{S_L}, 3")
    a("s_cbranch_scc1 p3_final")
    a(f"s_add_u32 s53, s52, s{S_XFN}")
    a(f"s_lshl_b32 s39, s{S_J}, 14")
    a("s_lshl_b32 s40, s50, 8")
    a("s_add_u32 s39, s39, s40")
    a(f"s_add_u32 s54, s39, s{S_STN}")
    emit_xstore(a, PK, T + 2, 140, 144, 53, 54)
    a(f"s_add_u32 s{S_L}, s{S_L}, 1")
    m_setup(a)
    a("s_waitcnt vmcnt(0)")
    a("s_barrier")
    if STAMP: a(f"s_sub_u32 s{S_L}, s{S_L}, 1")
    stamp(a, 11)
    if STAMP: a(f"s_add_u32 s{S_L}, s{S_L}, 1")
    handoff(a, "m_hx", FL_X, S_MB, S_J, layer_delta=-1, wave=0)
    a("s_barrier")
    a("s_branch m_layer")
    a("p3_final:")
    for i in range(4):
        a(f"v_permlane32_swap_b32 v{PK+4*i}, v{PK+4*i+2}")
        a(f"v_permlane32_swap_b32 v{PK+4*i+1}, v{PK+4*i+3}")
    OUTMOD = os.environ.get("OUTMOD", "nt")
    srd(a, 16, S_OUT, S_ * D_ * 2)
    a(f"s_lshl_b32 s39, s{S_J}, 7")
    a("s_add_u32 s39, s39, s51")
    if os.environ.get("OUTLDS", "1") == "1":
        a(f"s_lshl_b32 s40, s{S_WAVE}, 12")
        a(f"s_add_u32 s40, s40, {L_SCR}")
        a(f"v_and_b32 v144, 31, v{L_}")
        a(f"v_lshrrev_b32 v145, 5, v{L_}")
        a("v_and_b32 v146, 7, v144")
        a("v_lshlrev_b32 v144, 7, v144")
        a("v_add_u32 v144, s40, v144")
        for i in range(4):
            a(f"v_add_u32 v147, {2*i}, v145")
            a("v_xor_b32 v147, v147, v146")
            a("v_lshl_add_u32 v147, v147, 4, v144")
            a(f"ds_write_b128 v147, {v(PK+4*i,4)}")
        a(f"v_lshrrev_b32 v145, 3, v{L_}")
        a(f"v_and_b32 v146, 7, v{L_}")
        a("v_xor_b32 v147, v146, v145")
        a("v_lshlrev_b32 v147, 4, v147")
        a("v_lshl_add_u32 v147, v145, 7, v147")
        a("v_add_u32 v147, s40, v147")
        a("v_lshlrev_b32 v144, 11, v145")
        a("v_lshl_add_u32 v144, v146, 4, v144")
        a("s_waitcnt lgkmcnt(0)")
        for k in range(4): a(f"ds_read_b128 {v(148+4*k,4)}, v147 offset:{k*1024}")
        for k in range(4):
            a(f"s_waitcnt lgkmcnt({3-k})")
            a(f"s_add_u32 s40, s39, {k*8*2048}")
            a(f"buffer_store_dwordx4 {v(148+4*k,4)}, v144, s[16:19], s40 offen {OUTMOD}")
    else:
        a(f"v_and_b32 v144, 31, v{L_}")
        a("v_lshlrev_b32 v144, 11, v144")
        a(f"v_lshrrev_b32 v145, 5, v{L_}")
        a("v_lshl_add_u32 v144, v145, 4, v144")
        for i in range(4):
            a(f"buffer_store_dwordx4 {v(PK+4*i,4)}, v144, s[16:19], s39 offen offset:{i*32} {OUTMOD}")
    a("s_waitcnt vmcnt(0)")
    stamp(a, 11)
    a("s_endpgm")

def gen_mega(name="mega_kernel"):
    a = Asm()
    kstart(a, name, 256)
    a(f"s_load_dwordx2 s[4:5], s[0:1], {KA_WS}")
    a(f"s_load_dwordx2 s[{S_AWQKV}:{S_AWQKV+1}], s[0:1], {KA_AWQKV}")
    a(f"s_load_dwordx2 s[{S_BWQKV}:{S_BWQKV+1}], s[0:1], {KA_BWQKV}")
    a(f"s_load_dwordx2 s[{S_AWO}:{S_AWO+1}], s[0:1], {KA_AWO}")
    a(f"s_load_dwordx2 s[{S_BWO}:{S_BWO+1}], s[0:1], {KA_BWO}")
    a(f"s_load_dwordx2 s[{S_AWPHI}:{S_AWPHI+1}], s[0:1], {KA_AWPHI}")
    a(f"s_load_dwordx2 s[{S_OUT}:{S_OUT+1}], s[0:1], {KA_OUT}")
    a("v_lshrrev_b32 v1, 6, v0")
    a(f"v_and_b32 v{V_LANE}, 63, v0")
    a(f"v_lshlrev_b32 v{V_L16}, 4, v{V_LANE}")
    a("s_and_b32 s38, s2, 7")
    a("s_lshr_b32 s39, s2, 3")
    a(f"v_readfirstlane_b32 s{S_WAVE}, v1")
    a(f"s_and_b32 s{S_MB}, s38, 1")
    a(f"s_lshl_b32 s{S_MB}, s{S_MB}, 3")
    a("s_and_b32 s40, s39, 7")
    a(f"s_add_u32 s{S_MB}, s{S_MB}, s40")
    a(f"s_lshr_b32 s{S_J}, s38, 1")
    a(f"s_lshl_b32 s{S_J}, s{S_J}, 2")
    a("s_lshr_b32 s40, s39, 3")
    a(f"s_add_u32 s{S_J}, s{S_J}, s40")
    a(f"s_mov_b32 s{S_L}, 0")
    a(f"s_mov_b32 s{S_L2E}, {f32(LOG2E)}")
    a(f"s_load_dwordx2 s[74:75], s[0:1], {KA_AX}")
    if STAMP:
        a("s_lshl_b32 s90, s2, 6")
        a(f"s_lshl_b32 s91, s{S_WAVE}, 2")
        a("s_add_u32 s90, s90, s91")
        a(f"s_add_u32 s90, s90, {hex(WS_STAMP)}")
    a("s_waitcnt lgkmcnt(0)")
    srd(a, 8, 4, WS_SIZE)
    if DBGST:
        a(f"s_load_dwordx2 s[92:93], s[0:1], {KA_DBG}")
        a("s_waitcnt lgkmcnt(0)")
        srd(a, 88, 92, 256)
    stamp(a, 0)
    if os.environ.get("CODEPF"):
        a("s_getpc_b64 s[76:77]")
        a("cpf_here:")
        a("s_add_u32 s76, s76, 0")
        a("s_and_b32 s76, s76, 0xffffff00")
        a("s_and_b32 s77, s77, 0xffff")
        a("s_mov_b32 s78, 0x9000")
        a("s_mov_b32 s79, 0x20000")
        a("s_lshr_b32 s39, s2, 3")
        a("s_lshl_b32 s39, s39, 11")
        a(f"buffer_load_dwordx4 v[200:203], v{V_L16}, s[76:79], s39 offen")
        a(f"buffer_load_dwordx4 v[204:207], v{V_L16}, s[76:79], s39 offen offset:1024")
    a("v_mov_b32 v217, 0")
    a(f"s_mov_b32 s39, {hex(WS_FLAGS + 4*0x1800 + FL_O)}")
    a("buffer_load_dword v218, v217, s[8:11], s39 offen sc1")
    a(f"s_cmp_lt_u32 s{S_WAVE}, 4")
    a("s_cbranch_scc1 m_entry")
    a(f"s_sub_u32 s{S_R1}, s{S_WAVE}, 4")
    a("l_layer:")
    layer_setup(a)
    wsrd(a, S_AWQKV, S_BWQKV, D_ * 3 * D_ * 2)
    a(f"v_mov_b32 v2, v{V_L16}")
    a(f"v_lshrrev_b32 v5, 3, v{V_LANE}")
    a("v_mul_u32_u24 v3, 6144, v5")
    a(f"v_and_b32 v6, 7, v{V_LANE}")
    a(f"v_bfe_u32 v7, v{V_LANE}, 4, 1")
    a("v_lshlrev_b32 v7, 2, v7")
    a("v_xor_b32 v6, v6, v7")
    a("v_lshl_add_u32 v3, v6, 4, v3")
    a(f"s_mul_i32 s59, s{S_R1}, {16*6144}")
    a(f"s_lshl_b32 s39, s{S_J}, 7")
    a("s_add_u32 s59, s59, s39")
    if ROT == "mb":
        a(f"s_mov_b32 s56, s{S_MB}")
    elif ROT == "mb2":
        a(f"s_lshl_b32 s56, s{S_MB}, 1")
        a("s_and_b32 s56, s56, 15")
    elif ROT == "mbj":
        a(f"s_add_u32 s56, s{S_MB}, s{S_J}")
        a("s_and_b32 s56, s56, 15")
    else:
        a("s_mov_b32 s56, 0")
    a("s_mov_b32 s57, s56")
    a(f"s_lshl_b32 s47, s{S_R1}, 12")
    a(f"s_lshl_b32 s48, s{S_R1}, 11")
    a("s_add_u32 s48, s48, 16384")
    a("s_mov_b32 s45, 0")
    a("s_mov_b32 s46, 0")
    a(f"s_lshl_b32 s58, s{S_MB}, 2")
    a(f"s_add_u32 s58, s58, s{S_R1}")
    a("s_lshl_b32 s58, s58, 16")
    a(f"s_cmp_eq_u32 s{S_L}, 0")
    a("s_cbranch_scc1 l_xrow")
    a(f"s_add_u32 s58, s58, s{S_XF}")
    srd(a, 84, 4, WS_SIZE)
    a("s_mov_b32 s81, 1024")
    a("s_mov_b32 s82, 4096")
    a(f"v_mov_b32 v4, v{V_L16}")
    a("s_branch l_xdone")
    a("l_xrow:")
    srd(a, 84, 74, S_ * D_ * 2)
    a("s_mov_b32 s81, 16384")
    a("s_mov_b32 s82, 128")
    a(f"v_lshrrev_b32 v5, 3, v{V_LANE}")
    a("v_lshlrev_b32 v5, 11, v5")
    a(f"v_and_b32 v6, 7, v{V_LANE}")
    a(f"v_lshrrev_b32 v7, 4, v{V_LANE}")
    a("v_xor_b32 v6, v6, v7")
    a("v_lshl_add_u32 v2, v6, 4, v5")
    a("v_xor_b32 v4, 64, v2")
    a("l_xdone:")
    def share_dma():
        if os.environ.get("NOSHDMA"): return
        a(f"s_cmp_lt_u32 s{S_L}, 2")
        n = _poll_n[0]; _poll_n[0] += 1
        a(f"s_cbranch_scc0 l_nosh{n}")
        a(f"s_mul_i32 s42, s{S_MB}, {64*6144}")
        a("s_add_u32 s42, s42, s59")
        a(f"s_lshl_b32 s44, s{S_R1}, 11")
        for p in range(3):
            for q in range(2):
                a(f"s_add_u32 m0, s44, {L_SH[p] + q*1024}")
                a(f"s_add_u32 s43, s42, {p*2048 + q*8*6144}")
                a("buffer_load_dwordx4 v3, s[12:15], s43 offen lds")
        a(f"l_nosh{n}:")
    def wphi_dma():
        srd(a, 16, S_AWPHI, 32*32*32*2)
        a(f"s_lshl_b32 s49, s{S_J}, 12")
        a(f"s_lshl_b32 s39, s{S_R1}, 10")
        a("s_add_u32 s49, s49, s39")
        a(f"s_add_u32 m0, s39, {L_WPHI}")
        a("s_nop 0")
        a(f"buffer_load_dwordx4 v{V_L16}, s[16:19], s49 offen lds")
    a(f"s_cmp_eq_u32 s{S_L}, 0")
    a("s_cbranch_scc0 l_w1")
    share_dma()
    for st in range(3): issue_w(a)
    issue_x(a); wphi_dma(); issue_x(a); issue_x(a)
    a("s_waitcnt vmcnt(31)")
    a("s_barrier")
    a("s_branch l_w2")
    a("l_w1:")
    share_dma()
    a("s_barrier")
    for st in range(3): issue_w(a)
    a("s_waitcnt vmcnt(18)")
    a("s_barrier")
    stamp(a, 1)
    issue_x(a); wphi_dma(); issue_x(a); issue_x(a)
    a("l_w2:")
    a("s_waitcnt vmcnt(9)")
    a(f"v_readfirstlane_b32 s80, v218")
    a("s_barrier")
    a(f"s_add_u32 s{S_N}, s80, 1")
    a("s_waitcnt vmcnt(4)")
    a("s_barrier")
    issue_stage(a, False)
    a(f"s_cmp_lt_u32 s{S_L}, 2")
    a("s_cbranch_scc0 l_nopub")
    a(f"s_cmp_eq_u32 s{S_R1}, 3")
    a("s_cbranch_scc0 l_nopub")
    a(f"v_lshlrev_b32 v5, 3, v{V_LANE}")
    a(f"v_add_u32 v6, {L_SH[0]}, v5")
    for w in range(4):
        a(f"ds_read_b64 {v(16+4*w,2)}, v6 offset:{w*2048}")
        a(f"ds_read_b64 {v(18+4*w,2)}, v6 offset:{w*2048+512}")
    a(f"s_and_b32 s39, s{S_L}, 1")
    a(f"s_mul_i32 s39, s39, {16*3072*4}")
    a(f"s_mul_i32 s43, s{S_MB}, {3072*4}")
    a("s_add_u32 s43, s43, s39")
    a(f"s_lshl_b32 s44, s{S_J}, 8")
    a("s_add_u32 s43, s43, s44")
    a(f"s_add_u32 s43, s43, {hex(WS_CSP)}")
    a(f"v_lshrrev_b32 v8, 5, v{V_LANE}")
    a(f"v_and_b32 v9, 31, v{V_LANE}")
    a("v_lshlrev_b32 v9, 3, v9")
    a("v_lshl_add_u32 v8, v8, 12, v9")
    a("v_add_u32 v9, 8192, v9")
    a("s_waitcnt lgkmcnt(0)")
    for w in range(1, 4):
        for k in range(4): a(f"v_add_f32 v{16+k}, v{16+k}, v{16+4*w+k}")
    a("buffer_store_dwordx2 v[16:17], v8, s[8:11], s43 offen sc1")
    a("s_mov_b64 exec, 0xffffffff")
    a("buffer_store_dwordx2 v[18:19], v9, s[8:11], s43 offen sc1")
    a("s_mov_b64 exec, -1")
    a("l_nopub:")
    a("s_mov_b32 s49, 12")
    a("l_loop:")
    a("s_waitcnt vmcnt(10)")
    a("s_barrier")
    a("s_cmp_eq_u32 s49, 11")
    a("s_cbranch_scc0 l_nosig")
    a(f"s_cmp_lt_u32 s{S_L}, 2")
    a("s_cbranch_scc0 l_nosig")
    a(f"s_cmp_eq_u32 s{S_R1}, 3")
    a("s_cbranch_scc0 l_nosig")
    csflag(a)
    signal(a, 38, S_MB)
    a("l_nosig:")
    issue_stage(a, False)
    a("s_sub_u32 s49, s49, 1")
    a("s_cmp_lg_u32 s49, 0")
    a("s_cbranch_scc1 l_loop")
    a(f"s_cmp_ge_u32 s{S_R1}, 2")
    a("s_cbranch_scc1 l_colf")
    a(f"s_lshl_b32 s38, s{S_MB}, 7")
    a(f"s_add_u32 s38, s38, s{S_FL}")
    a(f"s_sub_u32 s38, s38, {0x1800 - FL_X}")
    a("s_branch l_stf")
    a("l_colf:")
    csflag(a)
    a("l_stf:")
    a(f"v_and_b32 v250, 15, v{V_LANE}")
    a("v_lshlrev_b32 v250, 3, v250")
    a("buffer_load_dwordx2 v[248:249], v250, s[8:11], s38 offen sc1")
    a("s_waitcnt vmcnt(11)")
    a("s_barrier")
    a("s_waitcnt vmcnt(0)")
    a(f"s_not_b32 s71, s{S_N}")
    a(f"v_cmp_eq_u32 vcc, s{S_N}, v248")
    a("v_cmp_eq_u32 s[72:73], s71, v249")
    a("s_nop 0")
    a("s_and_b64 vcc, vcc, s[72:73]")
    a("s_cmp_eq_u64 vcc, exec")
    a("s_cbranch_scc1 l_colok")
    if not os.environ.get("NOCS"): poll(a, 38)
    a("l_colok:")
    a(f"s_cmp_ge_u32 s{S_R1}, 2")
    a("s_cbranch_scc1 l_cola")
    a(f"s_lshl_b32 s49, s{S_MB}, 7")
    a(f"s_lshl_b32 s39, s{S_R1}, 6")
    a("s_add_u32 s49, s49, s39")
    a("s_lshl_b32 s49, s49, 3")
    a(f"s_add_u32 s49, s49, s{S_ST}")
    a("s_mov_b32 s50, 16384")
    a(f"v_lshlrev_b32 v5, 3, v{V_LANE}")
    a("s_branch l_stl")
    a("l_cola:")
    a(f"s_sub_u32 s49, s{S_R1}, 2")
    a("s_lshl_b32 s49, s49, 1")
    a(f"v_lshrrev_b32 v5, 5, v{V_LANE}")
    a("v_add_u32 v5, s49, v5")
    a("v_min_u32 v5, 2, v5")
    a(f"v_and_b32 v6, 31, v{V_LANE}")
    a("v_lshlrev_b32 v6, 3, v6")
    a("v_lshl_add_u32 v7, v5, 8, v6")
    a("v_lshl_add_u32 v5, v5, 12, v6")
    a(f"s_and_b32 s39, s{S_L}, 1")
    a(f"s_mul_i32 s39, s39, {16*3072*4}")
    a(f"s_lshl_b32 s49, s{S_J}, 8")
    a("s_add_u32 s49, s49, s39")
    a(f"s_add_u32 s49, s49, {hex(WS_CSP)}")
    a(f"s_mov_b32 s50, {3072*4}")
    a("l_stl:")
    for i in range(16):
        a(f"buffer_load_dwordx2 {v(16+2*i,2)}, v5, s[8:11], s49 offen sc1")
        if i < 15: a("s_add_u32 s49, s49, s50")
    a("s_barrier")
    a("s_waitcnt vmcnt(0)")
    for i in range(1, 16):
        a(f"v_add_f32 v16, v16, v{16+2*i}")
        a(f"v_add_f32 v17, v17, v{17+2*i}")
    a(f"s_cmp_ge_u32 s{S_R1}, 2")
    a("s_cbranch_scc1 l_colw")
    a(f"v_mul_f32 v16, {f32(1.0/1024)}, v16")
    a(f"v_mul_f32 v17, {f32(1.0/1024)}, v17")
    a("v_fma_f32 v17, -v16, v16, v17")
    a("v_max_f32 v17, 0, v17")
    a(f"v_add_f32 v17, {f32(1e-5)}, v17")
    a("v_rsq_f32 v17, v17")
    a("v_sub_f32 v16, 0, v16")
    a(f"s_lshl_b32 s39, s{S_R1}, 8")
    a(f"v_lshlrev_b32 v5, 2, v{V_LANE}")
    a("v_add_u32 v5, s39, v5")
    a(f"v_add_u32 v5, {L_NM}, v5")
    a("ds_write_b32 v5, v16")
    a("ds_write_b32 v5, v17 offset:512")
    a("s_branch l_stw")
    a("l_colw:")
    a(f"v_add_u32 v7, s{S_CS}, v7")
    a("ds_write_b64 v7, v[16:17]")
    a("l_stw:")
    a("s_waitcnt lgkmcnt(0)")
    a("l_cole:")
    a("s_barrier")
    a(f"s_bitcmp1_b32 s{S_L}, 0")
    a("s_cbranch_scc1 l_B")
    wsrd(a, S_AWO, S_BWO, D_ * D_ * 2)
    a(f"s_lshl_b32 s41, s{S_R1}, 5")
    wo_voff(a)
    wo_dma(a, 41, 32)
    if True:
        a(f"s_cmp_eq_u32 s{S_L}, 0")
        a("s_cbranch_scc0 l_nowpf")
        a(f"s_and_b32 s41, s{S_MB}, 7")
        a("s_lshl_b32 s41, s41, 7")
        a(f"s_lshl_b32 s42, s{S_R1}, 5")
        a("s_add_u32 s41, s41, s42")
        w_prefetch(a, 41, 32, 16, 8)
        a("l_nowpf:")
    a("s_barrier")
    a("s_barrier")
    handoff(a, "l_hkv", FL_KV, S_J, S_MB)
    a("s_barrier")
    a("s_branch kv_reduce")
    a("l_B:")
    a("s_barrier")
    a("s_branch attention")
    a("m_entry:")
    a(f"s_lshr_b32 s{S_R1}, s{S_WAVE}, 1")
    a(f"s_and_b32 s{S_R2}, s{S_WAVE}, 1")
    srd(a, 16, 74, S_ * D_ * 2)
    a(f"s_lshl_b32 s50, s{S_MB}, 2")
    a(f"s_add_u32 s50, s50, s{S_WAVE}")
    a("s_lshl_b32 s51, s50, 16")
    a(f"s_lshl_b32 s39, s{S_J}, 7")
    a("s_add_u32 s53, s51, s39")
    a(f"v_and_b32 v156, 31, v{V_LANE}")
    a("v_lshlrev_b32 v156, 11, v156")
    a(f"v_lshrrev_b32 v157, 5, v{V_LANE}")
    a("v_lshl_add_u32 v156, v157, 4, v156")
    for i in range(4):
        a(f"buffer_load_dwordx4 {v(112+4*i,4)}, v156, s[16:19], s53 offen offset:{i*32}")
    m_setup(a)
    a(f"s_lshl_b32 s39, s{S_J}, 12")
    a("s_add_u32 s77, s51, s39")
    a(f"s_add_u32 s77, s77, s{S_XF}")
    a(f"s_lshl_b32 s39, s{S_J}, 14")
    a("s_lshl_b32 s78, s50, 8")
    a("s_add_u32 s78, s78, s39")
    a(f"s_add_u32 s78, s78, s{S_ST}")
    a("s_barrier")
    a("m_layer:")
    if not os.environ.get("NOCS"):
        a(f"s_cmp_lt_u32 s{S_L}, 2")
        a("s_cbranch_scc0 m_nocs")
        L_ = V_LANE
        a(f"v_lshrrev_b32 v140, 5, v{L_}")
        a(f"v_bfe_u32 v141, v{L_}, 2, 2")
        a("v_lshl_add_u32 v140, v140, 2, v141")
        a("v_lshlrev_b32 v140, 7, v140")
        a(f"v_bfe_u32 v141, v{L_}, 4, 1")
        a(f"v_bfe_u32 v142, v{L_}, 1, 1")
        a("v_lshl_add_u32 v141, v141, 1, v142")
        a(f"v_bfe_u32 v142, v{L_}, 3, 1")
        a("v_lshlrev_b32 v142, 2, v142")
        a("v_xor_b32 v141, v141, v142")
        a("v_lshl_add_u32 v140, v141, 4, v140")
        a(f"v_and_b32 v141, 1, v{L_}")
        a("v_lshl_add_u32 v140, v141, 3, v140")
        a(f"s_lshl_b32 s39, s{S_WAVE}, 11")
        a("v_add_u32 v140, s39, v140")
        a("v_xor_b32 v141, 64, v140")
        for p in range(3):
            for hd in range(2):
                a(f"v_add_u32 v142, {L_SH[p]}, v{140+hd}")
                for t in range(2):
                    a(f"ds_read_b64_tr_b16 {v(160+(p*2+hd)*4+2*t,2)}, v142 offset:{t*1024}")
        a(f"v_mov_b32 v143, {hex(ONES_BF16)}")
        for f in range(6): a(f"v_mov_b32 v{150+f}, 0")
        a("s_waitcnt lgkmcnt(0)")
        for q in range(4):
            for f in range(6): a(f"v_dot2c_f32_bf16 v{150+f}, v{160+f*4+q}, v143")
        a("s_nop 2")
        for f in range(6): a(f"v_mov_b32 v{184+f}, v{150+f}")
        a("s_nop 1")
        for f in range(6): a(f"v_permlane32_swap_b32 v{150+f}, v{184+f}")
        a("s_nop 1")
        for f in range(6): a(f"v_add_f32 v{150+f}, v{150+f}, v{184+f}")
        a(f"v_and_b32 v142, 31, v{L_}")
        a("v_lshlrev_b32 v142, 2, v142")
        a(f"s_lshl_b32 s39, s{S_WAVE}, 11")
        a(f"s_add_u32 s39, s39, {L_SH[0]}")
        a("v_add_u32 v142, s39, v142")
        for p in range(3):
            for hd in range(2): a(f"ds_write_b32 v142, v{150+p*2+hd} offset:{p*256+hd*128}")
        a("s_waitcnt lgkmcnt(0)")
        a("m_nocs:")
    def m_main(nat):
        t = "n" if nat else ""
        a("s_barrier")
        stamp(a, 2)
        p1_reads(a, FA, 0, range(8), nat)
        if nat:
            p1_sub(a, FA, FB, 1, nat=nat)
            p1_sub(a, FB, FA, 2, nat=nat)
            p1_sub(a, FA, FB, 3, nat=nat)
            a("s_waitcnt vmcnt(0)")
            p1_sub(a, FB, FA, 0, barrier=True, nat=nat)
            handoff(a, "m_sx0", FL_X, S_MB, S_J, layer_delta=-1, wave=0, do_poll=False)
            a("s_sub_u32 s49, s49, 1")
            if PFD: a("s_add_u32 s41, s41, 1")
        if PFD:
            a("s_cmp_ge_u32 s42, 3")
            a(f"s_cbranch_scc0 m_pf0{t}")
            a(f"s_cmp_lt_u32 s42, {PFD + (1 if nat else 0)}")
            a(f"s_cbranch_scc0 m_pf0{t}")
            m_w_prefetch(a, 42, "x")
            a(f"m_pf0{t}:")
        a(f"m_loop{t}:")
        if PFD:
            a("s_and_b32 s39, s41, 7")
            a("s_cmp_eq_u32 s39, s42")
            a(f"s_cbranch_scc0 m_pf1{t}")
            a("s_cmp_lt_u32 s41, 16")
            a(f"s_cbranch_scc0 m_pf1{t}")
            m_w_prefetch(a, 41, "y")
            a(f"m_pf1{t}:")
            a("s_add_u32 s41, s41, 1")
        p1_sub(a, FA, FB, 1, nat=nat)
        p1_sub(a, FB, FA, 2, nat=nat)
        p1_sub(a, FA, FB, 3, nat=nat)
        p1_sub(a, FB, FA, 0, barrier=True, nat=nat)
        a("s_sub_u32 s49, s49, 1")
        a("s_cmp_lg_u32 s49, 0")
        a(f"s_cbranch_scc1 m_loop{t}")
    a(f"s_cmp_eq_u32 s{S_L}, 0")
    a("s_cbranch_scc0 m_std")
    L_ = V_LANE
    a(f"v_and_b32 v5, 31, v{L_}")
    a("v_lshlrev_b32 v6, 7, v5")
    a(f"s_lshl_b32 s39, s{S_R1}, 13")
    a("v_add_u32 v6, s39, v6")
    a("v_bfe_u32 v5, v5, 1, 3")
    a(f"v_lshrrev_b32 v7, 5, v{L_}")
    for k in range(4):
        a(f"v_add_u32 v8, {2*k}, v7")
        a("v_xor_b32 v8, v8, v5")
        a(f"v_lshl_add_u32 v{VXN0+k}, v8, 4, v6")
        a(f"v_mov_b32 v{VXN+k}, v{VXN0+k}")
    a(f"v_lshrrev_b32 v5, 5, v{L_}")
    a("v_lshlrev_b32 v5, 9, v5")
    a(f"v_add_u32 v{VW0}, v{VW0}, v5")
    a(f"v_mov_b32 v{VW}, v{VW0}")
    for r in (5, 6, 7, 8): a(f"v_mov_b32 v{r}, 0")
    a(f"v_mov_b32 v150, {hex(ONES_BF16)}")
    a("s_waitcnt vmcnt(0)")
    a(f"v_readfirstlane_b32 s{S_N}, v218")
    for i in range(4):
        a(f"v_permlane32_swap_b32 v{112+4*i}, v{112+4*i+2}")
        a(f"v_permlane32_swap_b32 v{112+4*i+1}, v{112+4*i+3}")
    a(f"s_add_u32 s{S_N}, s{S_N}, 1")
    emit_xstore(a, 112, 150, 152, 156, 77, 78)
    m_main(True)
    a("s_branch m_done")
    a("m_std:")
    m_main(False)
    a("m_done:")
    a("s_waitcnt vmcnt(0) lgkmcnt(0)")
    stamp(a, 3)
    a(f"s_bitcmp1_b32 s{S_L}, 0")
    a("s_cbranch_scc1 m_B")
    m_layer_A(a)
    a("kv_reduce:")
    kv_reduce(a)
    a(f"s_cmp_lt_u32 s{S_WAVE}, 4")
    a("s_cbranch_scc0 l_A2")
    m_layer_A2(a)
    stamp(a, 7)
    a("s_branch m_f1")
    a("l_A2:")
    a("s_barrier")
    a("s_waitcnt vmcnt(0)")
    a("s_barrier")
    a("s_branch l_p3")
    a("m_B:")
    m_layer_B(a)
    stamp(a, 4)
    a("s_barrier")
    a("attention:")
    (attention2 if os.environ.get("A2Q", "1") == "1" else attention)(a)
    stamp(a, 7)
    a(f"s_cmp_lt_u32 s{S_WAVE}, 4")
    a("s_cbranch_scc1 m_f1")
    a("s_barrier")
    a(f"s_sub_u32 s41, s{S_WAVE}, 4")
    a("s_lshl_b32 s41, s41, 3")
    a("s_add_u32 s41, s41, 32")
    vg_ = 173 if os.environ.get("A2Q", "1") == "1" else aVG
    wo_dma(a, 41, 8, vd=vg_)
    a("s_add_u32 s41, s41, 64")
    wo_dma(a, 41, 8, vd=vg_)
    a("s_barrier")
    a("l_p3:")
    a("s_waitcnt vmcnt(0)")
    a("s_barrier")
    a(f"s_add_u32 s{S_L}, s{S_L}, 1")
    a(f"s_cmp_lt_u32 s{S_L}, 4")
    a("s_cbranch_scc1 l_layer")
    a("s_endpgm")
    m_p3(a)
    kend(a, name)
    return a.text(), kernel_descriptor(name, 256), dict(name=name, grid=256, block=512, lds=MEGA_LDS)
```
